```python
import torch

def _softmax(x, axis=-1):
    return torch.softmax(x, dim=axis)
def _gelu(x):
    return torch.nn.functional.gelu(x, approximate="tanh")
def _silu(x):
    return torch.nn.functional.silu(x)
def _sigmoid(x):
    return torch.sigmoid(x)
def _layernorm(x, axis=-1, eps=1e-5):
    m = x.mean(dim=axis, keepdim=True)
    v = x.var(dim=axis, keepdim=True, unbiased=False)
    return (x - m) / torch.sqrt(v + eps)
def _scatter_add(tgt, idx, src, axis=0):
    return tgt.clone().index_add_(axis, idx, src)
def _segment_sum(src, seg, n):
    out = torch.zeros((n,) + src.shape[1:], dtype=src.dtype)
    return out.index_add_(0, seg, src)
def _pad(x, pw):
    flat = tuple(v for pair in reversed(pw) for v in pair)
    return torch.nn.functional.pad(x, flat)

kernel_name = 'interleave_layers__mha_block__glu_gated_swiglu__prompt'

def setup_inputs():

    _w = (lambda a: (lambda t: t.to(torch.bfloat16) if t.is_floating_point() else t)(torch.as_tensor(a)))
    def _A_setup():
        B, S, D, H = 1, 2048, 576, 32
        return {
            "x": _w((lambda *s: torch.randn(*s, dtype=torch.bfloat16) * 0.05)(B, S, D)),
            "wqkv": _w((lambda *s: torch.randn(*s, dtype=torch.bfloat16) * 0.05)(D, 3 * D)),
            "wo": _w((lambda *s: torch.randn(*s, dtype=torch.bfloat16) * 0.05)(D, D)),
        }
    _A_in = _A_setup()

    def _B_setup():
        B, S, D, F = 1, 2048, 576, 4608
        return {
            "x": _w((lambda *s: torch.randn(*s, dtype=torch.bfloat16) * 0.05)(B, S, D)),
            "w1": _w((lambda *s: torch.randn(*s, dtype=torch.bfloat16) * 0.4)(D, F) * (2.0 / D) ** 0.5),
            "w3": _w((lambda *s: torch.randn(*s, dtype=torch.bfloat16) * 0.4)(D, F) * (2.0 / D) ** 0.5),
            "w2": _w((lambda *s: torch.randn(*s, dtype=torch.bfloat16) * 0.4)(F, D) * (2.0 / F) ** 0.5),
        }
    _B_in = _B_setup()

    return {
        "A_x": _A_in["x"],
        "A_wqkv": _A_in["wqkv"],
        "A_wo": _A_in["wo"],
        "B_x": _B_in["x"],
        "B_w1": _B_in["w1"],
        "B_w3": _B_in["w3"],
        "B_w2": _B_in["w2"],
    }

def reference(A_x, A_wqkv, A_wo, B_x, B_w1, B_w3, B_w2):
    def _A_ref(x, wqkv, wo):
        B, S, D = x.shape
        H = 32
        Dh = D // H
        qkv = (lambda x, *d: x.permute(*d))((x @ wqkv).reshape(B, S, 3, H, Dh), 2, 0, 3, 1, 4)
        q, k, v = qkv[0], qkv[1], qkv[2]
        scores = torch.einsum("bhqd,bhkd->bhqk", q, k) * (Dh ** -0.5)
        p = _softmax(scores, axis=-1)
        o = torch.einsum("bhqk,bhkd->bhqd", p, v)
        return (lambda x, *d: x.permute(*d))(o, 0, 2, 1, 3).reshape(B, S, D) @ wo

    def _B_ref(x, w1, w3, w2):
        gate = torch.einsum("bsd,df->bsf", x, w1)
        up = torch.einsum("bsd,df->bsf", x, w3)
        h = _silu(gate) * up
        out = torch.einsum("bsf,fd->bsd", h, w2)
        return out

    x = A_x
    x = x + _A_ref(_layernorm(x, axis=-1), A_wqkv, A_wo)
    x = x + _B_ref(_layernorm(x, axis=-1), B_w1, B_w3, B_w2)
    x = x + _A_ref(_layernorm(x, axis=-1), A_wqkv, A_wo)
    x = x + _B_ref(_layernorm(x, axis=-1), B_w1, B_w3, B_w2)
    return x
```

```python
import re

TRANS = ("v_exp_", "v_log_", "v_rcp_", "v_rsq_", "v_sqrt_", "v_sin_", "v_cos_")
REG = re.compile(r"^-?(?:abs\()?\|?([vas])(\d+)\)?\|?$")
RNG = re.compile(r"^-?([vas])\[(\d+):(\d+)\]$")


def v(i, n=1):
    return f"v{i}" if n == 1 else f"v[{i}:{i+n-1}]"
def a(i, n=1):
    return f"a{i}" if n == 1 else f"a[{i}:{i+n-1}]"
def s(i, n=1):
    return f"s{i}" if n == 1 else f"s[{i}:{i+n-1}]"
def R(i, n=1):
    assert (i < 256) == (i + n - 1 < 256), (i, n)
    return v(i, n) if i < 256 else a(i - 256, n)


def regs_of(op):
    op = op.strip()
    m = REG.match(op)
    if m:
        return [(m.group(1), int(m.group(2)))]
    m = RNG.match(op)
    if m:
        return [(m.group(1), i) for i in range(int(m.group(2)), int(m.group(3)) + 1)]
    if op == "vcc":
        return [("s", 106), ("s", 107)]
    if op == "vcc_lo": return [("s", 106)]
    if op == "vcc_hi": return [("s", 107)]
    if op == "exec":
        return [("s", 126), ("s", 127)]
    if op == "exec_lo": return [("s", 126)]
    if op == "exec_hi": return [("s", 127)]
    if op == "m0":
        return [("s", 124)]
    return []


class I:
    __slots__ = ("text", "op", "ops", "mods", "dst", "src", "kind", "tag", "take", "passes", "mA", "mC", "slots", "label", "target")

    def __init__(self, text, tag=None, take=None):
        self.text = text
        self.tag = tag
        self.take = take
        self.label = None
        self.target = None
        self.dst, self.src = [], []
        self.passes = 0
        self.mA, self.mC = [], []
        self.slots = 1
        t = text.split(";")[0].strip()
        if t.endswith(":"):
            self.kind, self.label, self.op, self.slots = "label", t[:-1], "", 0
            return
        if t.startswith(".") or not t:
            self.kind, self.op, self.slots = "dir", "", 0
            return
        parts = t.split(None, 1)
        op = self.op = parts[0]
        rest = parts[1] if len(parts) > 1 else ""
        raw = [x.strip() for x in re.split(r",(?![^\[]*\])", rest)] if rest else []
        mods = ""
        if raw:
            last = raw[-1].split(None, 1)
            raw[-1] = last[0] if last else ""
            mods = last[1] if len(last) > 1 else ""
        self.ops, self.mods = raw, mods
        rr = [regs_of(x) for x in raw]
        flat = lambda L: [r for x in L for r in x]
        if op == "WAITVM":
            self.kind = "waitvm"
        elif op.startswith("v_mfma"):
            self.kind = "mfma"
            self.dst, self.mA, self.mC = rr[0], rr[1] + rr[2], rr[3]
            self.src = self.mA + self.mC
            self.passes = 4 if "16x16" in op else 8
        elif op.startswith("v_"):
            self.kind = "valu"
            if op.startswith("v_nop"):
                pass
            elif op.startswith("v_permlane") and "swap" in op or op.startswith("v_swap"):
                self.dst = self.src = rr[0] + rr[1]
            elif "_co_" in op:
                self.dst, self.src = rr[0] + rr[1], flat(rr[2:])
            else:
                self.dst, self.src = rr[0], flat(rr[1:])
                if op.startswith(("v_fmac", "v_dot2c", "v_pk_fmac", "v_writelane")) or "dpp" in op or "row_" in mods or "quad_perm" in mods or "UNUSED_PRESERVE" in mods:
                    self.src = self.src + rr[0]
        elif op.startswith(("buffer_", "global_")):
            self.kind = "vmem"
            lds = " lds" in " " + mods or "_lds_" in op
            if lds:
                self.src = flat(rr) + [("s", 124)]
            elif "_load_" in op:
                self.dst, self.src = rr[0], flat(rr[1:])
                if "d16" in op:
                    self.src = self.src + rr[0]
            elif "atomic" in op and "sc0" in mods:
                self.dst, self.src = rr[0], flat(rr)
            elif op in ("buffer_wbl2", "buffer_inv"):
                pass
            else:
                self.src = flat(rr)
        elif op.startswith("ds_"):
            self.kind = "ds"
            if op.startswith(("ds_read", "ds_bpermute", "ds_permute", "ds_swizzle")) or "_rtn" in op:
                self.dst, self.src = rr[0], flat(rr[1:])
            else:
                self.src = flat(rr)
        elif op.startswith(("s_load", "s_memtime", "s_memrealtime")):
            self.kind = "smem"
            self.dst, self.src = rr[0], flat(rr[1:])
        elif op == "s_waitcnt":
            self.kind = "wait"
        elif op == "s_nop":
            self.kind = "nop"
            self.slots = int(raw[0], 0) + 1
        elif op.startswith(("s_branch", "s_cbranch")):
            self.kind = "branch"
            self.target = raw[0]
            if "vcc" in op: self.src = regs_of("vcc")
        elif op in ("s_barrier", "s_endpgm", "s_sleep", "s_setprio"):
            self.kind = "misc"
        elif op.startswith(("s_cmp", "s_bitcmp")):
            self.kind = "salu"
            self.src = flat(rr)
        elif op.startswith("s_"):
            self.kind = "salu"
            self.dst, self.src = rr[0], flat(rr[1:])
            if op.startswith(("s_addk", "s_mulk", "s_cmov", "s_bitset")):
                self.src = self.src + rr[0]
            if "saveexec" in op:
                self.dst = self.dst + regs_of("exec")
        else:
            raise ValueError("unknown instruction: " + text)

    def store_data(self):
        if self.kind == "vmem" and re.search(r"store_dwordx[34]", self.op):
            k = 0 if self.op.startswith("buffer") else 1
            return regs_of(self.ops[k])
        return []


def need(p, c):
    n = 0
    pd = set(p.dst)
    if p.kind == "valu":
        pv = {r for r in pd if r[0] != "s"}
        ps = {r for r in pd if r[0] == "s"}
        if pv:
            if c.kind == "mfma" and pv & set(c.src): n = max(n, 2)
            if c.kind == "valu" and pv & set(c.src):
                if c.op.startswith("v_permlane") or "dpp" in c.op or "row_" in c.mods or "quad_perm" in c.mods: n = max(n, 2)
                if c.op.startswith(("v_readlane", "v_readfirstlane")): n = max(n, 1)
                if p.op.startswith(TRANS) and not c.op.startswith(TRANS): n = max(n, 1)
            if c.kind == "valu" and ("dst_sel" in p.mods or ("op_sel" in p.mods and not p.op.startswith("v_pk"))) and pv & set(c.src + c.dst): n = max(n, 1)
            if p.op.startswith(TRANS) and c.kind in ("vmem", "ds") and pv & set(c.src): n = max(n, 1)
        if ps and ps & set(c.src):
            if c.kind == "valu": n = max(n, 4 if c.op.startswith(("v_readlane", "v_writelane")) else 2)
            if c.kind == "vmem": n = max(n, 5)
            if c.kind in ("salu", "branch"): n = max(n, 1)
    elif p.kind == "mfma":
        big = p.passes == 8
        if c.kind == "mfma":
            if pd & set(c.mA): n = max(n, 12 if big else 8)
            same = c.mC == p.dst and c.passes == p.passes
            if pd & set(c.mC) and not same: n = max(n, 10 if big else 6)
            if pd & set(c.dst) and not (c.dst == p.dst and c.passes == p.passes): n = max(n, 10 if big else 6)
        elif c.kind in ("valu", "vmem", "ds"):
            if pd & set(c.src + c.dst): n = max(n, 12 if big else 8)
            if c.kind == "valu" and set(p.mC) & set(c.dst): n = max(n, 7 if big else 3)
    elif p.kind == "salu":
        if ("s", 124) in pd and c.kind == "vmem" and ("s", 124) in c.src: n = max(n, 1)
    elif p.kind == "vmem":
        sd = set(p.store_data())
        if sd and sd & set(c.dst): n = max(n, 2)
    return n


class Prog:
    def __init__(self, name=""):
        self.ins = []
        self.name = name
        self.nops = []

    def __call__(self, text, tag=None, take=None):
        for line in text.split("\n"):
            line = line.strip()
            if line:
                self.ins.append(I(line, tag, take))
        return self

    def add(self, items):
        for it in items:
            if isinstance(it, I): self.ins.append(it)
            elif isinstance(it, tuple): self(it[0], tag=it[1])
            else: self(it)
        return self

    def traces(self, wrap=2):
        lab = {x.label: i for i, x in enumerate(self.ins) if x.kind == "label"}
        opt = [i for i, x in enumerate(self.ins) if x.kind == "branch" and x.take == "both"]
        out = []
        for forced in [None] + opt:
            seq, cnt, i = [], {}, 0
            while i < len(self.ins):
                x = self.ins[i]
                seq.append(i)
                if x.op == "s_endpgm": break
                if x.kind == "branch" and x.target in lab:
                    t = lab[x.target]
                    k = cnt.get(i, 0); cnt[i] = k + 1
                    if isinstance(x.take, (list, tuple)):
                        go = x.take[min(k, len(x.take) - 1)]
                    elif x.op == "s_branch": go = True
                    elif i == forced: go = True
                    elif t < i and x.take is None: go = k < wrap
                    else: go = x.take is True
                    if go:
                        i = t
                        continue
                i += 1
                assert len(seq) < 2000000, "trace does not end"
            out.append(seq)
        return out

    def _waits(self):
        req = {}
        changed = True
        while changed:
            changed = False
            for seq in self.traces():
                vm, lg = [], []
                for i in seq:
                    x = self.ins[i]
                    if x.kind == "wait":
                        m = re.search(r"vmcnt\((\d+)\)", x.text)
                        if m: vm = vm[max(0, len(vm) - int(m.group(1))):] if int(m.group(1)) else []
                        m = re.search(r"lgkmcnt\((\d+)\)", x.text)
                        if m:
                            n = int(m.group(1))
                            assert n == 0 or not any(e[1] == "smem" for e in lg), x.text
                            lg = lg[max(0, len(lg) - n):] if n else []
                        continue
                    nv = nl = None
                    touched = set(x.src) | set(x.dst)
                    if x.kind == "waitvm":
                        tags = x.ops
                        ks = [k for k, e in enumerate(vm) if e[1] in tags]
                        nv = len(vm) - 1 - max(ks) if ks else None
                    elif touched:
                        tv = set(x.src) if x.kind == "vmem" else touched
                        ks = [k for k, e in enumerate(vm) if e[0] & tv]
                        if ks: nv = len(vm) - 1 - max(ks)
                        tl = set(x.src) if x.kind == "ds" else touched
                        ks = [k for k, e in enumerate(lg) if e[0] & tl]
                        if ks:
                            nl = 0 if any(e[1] == "smem" for e in lg) else len(lg) - 1 - max(ks)
                    cur = req.get(i, [None, None])
                    new = list(cur)
                    if nv is not None: new[0] = min(63, nv) if cur[0] is None else min(cur[0], nv)
                    if nl is not None: new[1] = min(15, nl) if cur[1] is None else min(cur[1], nl)
                    if new != cur:
                        req[i] = new
                        changed = True
                    if new[0] is not None: vm = vm[len(vm) - new[0]:] if 0 < new[0] < len(vm) else ([] if new[0] == 0 else vm)
                    if new[1] is not None: lg = lg[len(lg) - new[1]:] if 0 < new[1] < len(lg) else ([] if new[1] == 0 else lg)
                    if x.kind == "vmem": vm.append((set(x.dst), x.tag))
                    elif x.kind == "ds": lg.append((set(x.dst), "ds"))
                    elif x.kind == "smem": lg.append((set(x.dst), "smem"))
        return req

    def finalize(self, verbose=False):
        req = self._waits()
        out = []
        for i, x in enumerate(self.ins):
            r = req.get(i)
            if r and (r[0] is not None or r[1] is not None):
                w = "s_waitcnt" + (f" vmcnt({r[0]})" if r[0] is not None else "") + (f" lgkmcnt({r[1]})" if r[1] is not None else "")
                out.append(I(w))
            if x.kind != "waitvm":
                out.append(x)
        self.ins = out
        while True:
            pad = {}
            for seq in self.traces():
                hist = []
                for i in seq:
                    x = self.ins[i]
                    if x.slots == 0: continue
                    extra = pad.get(i, 0)
                    dist = 0
                    for (p, sl) in reversed(hist):
                        n = need(p, x)
                        if n > dist + extra:
                            extra = n - dist
                        dist += sl
                        if dist >= 21: break
                    if extra:
                        pad[i] = extra
                        hist.append((I("s_nop 0"), extra))
                    hist.append((x, x.slots))
                    if len(hist) > 40: hist = hist[-24:]
            if not pad: break
            out = []
            for i, x in enumerate(self.ins):
                if i in pad:
                    self.nops.append((pad[i], x.text))
                    n = pad[i]
                    while n > 0:
                        k = min(n, 16)
                        out.append(I(f"s_nop {k-1}"))
                        n -= k
                out.append(x)
            self.ins = out
        if verbose:
            print(f"[{self.name}] {sum(1 for x in self.ins if x.slots)} instrs, pads: {sum(n for n, _ in self.nops)} states at {len(self.nops)} sites")
        return self

    def text(self):
        return "\n".join(("" if x.kind in ("label", "dir") else "    ") + x.text for x in self.ins) + "\n"


def cost(t):
    t = t[0] if isinstance(t, tuple) else t
    return 8 if t.startswith(TRANS) else 4


def weave(main, streams, budget):
    slots = [[] for _ in main]
    for items, st, en in streams:
        n = len(items)
        if not n: continue
        tot = sum(cost(x) for x in items)
        acc = 0
        for it in items:
            pos = st + int((en - st) * acc / tot)
            slots[min(pos, en - 1)].append(it)
            acc += cost(it)
    out = []
    for m, f in zip(main, slots):
        out += m if isinstance(m, list) else [m]
        out += f
    return out
```

```python
S, D, H, DH, F = 2048, 576, 32, 18, 4608
KS = 18
XT = KS * 1024
XSZ = 128 * XT
CH13 = 9 * 36 * 1024
REC = 7424
KVB = 4864
HT = 144 * 1024

def _alloc():
    off = 0
    m = {}
    def al(name, size):
        nonlocal off
        m[name] = off
        off = (off + size + 0xFFFF) & ~0xFFFF
    al("FLAG", 1 << 20)
    al("WQKV", 32 * 72 * 1024)
    al("WO", 8 * 90 * 1024 + 8192)
    al("W13", 32 * CH13)
    al("W2", 16 * 36 * 9216)
    al("XP", XSZ)
    al("XN", XSZ)
    al("QKV", 32 * 32 * REC)
    al("OP", 128 * 16384)
    al("OL", 32 * 8192)
    al("X2", XSZ)
    al("ST", 8 * 2048 * 8)
    al("HP", 128 * HT)
    al("PART", 4 * XSZ)
    m["END"] = off
    return m
WS = _alloc()
if __name__ == "__main__":
    for k, o in WS.items(): print(k, hex(o))
```

```python
import math, struct, sys
from asmb import Prog, v, a, s, R, weave, I
from layout import *

NAME = "interleave_layers__mha_block__glu_gated_swiglu__prompt"
LOG2E = 1.4426950408889634
def fl(x): return hex(struct.unpack("<I", struct.pack("<f", x))[0])
M16 = "v_mfma_f32_16x16x32_bf16"
M32 = "v_mfma_f32_32x32x16_bf16"
M32K8 = "v_mfma_f32_32x32x8_bf16"
WSD = s(4, 4)
ARG = dict(x=0, wqkv=8, wo=16, w1=32, w3=40, w2=48, out=56, dbg=64, ws=72)

def srd(p, reg, arg, size):
    p(f"s_load_dwordx2 {s(reg,2)}, s[0:1], {ARG[arg]}")
    p(f"s_mov_b32 {s(reg+2)}, {hex(size)}")
    p(f"s_mov_b32 {s(reg+3)}, 0x00020000")

def entry(p, name, nwg):
    p(f".globl {name}_kernel\n.p2align 8\n.type {name}_kernel,@function\n{name}_kernel:")
    p(f"s_cmp_ge_u32 s2, {nwg}")
    p(f"s_cbranch_scc1 {name}_end")
    srd(p, 4, "ws", WS["END"])
    p("v_lshrrev_b32 v1, 6, v0")
    p("v_and_b32 v0, 63, v0")
    p("v_readfirstlane_b32 s3, v1")

def leave(p, name):
    p(f"{name}_end:\ns_endpgm")

def unpack(dst, src):
    return [f"v_lshlrev_b32 {v(dst)}, 16, {v(src)}", f"v_and_b32 {v(dst+1)}, 0xffff0000, {v(src)}"]

def xsum(p, regs, tmp, bits):
    for b in bits:
        if b == 3:
            for r in regs: p(f"v_add_f32_dpp {v(r)}, {v(r)}, {v(r)} row_ror:8 row_mask:0xf bank_mask:0xf")
        else:
            op = "v_permlane16_swap_b32" if b == 4 else "v_permlane32_swap_b32"
            for k, r in enumerate(regs): p(f"v_mov_b32 {v(tmp+k)}, {v(r)}")
            for k, r in enumerate(regs): p(f"{op} {v(r)}, {v(tmp+k)}")
            for k, r in enumerate(regs): p(f"v_add_f32 {v(r)}, {v(r)}, {v(tmp+k)}")

def lnp(p, mode, lab):
    if mode == "in": srd(p, 8, "x", S * D * 2)
    if mode == "out": srd(p, 8, "out", S * D * 2)
    p(f"s_cmp_eq_u32 s3, 3")
    p(f"s_cbranch_scc1 {lab}_skip")
    p("v_and_b32 v2, 7, v0")
    p("v_lshrrev_b32 v3, 3, v0")
    p("s_lshl_b32 s16, s3, 3")
    p("v_add_u32 v3, s16, v3")
    p("v_mul_u32_u24 v4, 768, v3")
    p("v_lshl_add_u32 v4, v2, 4, v4")
    p("v_mul_u32_u24 v5, 48, v3")
    p("v_mul_u32_u24 v6, 1152, v2")
    p("v_add_u32 v5, v5, v6")
    p("s_lshr_b32 s16, s2, 1")
    p(f"s_mul_i32 s16, s16, {XT}")
    p("s_and_b32 s17, s2, 1")
    p("s_lshl_b32 s17, s17, 7")
    p("s_add_u32 s16, s16, s17")
    p("s_mul_i32 s17, s2, 9216")
    X = 16; T = 40; L = 64
    if mode == "in":
        for i in range(3): p(f"buffer_load_dwordx4 {v(L+4*i,4)}, v5, s[8:11], s17 offen offset:{16*i}")
        nsrc = 1
    else:
        for k in range(5):
            base = WS["X2"] if k == 0 else WS["PART"] + (k - 1) * XSZ
            p(f"s_add_u32 s18, s16, {hex(base)}")
            for i in range(3): p(f"buffer_load_dwordx4 {v(L+12*k+4*i,4)}, v4, {WSD}, s18 offen offset:{256*i}")
        nsrc = 5
    for k in range(nsrc):
        for u in range(12):
            if k == 0:
                p.add(unpack(X + 2 * u, L + u))
            else:
                t = T + 2 * (u % 4)
                p.add(unpack(t, L + 12 * k + u))
                p(f"v_add_f32 {v(X+2*u)}, {v(X+2*u)}, {v(t)}")
                p(f"v_add_f32 {v(X+2*u+1)}, {v(X+2*u+1)}, {v(t+1)}")
    if mode != "in":
        for u in range(12): p(f"v_cvt_pk_bf16_f32 {v(L+u)}, {v(X+2*u)}, {v(X+2*u+1)}")
    if mode == "out":
        for i in range(3): p(f"buffer_store_dwordx4 {v(L+4*i,4)}, v5, s[8:11], s17 offen offset:{16*i}")
        p(f"{lab}_skip:")
        return
    p(f"s_add_u32 s18, s16, {hex(WS['XP'])}")
    for i in range(3): p(f"buffer_store_dwordx4 {v(L+4*i,4)}, v4, {WSD}, s18 offen offset:{256*i}")
    p(f"v_add_f32 v8, {v(X)}, {v(X+1)}")
    p(f"v_mul_f32 v9, {v(X)}, {v(X)}")
    p(f"v_fmac_f32 v9, {v(X+1)}, {v(X+1)}")
    for u in range(2, 24):
        p(f"v_add_f32 v8, v8, {v(X+u)}")
        p(f"v_fmac_f32 v9, {v(X+u)}, {v(X+u)}")
    xsum(p, [8, 9], 10, [3, 4, 5])
    p("v_lshlrev_b32 v6, 5, v2")
    p("s_lshl_b32 s18, s3, 3")
    p("v_add_u32 v7, s18, v6")
    p("ds_write_b64 v7, v[8:9]")
    p("s_waitcnt lgkmcnt(0)")
    p("s_barrier")
    p("ds_read_b128 v[8:11], v6")
    p("ds_read_b64 v[12:13], v6 offset:16")
    p("v_add_f32 v8, v8, v10")
    p("v_add_f32 v9, v9, v11")
    p("v_add_f32 v8, v8, v12")
    p("v_add_f32 v9, v9, v13")
    p(f"v_mul_f32 v8, {fl(1/D)}, v8")
    p(f"v_mul_f32 v9, {fl(1/D)}, v9")
    p("v_fma_f32 v9, -v8, v8, v9")
    p("v_max_f32 v9, 0, v9")
    p(f"v_add_f32 v9, {fl(1e-5)}, v9")
    p("v_rsq_f32 v9, v9")
    p("v_mul_f32 v8, v8, v9")
    for u in range(24): p(f"v_fma_f32 {v(X+u)}, {v(X+u)}, v9, -v8")
    for u in range(12): p(f"v_cvt_pk_bf16_f32 {v(T+u)}, {v(X+2*u)}, {v(X+2*u+1)}")
    p(f"s_add_u32 s18, s16, {hex(WS['XN'])}")
    for i in range(3): p(f"buffer_store_dwordx4 {v(T+4*i,4)}, v4, {WSD}, s18 offen offset:{256*i}")
    p(f"s_branch {lab}_done")
    p(f"{lab}_skip:")
    p("s_barrier")
    p(f"{lab}_done:")

def selmat(p, dst, src):
    p(f"v_sub_u32 v12, {v(src)}, v3")
    p("v_and_b32 v13, 1, v12")
    p("v_lshlrev_b32 v13, 4, v13")
    p("v_lshlrev_b32 v13, v13, v11")
    p("v_lshrrev_b32 v12, 1, v12")
    for u in range(4):
        p(f"v_cmp_eq_u32 vcc, {u}, v12")
        p(f"v_cndmask_b32 {v(dst+u)}, 0, v13, vcc")

def prep_common(p):
    p("v_and_b32 v2, 15, v0")
    p("v_lshrrev_b32 v4, 4, v0")
    p("v_lshlrev_b32 v3, 3, v4")
    p("v_mov_b32 v11, 0x3f80")
    p("v_and_b32 v5, 12, v2")
    p("v_and_b32 v6, 3, v2")
    p("v_lshl_add_u32 v5, v5, 1, v6")
    p("v_lshlrev_b32 v1, 4, v0")

def pair_sels(p, S0):
    selmat(p, S0, 5)
    p("v_add_u32 v7, 4, v5")
    selmat(p, S0 + 4, 7)

def tr_block(p, A0, A1, sel, C, D, out):
    p(f"{M16} {v(D,4)}, {v(A0,4)}, {v(sel,4)}, {C}")
    p(f"{M16} {v(D+4,4)}, {v(A1,4)}, {v(sel,4)}, {C}")
    return [f"v_cvt_pk_bf16_f32 {v(out+u)}, {v(D+2*u)}, {v(D+2*u+1)}" for u in range(4)]

def prep13(p):
    srd(p, 8, "w1", D * F * 2)
    srd(p, 12, "w3", D * F * 2)
    prep_common(p)
    pair_sels(p, 16)
    p("s_and_b32 s21, s20, 1")
    p("s_lshr_b32 s22, s20, 1")
    p("s_waitcnt lgkmcnt(0)")
    p("s_cmp_eq_u32 s21, 1")
    p("s_cselect_b32 s8, s12, s8")
    p("s_cselect_b32 s9, s13, s9")
    p("s_mov_b32 s23, 9216")
    p("v_mul_lo_u32 v7, v5, s23")
    p("v_lshl_add_u32 v7, v4, 4, v7")
    p("s_lshl_b32 s23, s22, 6")
    L = 96
    for k in range(36):
        p(f"buffer_load_dwordx4 {v(L+4*k,4)}, v7, s[8:11], s23 offen")
        p(f"s_add_u32 s23, s23, {9216*(4 if k % 2 == 0 else 28)}")
    p(f"s_mul_i32 s24, s22, 7282")
    p("s_lshr_b32 s24, s24, 16")
    p("s_mul_i32 s25, s24, 9")
    p("s_sub_u32 s25, s22, s25")
    p(f"s_mul_i32 s26, s24, {2*CH13}")
    p("s_lshl_b32 s27, s21, 10")
    p("s_add_u32 s26, s26, s27")
    p(f"s_add_u32 s26, s26, {hex(WS['W13'])}")
    p("s_mul_i32 s27, s25, 73728")
    p("s_add_u32 s26, s26, s27")
    p("s_cmp_gt_u32 s25, 4")
    p(f"s_cselect_b32 s27, {5*73728-CH13}, 0")
    p("s_sub_u32 s26, s26, s27")
    p("s_cmp_eq_u32 s25, 4")
    p("s_mov_b32 s27, 2048")
    p("s_mov_b32 s28, 4096")
    p(f"s_cmov_b32 s27, {CH13}")
    p("s_cmov_b32 s28, 2048")
    p("s_add_u32 s27, s26, s27")
    for k in range(36):
        for b in range(2):
            p(f"{M16} {v(24+4*b,4)}, {v(L+4*k,4)}, {v(16+4*b,4)}, {'0' if k == 0 else v(24+4*b,4)}")
    for b in range(2):
        p(f"v_add_f32 {v(24+4*b)}, {v(24+4*b)}, {v(25+4*b)}")
        p(f"v_add_f32 {v(26+4*b)}, {v(26+4*b)}, {v(27+4*b)}")
        p(f"v_add_f32 {v(24+4*b)}, {v(24+4*b)}, {v(26+4*b)}")
    xsum(p, [24, 28], 8, [4, 5])
    for b in range(2):
        for u in (3, 2, 1, 0): p(f"v_mul_f32 {v(24+4*b+u)}, {fl(-1/D)}, {v(24+4*b)}")
    pend = []
    for ks in range(KS):
        for b in range(2):
            n = 2 * ks + b
            Dr, o = 32 + 8 * (n % 4), 64 + 4 * (n % 4)
            cv = tr_block(p, L + 8 * ks, L + 8 * ks + 4, 16 + 4 * b, v(24 + 4 * b, 4), Dr, o)
            cv += [f"buffer_store_dwordx4 {v(o,4)}, v1, {WSD}, {s(26+b)} offen", f"s_add_u32 {s(26+b)}, {s(26+b)}, s28"]
            pend.append(cv)
            if len(pend) > 2: p.add(pend.pop(0))
    for c in pend: p.add(c)

def prep_rows9(p, place):
    L = 96
    for rem in range(9):
        p(f"buffer_load_dwordx4 {v(L+8*rem,4)}, v7, s[8:11], s23 offen offset:{64*rem}")
        p(f"buffer_load_dwordx4 {v(L+8*rem+4,4)}, v8, s[8:11], s23 offen offset:{64*rem}")
    pend = []
    for rem in range(9):
        for b in range(2):
            n = 2 * rem + b
            Dr, o = 32 + 8 * (n % 4), 64 + 4 * (n % 4)
            cv = tr_block(p, L + 8 * rem, L + 8 * rem + 4, 16 + 4 * b, "0", Dr, o)
            cv += [f"s_add_u32 s27, s26, {place(rem, b)}", f"buffer_store_dwordx4 {v(o,4)}, v1, {WSD}, s27 offen"]
            pend.append(cv)
            if len(pend) > 2: p.add(pend.pop(0))
    for c in pend: p.add(c)

def prep2(p):
    srd(p, 8, "w2", D * F * 2)
    prep_common(p)
    pair_sels(p, 16)
    p("s_and_b32 s21, s20, 1")
    p("s_lshr_b32 s22, s20, 1")
    p("v_mul_u32_u24 v7, 1152, v5")
    p("v_lshl_add_u32 v7, v4, 4, v7")
    p("v_add_u32 v8, 4608, v7")
    p(f"s_mul_i32 s23, s22, {32*1152}")
    p("s_mul_i32 s24, s21, 576")
    p("s_add_u32 s23, s23, s24")
    p("s_mul_i32 s24, s22, 1821")
    p("s_lshr_b32 s24, s24, 16")
    p("s_mul_i32 s25, s24, 108")
    p("s_add_u32 s25, s25, s22")
    p("s_mul_i32 s24, s21, 72")
    p("s_add_u32 s25, s25, s24")
    p("s_mul_i32 s26, s25, 9216")
    p(f"s_add_u32 s26, s26, {hex(WS['W2'])}")
    def place(rem, b):
        dcs, t = (0, 2 * rem + b) if rem < 4 else ((b, 8) if rem == 4 else (1, 2 * (rem - 5) + b))
        return dcs * 36 * 9216 + t * 1024
    prep_rows9(p, place)

def prepo(p):
    srd(p, 8, "wo", D * D * 2)
    prep_common(p)
    pair_sels(p, 16)
    p("s_and_b32 s21, s20, 1")
    p("s_lshr_b32 s22, s20, 1")
    p("v_lshrrev_b32 v7, 3, v2")
    p("v_mul_u32_u24 v7, 18, v7")
    p("v_and_b32 v8, 7, v2")
    p("v_add_u32 v7, v7, v8")
    p("v_lshrrev_b32 v8, 1, v2")
    p("v_and_b32 v9, 1, v8")
    p("v_lshrrev_b32 v8, 1, v8")
    p("v_lshl_add_u32 v8, v8, 2, v9")
    p("v_mul_u32_u24 v8, 18, v8")
    p("v_and_b32 v9, 1, v2")
    p("v_add3_u32 v8, v8, v9, 16")
    p("s_cmp_lt_u32 s22, 16")
    p("s_cselect_b64 vcc, -1, 0")
    p(f"s_mov_b32 s24, {36*1152}")
    p(f"s_cmov_b32 s24, {8*1152}")
    p("v_cndmask_b32 v7, v8, v7, vcc")
    p("v_mul_u32_u24 v7, 1152, v7")
    p("v_lshl_add_u32 v7, v4, 4, v7")
    p("v_add_u32 v8, s24, v7")
    p(f"s_mul_i32 s23, s22, {36*1152}")
    p("s_sub_u32 s25, s22, 16")
    p(f"s_mul_i32 s25, s25, {288*1152}")
    p("s_cmp_lt_u32 s22, 16")
    p("s_cselect_b32 s23, s23, s25")
    p("s_mul_i32 s24, s21, 576")
    p("s_add_u32 s23, s23, s24")
    p(f"s_mul_i32 s26, s21, {4*92160}")
    p("s_mul_i32 s24, s22, 5120")
    p("s_add_u32 s26, s26, s24")
    p(f"s_add_u32 s26, s26, {hex(WS['WO'])}")
    def place(rem, b):
        if rem == 4: dcs, t = 1 + b, 4
        else:
            dcs = (0, 0, 1, 1, None, 2, 2, 3, 3)[rem]
            t = 2 * (rem - (0, 2, 5, 7)[dcs]) + b
        return dcs * 92160 + t * 1024
    prep_rows9(p, place)

def prepq(p):
    srd(p, 8, "wqkv", D * 3 * D * 2)
    prep_common(p)
    SQ, SK, SV, LQ, LK, LV = 16, 24, 32, 36, 40, 44
    p("v_mov_b32 v10, 99")
    for b in range(2):
        p(f"v_add_u32 v7, {4*b}, v5")
        p("v_cmp_gt_u32 vcc, 8, v2")
        p("v_cndmask_b32 v8, v10, v7, vcc")
        p("v_subrev_u32 v7, 16, v7")
        p("v_cndmask_b32 v9, v7, v10, vcc")
        selmat(p, SQ + 4 * b, 8)
        selmat(p, SK + 4 * b, 9)
    selmat(p, SV, 2)
    for dst, c0 in ((LK, 0), (LQ, 8), (LV, 1)):
        p(f"v_cmp_eq_u32 vcc, {c0}, v2")
        p("v_cndmask_b32 v7, v10, 16, vcc")
        p(f"v_cmp_eq_u32 vcc, {c0+4}, v2")
        p("v_cndmask_b32 v7, v7, 17, vcc")
        selmat(p, dst, 7)
    p("s_and_b32 s21, s20, 31")
    p("s_lshr_b32 s22, s20, 5")
    p("v_mul_u32_u24 v7, 3456, v5")
    p("v_lshl_add_u32 v7, v4, 4, v7")
    p(f"s_mul_i32 s23, s22, {96*3456}")
    p("s_mul_i32 s24, s21, 36")
    p("s_add_u32 s23, s23, s24")
    p("s_mul_i32 s26, s21, 73728")
    p("s_mul_i32 s24, s22, 12288")
    p("s_add_u32 s26, s26, s24")
    p(f"s_add_u32 s26, s26, {hex(WS['WQKV'])}")
    L = 128
    for k in range(6):
        for m in range(3): p(f"buffer_load_dwordx4 {v(L+12*k+4*m,4)}, v7, s[8:11], s23 offen offset:{1152*m}")
        p(f"s_add_u32 s23, s23, {3456*(4 if k % 2 == 0 else 28)}")
    for ks in range(3):
        for blk in range(2):
            A = L + 12 * (2 * ks + blk)
            terms = [[(0, SQ), (1, SK)], [(0, SQ + 4), (1, SK + 4)], [(2, SV)], [(0, LQ), (1, LK), (2, LV)]]
            for t, tl in enumerate(terms):
                Dr = 48 + 8 * t + 4 * blk
                for n, (m, sel) in enumerate(tl):
                    p(f"{M16} {v(Dr,4)}, {v(A+4*m,4)}, {v(sel,4)}, {'0' if n == 0 else v(Dr,4)}")
        for t in range(4):
            o = 80 + 16 * (ks % 2) + 4 * t
            for u in range(4): p(f"v_cvt_pk_bf16_f32 {v(o+u)}, {v(48+8*t+2*u)}, {v(48+8*t+2*u+1)}")
            p(f"buffer_store_dwordx4 {v(o,4)}, v1, {WSD}, s26 offen offset:{1024*t}")
        p("s_add_u32 s26, s26, 4096")

def k_prep():
    p = Prog("prep")
    entry(p, "prep", 256 + 201)
    p("s_cmp_lt_u32 s2, 256")
    p("s_cbranch_scc0 prep_w", take="both")
    lnp(p, "in", "prep_ln")
    p("s_endpgm")
    p("prep_w:")
    p("s_sub_u32 s20, s2, 256")
    p("s_lshl_b32 s20, s20, 2")
    p("s_add_u32 s20, s20, s3")
    progs = [p]
    secs = [("q", 192, prepq), ("a", 288, prep13), ("b", 288, prep2), ("o", 36, prepo)]
    for nm, n, fn in secs[:-1]:
        p(f"s_cmp_lt_u32 s20, {n}")
        p(f"s_cbranch_scc1 prep_{nm}")
        p(f"s_sub_u32 s20, s20, {n}")
    p("s_branch prep_o")
    leave(p, "prep")
    for nm, n, fn in secs:
        q = Prog("prep_" + nm)
        q(f"prep_{nm}:")
        q("s_waitcnt lgkmcnt(0)")
        fn(q)
        q("s_endpgm")
        progs.append(q)
    return progs

def xreg(n):
    return 256 + 4 * n if n < 64 else 224 + 4 * (n - 64)

def k_qkv():
    p = Prog("qkv")
    entry(p, "qkv", 256)
    p("s_and_b32 s16, s2, 7")
    p("s_lshr_b32 s17, s2, 3")
    p("v_lshlrev_b32 v1, 4, v0")
    p("s_mul_i32 s18, s17, 73728")
    p("s_lshl_b32 s19, s3, 10")
    p("s_add_u32 s18, s18, s19")
    p(f"s_add_u32 s18, s18, {hex(WS['WQKV'])}")
    p("s_lshl_b32 s20, s16, 2")
    p("s_add_u32 s20, s20, s3")
    p(f"s_mul_i32 s21, s20, {4*XT}")
    p(f"s_add_u32 s24, s21, {hex(WS['XN'])}")
    for t in range(1, 4): p(f"s_add_u32 {s(24+t)}, {s(23+t)}, {XT}")
    for ks in range(KS):
        p(f"s_add_u32 m0, s19, {4096*ks}")
        p(f"buffer_load_dwordx4 v1, {WSD}, s18 offen lds", tag="w")
        p("s_add_u32 s18, s18, 4096")
    def xl(ks):
        L = [f"buffer_load_dwordx4 {R(xreg(4*ks+t),4)}, v1, {WSD}, {s(24+t)} offen offset:{1024*(ks%4)}" for t in range(4)]
        if ks % 4 == 3: L += [f"s_add_u32 {s(24+t)}, {s(24+t)}, 4096" for t in range(4)]
        return L
    LA = 5
    for ks in range(LA): p.add(xl(ks))
    KB = 73728
    p("v_and_b32 v2, 15, v0")
    p("v_lshrrev_b32 v3, 4, v0")
    p(f"s_mul_i32 s22, s3, {REC}")
    p(f"s_add_u32 s22, s22, {KB}")
    p("v_lshrrev_b32 v4, 3, v2")
    p("v_and_b32 v5, 7, v2")
    p("v_lshl_add_u32 v4, v4, 4, v5")
    p("v_and_b32 v5, 1, v3")
    p("v_lshl_add_u32 v4, v5, 5, v4")
    p("v_cmp_gt_u32 vcc, 2, v3")
    p(f"v_mov_b32 v5, {KVB}")
    p("v_cndmask_b32 v6, 0, v5, vcc")
    p("v_cndmask_b32 v7, v5, 0, vcc")
    p("v_lshl_add_u32 v6, v4, 4, v6")
    p("v_lshl_add_u32 v7, v4, 3, v7")
    p("s_add_u32 s23, s22, 512")
    p("v_add_u32 v6, s23, v6")
    p("v_add_u32 v7, s22, v7")
    p("s_add_u32 s23, s22, 2560")
    p("v_mul_u32_u24 v8, 288, v3")
    p("v_lshl_add_u32 v8, v2, 4, v8")
    p("v_add_u32 v8, s23, v8")
    p("v_lshrrev_b32 v9, 2, v2")
    p("v_mul_u32_u24 v9, 288, v9")
    p("v_lshl_add_u32 v9, v3, 4, v9")
    p("v_and_b32 v10, 3, v2")
    p("v_lshl_add_u32 v9, v10, 1, v9")
    p("s_add_u32 s23, s23, 256")
    p("v_add_u32 v9, s23, v9")
    p(f"v_mov_b32 v5, {fl(LOG2E / math.sqrt(DH))}")
    p("v_cndmask_b32 v10, 1.0, v5, vcc")
    p("v_cndmask_b32 v11, v5, 1.0, vcc")
    p("v_cndmask_b32 v12, 0, 1.0, vcc")
    p("v_add_u32 v13, s22, v1")
    p("v_add_u32 v14, 0x8000, v1")
    p("WAITVM w")
    p("s_barrier")
    W, ACC = 16, 48
    def wr(ks):
        b, o = (1, 4096 * ks) if ks < 12 else (14, 4096 * ks - 0x8000)
        return [f"ds_read_b128 {v(W+16*(ks%2)+4*t,4)}, {v(b)} offset:{o+1024*t}" for t in range(4)]
    p.add(wr(0))
    for ks in range(KS):
        mf = []
        for t in range(4):
            for tt in range(4):
                d = v(ACC + 16 * tt + 4 * t, 4)
                w, x = v(W + 16 * (ks % 2) + 4 * t, 4), R(xreg(4 * ks + tt), 4)
                A, B = (x, w) if t == 2 else (w, x)
                mf.append(f"{M16} {d}, {A}, {B}, {'0' if ks == 0 else d}")
        st = []
        if ks + 1 < KS: st.append((wr(ks + 1), 0, 8))
        if ks + LA < KS: st.append((xl(ks + LA), 4, 16))
        p.add(weave(mf, st, None))
    T = 112
    for tt in range(4):
        A0 = ACC + 16 * tt
        kt2, ab = tt >> 1, tt & 1
        for u in range(8): p(f"v_mul_f32 {v(A0+u)}, {v(A0+u)}, v10")
        p(f"v_mul_f32 {v(A0+12)}, {v(A0+12)}, v11")
        for u in range(4): p(f"v_cvt_pk_bf16_f32 {v(T+4*tt+u)}, {v(A0+2*u)}, {v(A0+2*u+1)}")
        p(f"ds_write_b128 v6, {v(T+4*tt,4)} offset:{kt2*1024+ab*128}")
        p(f"v_cvt_pk_bf16_f32 {v(A0+12)}, {v(A0+12)}, v12")
        p(f"ds_write_b32 v7, {v(A0+12)} offset:{ab*64+kt2*4}")
        p(f"v_cvt_pk_bf16_f32 {v(A0+13)}, {v(A0+13)}, {v(A0+13)}")
        for u in range(2): p(f"v_cvt_pk_bf16_f32 {v(T+16+4*kt2+2*ab+u)}, {v(A0+8+2*u)}, {v(A0+9+2*u)}")
        if ab: p(f"ds_write_b128 v8, {v(T+16+4*kt2,4)} offset:{kt2*1152}")
    p("s_mov_b64 exec, 0xffffffff")
    for tt in range(4): p(f"ds_write_b16 v9, {v(ACC+16*tt+13)} offset:{(tt>>1)*1152+(tt&1)*8}")
    p("s_mov_b64 exec, -1")
    p("s_lshl_b32 s23, s17, 5")
    p("s_add_u32 s23, s23, s20")
    p(f"s_mul_i32 s23, s23, {REC}")
    p(f"s_add_u32 s23, s23, {hex(WS['QKV'])}")
    p("s_add_u32 s28, s23, 4096")
    p("s_waitcnt lgkmcnt(0)")
    for k in range(8): p(f"ds_read_b128 {v(144+4*k,4)}, v13 offset:{1024*k}")
    for k in range(8):
        if k == 7: p("s_mov_b64 exec, 0xffff")
        p(f"buffer_store_dwordx4 {v(144+4*k,4)}, v1, {WSD}, {s(23 if k < 4 else 28)} offen offset:{1024*(k%4)}")
    leave(p, "qkv")
    return [p]

def k_att():
    p = Prog("att")
    entry(p, "att", 256)
    O, SS, P, Q1, Q2 = 16, 80, 112, 128, 144
    KV = lambda b: 256 + 28 * b
    p("s_and_b32 s16, s2, 7")
    p("s_lshr_b32 s17, s2, 3")
    p("v_lshlrev_b32 v1, 4, v0")
    p("v_lshlrev_b32 v2, 3, v0")
    p("v_and_b32 v4, 31, v0")
    p("v_lshrrev_b32 v5, 5, v0")
    p("v_cmp_eq_u32 vcc, 20, v4")
    p("v_cndmask_b32 v3, v4, 17, vcc")
    p("v_lshlrev_b32 v3, 4, v3")
    p("v_mul_u32_u24 v6, 288, v5")
    p("v_add_u32 v3, v3, v6")
    p("v_add_u32 v3, 2560, v3")
    p(f"s_mul_i32 s18, s17, {32*REC}")
    p(f"s_add_u32 s18, s18, {hex(WS['QKV'])}")
    p("s_lshl_b32 s19, s16, 2")
    p("s_add_u32 s20, s19, s3")
    p("s_xor_b32 s21, s20, 1")
    p(f"s_mul_i32 s22, s20, {REC}")
    p(f"s_mul_i32 s23, s21, {REC}")
    p(f"s_mul_i32 s24, s19, {REC}")
    p(f"s_add_u32 s25, s18, {KVB}")
    p("s_add_u32 s22, s22, s25")
    p("s_add_u32 s23, s23, s25")
    p("s_add_u32 s24, s24, s18")
    p("s_mov_b32 s30, 0x0011ffff")
    p("s_mov_b32 s31, 0x0011ffff")
    for u in range(2):
        p(f"buffer_load_dwordx2 {v(160+2*u,2)}, v2, {WSD}, {s(22+u)} offen")
        for k in range(2): p(f"buffer_load_dwordx4 {v(Q1+8*u+4*k,4)}, v1, {WSD}, {s(22+u)} offen offset:{512+1024*k}")
    p(f"buffer_load_dwordx2 v[164:165], v2, {WSD}, s24 offen")
    p(f"buffer_load_dwordx4 v[168:171], v1, {WSD}, s24 offen offset:512")
    p("v_and_b32 v6, 27, v4")
    p("v_cmp_eq_u32 vcc, 17, v6")
    p("v_mov_b32 v7, 0x3f803f80")
    p("v_cndmask_b32 v7, 0, v7, vcc")
    for b in range(4):
        for u in range(16): p(f"v_accvgpr_write_b32 {R(KV(b)+8+u)}, v7")
    p("s_and_b32 s26, s3, 1")
    p(f"s_mul_i32 s26, s26, {2*REC}")
    p("s_add_u32 s26, s26, s18")
    p("s_mov_b32 s27, s16")
    def unit_addr(par):
        if par == 0:
            return [f"s_mul_i32 s28, s27, {4*REC}", "s_add_u32 s28, s28, s26", "s_add_u32 s27, s27, 1", "s_and_b32 s27, s27, 7"]
        return [f"s_add_u32 s28, s28, {REC}"]
    def unit_loads(b):
        k = KV(b)
        L = [f"buffer_load_dwordx2 {R(k+24,2)}, v2, {WSD}, s28 offen"]
        L += [f"buffer_load_dwordx4 {R(k+4*j,4)}, v1, {WSD}, s28 offen offset:{512+1024*j}" for j in range(2)]
        V = ["s_mov_b64 exec, s[30:31]"]
        V += [f"buffer_load_dwordx4 {R(k+8+4*j,4)}, v3, {WSD}, s28 offen offset:{576*j}" for j in range(4)]
        V += ["s_mov_b64 exec, -1"]
        return L, V
    for b in range(3):
        L, V = unit_loads(b)
        p.add(unit_addr(b & 1) + L + V)
    for u in range(64): p(f"v_mov_b32 {v(O+u)}, 0")
    for i in range(4):
        p(f"v_mov_b32 {v(Q2+4*i)}, {v(160+i)}")
        p(f"v_mov_b32 {v(Q2+4*i+1)}, 0")
        p(f"v_mov_b32 {v(Q2+4*i+2)}, 0")
    T = 176
    for i in range(4):
        p(f"{M32} {v(T+16*i,16)}, v[168:171], {v(Q1+4*i,4)}, 0")
        p(f"{M32K8} {v(T+16*i,16)}, v[164:165], {v(Q2+4*i,2)}, {v(T+16*i,16)}")
    p("v_cmp_gt_u32 vcc, 32, v0")
    p("s_mov_b32 s29, 0x07060100")
    for i in range(4):
        t = T + 16 * i
        p(f"v_max3_f32 {v(t)}, {v(t)}, {v(t+1)}, {v(t+2)}")
        for u in range(3, 15, 2): p(f"v_max3_f32 {v(t)}, {v(t)}, {v(t+u)}, {v(t+u+1)}")
        p(f"v_max_f32 {v(t)}, {v(t)}, {v(t+15)}")
        p(f"v_cndmask_b32 {v(t)}, 0, -{v(t)}, vcc")
        p(f"v_perm_b32 {v(Q2+4*i)}, {v(t)}, {v(160+i)}, s29")
        p(f"v_perm_b32 {v(Q2+4*i+3)}, {v(t)}, {v(160+i)}, s29")
    def qk(n):
        b, kt2, i = (n >> 3) & 3, (n >> 2) & 1, n & 3
        d = v(SS + 16 * (n & 1), 16)
        return [f"{M32} {d}, {R(KV(b)+4*kt2,4)}, {v(Q1+4*i,4)}, 0",
                f"{M32K8} {d}, {R(KV(b)+24,2)}, {v(Q2+4*i+2*kt2,2)}, {d}"]
    def pv(n):
        b, kt2, i = (n >> 3) & 3, (n >> 2) & 1, n & 3
        d = v(O + 16 * i, 16)
        return [f"{M32} {d}, {R(KV(b)+8+8*kt2+4*t,4)}, {v(P+8*(n&1)+4*t,4)}, {d}" for t in range(2)]
    def slot(n, first=False, extra=()):
        sb, pb = SS + 16 * (n & 1), P + 8 * (n & 1)
        mf = qk(n + 1) + ([] if first else pv(n - 1))
        E = [f"v_exp_f32 {v(sb+u)}, {v(sb+u)}" for u in range(16)]
        C = [f"v_cvt_pk_bf16_f32 {v(pb+u)}, {v(sb+2*u)}, {v(sb+2*u+1)}" for u in range(8)]
        out = []
        for g in range(4):
            if g < len(mf): out.append(mf[g])
            out += E[4 * g:4 * g + 3]
            if g: out.append(C[2 * g - 1])
            out += [E[4 * g + 3], C[2 * g]]
            if g == 1: out += list(extra)
        out.append(C[7])
        return out
    p.add(qk(0))
    p("s_mov_b32 s33, 4")
    p.add(slot(0, first=True))
    p("s_branch att_l1")
    p(".p2align 6")
    p("att_l0:")
    p.add(slot(32))
    p("att_l1:")
    for n in range(1, 32):
        ex = []
        b = ((n >> 3) + 3) & 3
        L, V = unit_loads(b)
        if n & 7 == 1: ex = unit_addr(b & 1) + L
        if n & 7 == 2: ex = V
        if n == 31: ex = ["s_sub_u32 s33, s33, 1", "s_cmp_lg_u32 s33, 0"]
        p.add(slot(n, extra=ex))
    p("s_cbranch_scc1 att_l0")
    p.add(pv(127))
    p("att_red:")
    p("s_mul_i32 s28, s3, 5120")
    p("s_xor_b32 s29, s3, 1")
    p("s_mul_i32 s29, s29, 5120")
    p("v_add_u32 v6, s28, v1")
    p("v_add_u32 v7, s28, v2")
    p("v_add_u32 v8, s29, v1")
    p("v_add_u32 v9, s29, v2")
    for k in range(2):
        o = O + 32 + 16 * k
        p(f"ds_write_b128 v6, {v(o,4)} offset:{2560*k}")
        p(f"ds_write_b128 v6, {v(o+4,4)} offset:{2560*k+1024}")
        p(f"ds_write_b64 v7, {v(o+8,2)} offset:{2560*k+2048}")
    p("v_and_b32 v10, 7, v4")
    p("v_lshrrev_b32 v11, 4, v4")
    p("v_lshl_add_u32 v10, v11, 3, v10")
    p("v_bfe_u32 v11, v4, 3, 1")
    p("v_lshlrev_b32 v12, 4, v10")
    p("v_lshl_add_u32 v12, v5, 8, v12")
    p("v_lshl_add_u32 v12, v11, 14, v12")
    p("v_lshl_add_u32 v13, v11, 4, v10")
    p("v_lshl_add_u32 v13, v5, 5, v13")
    p("v_lshlrev_b32 v13, 2, v13")
    p("s_lshl_b32 s34, s20, 16")
    p("s_lshl_b32 s35, s17, 9")
    p("s_add_u32 s34, s34, s35")
    p(f"s_add_u32 s34, s34, {hex(WS['OP'])}")
    p("s_add_u32 s35, s34, 0x8000")
    p("s_lshl_b32 s36, s17, 13")
    p("s_lshl_b32 s37, s20, 8")
    p("s_add_u32 s36, s36, s37")
    p(f"s_add_u32 s36, s36, {hex(WS['OL'])}")
    p("s_waitcnt lgkmcnt(0)")
    p("s_barrier")
    for k in range(2):
        t = T + 16 * k
        p(f"ds_read_b64 {v(t+8,2)}, v9 offset:{2560*k+2048}")
        p(f"ds_read_b128 {v(t,4)}, v8 offset:{2560*k}")
        p(f"ds_read_b128 {v(t+4,4)}, v8 offset:{2560*k+1024}")
    for k in range(2):
        o, t = O + 16 * k, T + 16 * k
        p(f"v_add_f32 {v(o+9)}, {v(o+9)}, {v(t+9)}")
        p(f"v_rcp_f32 {v(o+10)}, {v(o+9)}")
        for u in (8, 0, 1, 2, 3, 4, 5, 6, 7): p(f"v_add_f32 {v(o+u)}, {v(o+u)}, {v(t+u)}")
        for u in range(9): p(f"v_mul_f32 {v(o+u)}, {v(o+u)}, {v(o+10)}")
        for u in range(4): p(f"v_cvt_pk_bf16_f32 {v(t+u)}, {v(o+2*u)}, {v(o+2*u+1)}")
        p(f"buffer_store_dwordx4 {v(t,4)}, v12, {WSD}, {s(34+k)} offen")
    p(f"v_permlane32_swap_b32 {v(O+8)}, {v(O+24)}")
    p(f"v_cvt_pk_bf16_f32 v14, {v(O+8)}, {v(O+24)}")
    p(f"buffer_store_dword v14, v13, {WSD}, s36 offen")
    leave(p, "att")
    return [p]

def k_oproj():
    p = Prog("oproj")
    entry(p, "oproj", 256)
    B, W, ACC, RS = 16, 96, 136, 160
    p("s_and_b32 s16, s2, 7")
    p("s_lshr_b32 s17, s2, 3")
    p("s_and_b32 s18, s17, 3")
    p("s_lshr_b32 s17, s17, 2")
    p("s_lshl_b32 s16, s16, 4")
    p("s_lshl_b32 s18, s18, 2")
    p("s_add_u32 s16, s16, s18")
    p("s_add_u32 s16, s16, s3")
    p("v_lshlrev_b32 v1, 4, v0")
    p("s_mul_i32 s18, s17, 92160")
    p("s_lshl_b32 s19, s3, 12")
    p("s_add_u32 s18, s18, s19")
    p(f"s_add_u32 s18, s18, {hex(WS['WO'])}")
    p("s_lshl_b32 s20, s16, 14")
    p(f"s_add_u32 s20, s20, {hex(WS['OP'])}")
    p("s_lshl_b32 s21, s16, 6")
    p(f"s_add_u32 s21, s21, {hex(WS['OL'])}")
    p("v_and_b32 v2, 15, v0")
    p("v_lshrrev_b32 v3, 4, v0")
    p("v_lshlrev_b32 v4, 15, v3")
    p("v_lshl_add_u32 v4, v2, 2, v4")
    for g in range(6):
        p(f"s_add_u32 m0, s19, {16384*g}")
        for k in range(4): p(f"buffer_load_dwordx4 v1, {WSD}, s18 offen offset:{1024*k} lds", tag="w")
        p("s_add_u32 s18, s18, 16384")
    for ks in range(16):
        p(f"buffer_load_dwordx4 {v(B+4*ks,4)}, v1, {WSD}, s20 offen offset:{1024*(ks%4)}")
        if ks % 4 == 3: p("s_add_u32 s20, s20, 4096")
    for k in range(8):
        p(f"buffer_load_dword {v(B+64+k)}, v4, {WSD}, s21 offen")
        p(f"s_add_u32 s21, s21, {8192*(13 if k == 3 else 1)}")
    p("s_lshr_b32 s22, s17, 2")
    p("s_and_b32 s23, s17, 3")
    p("s_mul_i32 s22, s22, 9")
    p("s_mul_i32 s24, s23, 5")
    p("s_lshr_b32 s24, s24, 1")
    p("s_add_u32 s24, s24, s22")
    p("s_lshl_b32 s24, s24, 10")
    p("s_add_u32 s25, s22, 4")
    p("s_lshl_b32 s25, s25, 10")
    p("s_and_b32 s26, s23, 2")
    p("s_lshl_b32 s26, s26, 2")
    p("s_add_u32 s25, s25, s26")
    p(f"s_mul_i32 s26, s16, {XT}")
    p("s_add_u32 s24, s24, s26")
    p("s_add_u32 s25, s25, s26")
    p(f"s_add_u32 s26, s24, {hex(WS['XP'])}")
    p(f"s_add_u32 s27, s25, {hex(WS['XP'])}")
    p(f"s_add_u32 s24, s24, {hex(WS['X2'])}")
    p(f"s_add_u32 s25, s25, {hex(WS['X2'])}")
    for k in range(2): p(f"buffer_load_dwordx4 {v(RS+4*k,4)}, v1, {WSD}, s26 offen offset:{1024*k}")
    p(f"buffer_load_dwordx2 {v(RS+8,2)}, v1, {WSD}, s27 offen")
    p("v_add_u32 v5, 0x8000, v1")
    p("s_add_u32 s28, s23, 1")
    p("s_and_b32 s28, s28, 2")
    p("s_lshl_b32 s29, s17, 14")
    p("s_lshl_b32 s30, s16, 7")
    p("s_add_u32 s29, s29, s30")
    p(f"s_add_u32 s29, s29, {hex(WS['ST'])}")
    p("v_lshlrev_b32 v6, 3, v2")
    p("WAITVM w")
    p("s_barrier")
    def wr(ks):
        b, o = (1, 5120 * ks) if ks < 10 else (5, 5120 * ks - 0x8000)
        return [f"ds_read_b128 {v(W+20*(ks%2)+4*t,4)}, {v(b)} offset:{o+1024*t}" for t in range(5)]
    p.add(wr(0))
    for ks in range(KS):
        mf = [f"{M16} {v(ACC+4*t,4)}, {v(W+20*(ks%2)+4*t,4)}, {v(B+4*ks,4)}, {'0' if ks == 0 else v(ACC+4*t,4)}" for t in range(5)]
        p.add(weave(mf, [(wr(ks + 1), 0, 5)] if ks + 1 < KS else [], None))
    T = 176
    def fin(u0, n):
        for u in range(u0, u0 + n, 2): p.add(unpack(T + u, RS + u // 2))
        for u in range(u0, u0 + n): p(f"v_add_f32 {v(T+u)}, {v(T+u)}, {v(ACC+u)}")
        for u in range(u0, u0 + n, 2): p(f"v_cvt_pk_bf16_f32 {v(200+u//2)}, {v(T+u)}, {v(T+u+1)}")
    def stat(u0, n):
        for u in range(u0, u0 + n):
            p(f"v_add_f32 v8, v8, {v(T+u)}")
            p(f"v_fmac_f32 v9, {v(T+u)}, {v(T+u)}")
    p("v_mov_b32 v8, 0")
    p("v_mov_b32 v9, 0")
    fin(0, 16)
    for k in range(2): p(f"buffer_store_dwordx4 {v(200+4*k,4)}, v1, {WSD}, s24 offen offset:{1024*k}")
    p("s_cmp_eq_u32 s28, 0")
    p("s_cbranch_scc1 oproj_nohalf", take="both")
    fin(16, 4)
    p(f"buffer_store_dwordx2 v[208:209], v1, {WSD}, s25 offen")
    stat(16, 4)
    p("oproj_nohalf:")
    stat(0, 16)
    xsum(p, [8, 9], 10, [4, 5])
    p("s_mov_b64 exec, 0xffff")
    p(f"buffer_store_dwordx2 v[8:9], v6, {WSD}, s29 offen")
    leave(p, "oproj")
    return [p]

def k_up():
    p = Prog("up")
    entry(p, "up", 256)
    W, ACC, C1, IR2, T, HO = 16, 48, 176, 180, 184, 200
    p("s_and_b32 s16, s2, 7")
    p("s_lshr_b32 s17, s2, 3")
    p("s_and_b32 s18, s16, 1")
    p("s_lshr_b32 s16, s16, 1")
    p("s_lshl_b32 s18, s18, 2")
    p("s_and_b32 s19, s17, 3")
    p("s_add_u32 s18, s18, s19")
    p("s_lshr_b32 s17, s17, 2")
    p("s_lshl_b32 s16, s16, 3")
    p("s_add_u32 s17, s17, s16")
    p("s_lshl_b32 s18, s18, 2")
    p("s_add_u32 s18, s18, s3")
    p("v_lshlrev_b32 v1, 4, v0")
    p("v_lshlrev_b32 v2, 3, v0")
    p(f"s_mul_i32 s20, s17, {CH13}")
    p("s_mul_i32 s19, s3, 6144")
    p("s_add_u32 s20, s20, s19")
    p(f"s_add_u32 s20, s20, {hex(WS['W13'])}")
    p(f"s_mul_i32 s21, s18, {4*XT}")
    p(f"s_add_u32 s24, s21, {hex(WS['X2'])}")
    for t in range(1, 4): p(f"s_add_u32 {s(24+t)}, {s(23+t)}, {XT}")
    def dma(stage):
        tag = f"w{stage % 6}"
        L = []
        for h in range(2):
            L.append(f"s_add_u32 m0, s19, {24576*(stage%6)+3072*h}")
            L += [(f"buffer_load_dwordx4 v1, {WSD}, s20 offen offset:{1024*k} lds", tag) for k in range(3)]
            L.append(f"s_add_u32 s20, s20, {3072 if h == 0 else 24576-3072}")
        return L
    def xl(ks):
        L = [f"buffer_load_dwordx4 {R(xreg(4*ks+t),4)}, v1, {WSD}, {s(24+t)} offen offset:{1024*(ks%4)}" for t in range(4)]
        if ks % 4 == 3: L += [f"s_add_u32 {s(24+t)}, {s(24+t)}, 4096" for t in range(4)]
        return L
    p.add(dma(0))
    LA = 5
    for ks in range(LA): p.add(xl(ks))
    p("s_lshl_b32 s22, s18, 9")
    p(f"s_add_u32 s22, s22, {hex(WS['ST'])}")
    for k in range(8):
        p(f"buffer_load_dwordx2 {v(ACC+64+2*k,2)}, v2, {WSD}, s22 offen")
        p("s_add_u32 s22, s22, 16384")
    p.add(dma(1))
    p("v_add_u32 v3, 49152, v1")
    p("v_add_u32 v4, 98304, v1")
    p("s_lshr_b32 s22, s17, 1")
    p("s_and_b32 s23, s17, 1")
    p("s_mul_i32 s22, s22, 9216")
    p(f"s_mul_i32 s28, s18, {4*HT}")
    p("s_add_u32 s22, s22, s28")
    p(f"s_add_u32 s22, s22, {hex(WS['HP'])}")
    p("s_mul_i32 s28, s23, 5120")
    p("s_add_u32 s28, s28, s22")
    p("s_lshl_b32 s23, s23, 3")
    p("s_add_u32 s32, s22, s23")
    p("s_add_u32 s32, s32, 4096")
    for t in range(1, 4):
        p(f"s_add_u32 {s(28+t)}, {s(27+t)}, {HT}")
        p(f"s_add_u32 {s(32+t)}, {s(31+t)}, {HT}")
    p("v_and_b32 v5, 15, v0")
    p("v_lshlrev_b32 v5, 2, v5")
    z = ACC + 64
    stats = []
    for k in range(1, 8):
        stats += [f"v_add_f32 {v(z)}, {v(z)}, {v(z+2*k)}", f"v_add_f32 {v(z+1)}, {v(z+1)}, {v(z+2*k+1)}"]
    stats += [f"v_mul_f32 {v(z)}, {fl(1/D)}, {v(z)}", f"v_mul_f32 {v(z+1)}, {fl(1/D)}, {v(z+1)}",
              f"v_fma_f32 {v(z+1)}, -{v(z)}, {v(z)}, {v(z+1)}", f"v_max_f32 {v(z+1)}, 0, {v(z+1)}",
              f"v_add_f32 {v(z+1)}, {fl(1e-5)}, {v(z+1)}", f"v_rsq_f32 {v(z)}, {v(z+1)}", "s_nop 0",
              f"v_mul_f32 {v(z)}, {fl(-LOG2E)}, {v(z)}"]
    for t in range(4):
        stats += [f"ds_bpermute_b32 {v(C1+t)}, v5, {v(z)} offset:{64*t}", f"ds_bpermute_b32 {v(IR2+t)}, v5, {v(z+1)} offset:{64*t}"]

    def rd(off, dst):
        b, o = (1, off) if off < 49152 else ((3, off - 49152) if off < 98304 else (4, off - 98304))
        return f"ds_read_b128 {v(dst,4)}, {v(b)} offset:{o}"
    def wr(pas, ks):
        if pas < 4:
            return [rd(73728 * (pas % 2) + 4096 * ks + 1024 * t, W + 16 * (ks % 2) + 4 * t) for t in range(4)]
        return [rd(2048 * ks + 1024 * t, W + 16 * (ks % 2) + 4 * t) for t in range(2)]
    def epi(acc, nb, sreg):
        L = []
        for tt in range(4):
            for b in range(nb):
                g = acc + 16 * tt + 8 * b
                u = g + 4
                t = T + 4 * ((2 * tt + b) % 2)
                L += [f"v_mul_f32 {v(t+i)}, {v(g+i)}, {v(C1+tt)}" for i in range(4)]
                L += [f"v_exp_f32 {v(t+i)}, {v(t+i)}" for i in range(4)]
                L += [f"v_mul_f32 {v(g+i)}, {v(g+i)}, {v(u+i)}" for i in range(2)]
                L += [f"v_fma_f32 {v(t+i)}, {v(t+i)}, {v(IR2+tt)}, {v(IR2+tt)}" for i in range(4)]
                L += [f"v_rcp_f32 {v(t+i)}, {v(t+i)}" for i in range(4)]
                L += [f"v_mul_f32 {v(g+i)}, {v(g+i)}, {v(u+i)}" for i in range(2, 4)]
                L += [f"v_mul_f32 {v(g+i)}, {v(g+i)}, {v(t+i)}" for i in range(4)]
                o = HO + 4 * (tt % 2) + 2 * b
                L += [f"v_cvt_pk_bf16_f32 {v(o+i)}, {v(g+2*i)}, {v(g+2*i+1)}" for i in range(2)]
            if nb == 2:
                L += [f"buffer_store_dwordx4 {v(HO+4*(tt%2),4)}, v1, {WSD}, {s(sreg+tt)} offen", f"s_add_u32 {s(sreg+tt)}, {s(sreg+tt)}, 1024"]
            else:
                L += [f"buffer_store_dwordx2 {v(HO+4*(tt%2),2)}, v1, {WSD}, {s(sreg+tt)} offen"]
        return L
    def sync(stage):
        return [f"WAITVM w{stage % 6}", "s_barrier"]
    def gpass(pas, nxt, extra, dmas):
        nt = 4 if pas < 4 else 2
        acc = ACC + 64 * (pas % 2)
        main, st = [], []
        per = 4 * nt
        for ks in range(KS):
            pre = []
            if pas < 4 and ks % 6 == 5 and (ks < 17 or nxt is not None): pre = sync(3 * pas + ks // 6 + 1)
            if pas == 4 and ks == 11: pre = sync(13)
            for t in range(nt):
                for tt in range(4):
                    d = v(acc + 16 * tt + 4 * t, 4)
                    m = f"{M16} {d}, {v(W+16*(ks%2)+4*t,4)}, {R(xreg(4*ks+tt),4)}, {'0' if ks == 0 else d}"
                    main.append([m] + pre if pre else m)
                    pre = []
            rs = wr(pas, ks + 1) if ks + 1 < KS else (wr(nxt, 0) if nxt is not None else [])
            st.append((rs, per * ks, per * ks + per // 2))
            if ks in dmas: st.append((dma(dmas[ks]), per * ks, per * (ks + 3)))
        return weave(main, st + extra, None)
    p.add(sync(0))
    p.add(wr(0, 0))
    xs = [(xl(ks + LA), 16 * ks + 4, 16 * ks + 16) for ks in range(KS - LA)]
    p.add(gpass(0, 1, xs + [(stats, 16 * 13, 16 * 17)], {3: 2, 9: 3, 12: 4, 15: 5}))
    p("s_mov_b32 s36, 0")
    p(".p2align 3")
    p("up_loop:")
    body = gpass(1, 2, [(epi(ACC, 2, 28), 8, 280)], {0: 6, 6: 7, 12: 8})
    p.add(body)
    p("s_cmp_lg_u32 s36, 0")
    p("s_cbranch_scc1 up_last", take=[False, True])
    p.add(gpass(2, 1, [(epi(ACC + 64, 2, 28), 8, 280)], {0: 9, 6: 10, 12: 11}))
    p("s_mov_b32 s36, 1")
    p("s_branch up_loop")
    p("up_last:")
    p.add(gpass(4, None, [(epi(ACC + 64, 2, 28), 4, 144)], {}))
    p.add(epi(ACC, 1, 32))
    leave(p, "up")
    return [p]

def k_down():
    p = Prog("down")
    entry(p, "down", 256)
    W, ACC, T = 16, 96, 176
    HB = lambda k, tt: 256 + 8 * (k % 12) + 4 * tt
    p("s_and_b32 s16, s2, 7")
    p("s_lshr_b32 s17, s2, 3")
    p("s_and_b32 s18, s16, 1")
    p("s_lshr_b32 s16, s16, 1")
    p("s_lshl_b32 s18, s18, 3")
    p("s_and_b32 s19, s17, 7")
    p("s_add_u32 s18, s18, s19")
    p("s_lshr_b32 s17, s17, 3")
    p("s_lshl_b32 s18, s18, 2")
    p("s_add_u32 s18, s18, s3")
    p("v_lshlrev_b32 v1, 4, v0")
    p("s_lshl_b32 s20, s16, 2")
    p("s_add_u32 s20, s20, s17")
    p(f"s_mul_i32 s20, s20, {36*9216}")
    p("s_mul_i32 s19, s3, 9216")
    p("s_add_u32 s20, s20, s19")
    p(f"s_add_u32 s20, s20, {hex(WS['W2'])}")
    p(f"s_mul_i32 s24, s18, {2*HT}")
    p("s_mul_i32 s21, s16, 36864")
    p("s_add_u32 s24, s24, s21")
    p(f"s_add_u32 s24, s24, {hex(WS['HP'])}")
    p(f"s_add_u32 s25, s24, {HT}")
    def dma(stage):
        tag = f"w{stage % 3}"
        L = []
        for h in range(3):
            L.append(f"s_add_u32 m0, s19, {36864*(stage%3)+3072*h}")
            L += [(f"buffer_load_dwordx4 v1, {WSD}, s20 offen offset:{1024*k} lds", tag) for k in range(3)]
            L.append(f"s_add_u32 s20, s20, {3072 if h < 2 else 36864-6144}")
        return L
    def hl(k):
        L = [f"buffer_load_dwordx4 {R(HB(k,tt),4)}, v1, {WSD}, {s(24+tt)} offen offset:{1024*(k%4)}" for tt in range(2)]
        if k % 4 == 3: L += [f"s_add_u32 {s(24+tt)}, {s(24+tt)}, 4096" for tt in range(2)]
        return L
    p.add(dma(0))
    for k in range(4): p.add(hl(k))
    p.add(dma(1))
    for k in range(4, 11): p.add(hl(k))
    p("v_add_u32 v3, 55296, v1")
    for u in range(72): p(f"v_mov_b32 {v(ACC+u)}, 0")
    p("s_lshr_b32 s22, s17, 1")
    p("s_and_b32 s23, s17, 1")
    p("s_mul_i32 s22, s22, 9216")
    p(f"s_mul_i32 s28, s18, {2*XT}")
    p("s_add_u32 s22, s22, s28")
    p(f"s_mul_i32 s28, s16, {XSZ}")
    p("s_add_u32 s22, s22, s28")
    p(f"s_add_u32 s22, s22, {hex(WS['PART'])}")
    p("s_mul_i32 s28, s23, 5120")
    p("s_add_u32 s28, s28, s22")
    p("s_lshl_b32 s23, s23, 3")
    p("s_add_u32 s30, s22, s23")
    p("s_add_u32 s30, s30, 4096")
    p(f"s_add_u32 s29, s28, {XT}")
    p(f"s_add_u32 s31, s30, {XT}")
    def wr(k):
        off = 9216 * (k % 12)
        b, o = (1, off) if off < 55296 else (3, off - 55296)
        return [f"ds_read_b128 {v(W+36*(k%2)+4*t,4)}, {v(b)} offset:{o+1024*t}" for t in range(9)]
    p("WAITVM w0")
    p("s_barrier")
    p.add(wr(0))
    p.add(dma(2))
    p("s_mov_b32 s36, 3")
    p(".p2align 3")
    p("down_loop:")
    main, st = [], []
    for k in range(12):
        pre = ["s_waitcnt lgkmcnt(0)", f"WAITVM w{(k//4+1) % 3}", "s_barrier"] if k % 4 == 3 else []
        for t in range(9):
            for tt in range(2):
                d = v(ACC + 36 * tt + 4 * t, 4)
                m = f"{M16} {d}, {v(W+36*(k%2)+4*t,4)}, {R(HB(k,tt),4)}, {d}"
                main.append(pre + [m] if pre else m)
                pre = []
        st.append((wr(k + 1), 18 * k, 18 * k + 14))
        st.append((hl(k + 11), 18 * k + 1, 18 * k + 9))
        if k % 4 == 3: st.append((dma(k // 4), 18 * k + 1, 18 * k + 18))
    st.append((["s_sub_u32 s36, s36, 1"], 18 * 10, 18 * 10 + 1))
    p.add(weave(main, st, None))
    p("s_cmp_lg_u32 s36, 0")
    p("s_cbranch_scc1 down_loop")
    for tt in range(2):
        for k in range(4):
            o = T + 20 * tt + 4 * k
            for u in range(4): p(f"v_cvt_pk_bf16_f32 {v(o+u)}, {v(ACC+36*tt+8*k+2*u)}, {v(ACC+36*tt+8*k+2*u+1)}")
            p(f"buffer_store_dwordx4 {v(o,4)}, v1, {WSD}, {s(28+tt)} offen offset:{1024*k}")
        o = T + 20 * tt + 16
        for u in range(2): p(f"v_cvt_pk_bf16_f32 {v(o+u)}, {v(ACC+36*tt+32+2*u)}, {v(ACC+36*tt+33+2*u)}")
        p(f"buffer_store_dwordx2 {v(o,2)}, v1, {WSD}, {s(30+tt)} offen")
    leave(p, "down")
    return [p]

def k_red(mode):
    nm = "red" + mode
    p = Prog(nm)
    entry(p, nm, 256)
    lnp(p, mode, nm + "_ln")
    leave(p, nm)
    return [p]

def kd(name, nv, acc):
    return f""".p2align 6
.amdhsa_kernel {name}_kernel
  .amdhsa_next_free_vgpr {nv}
  .amdhsa_next_free_sgpr 96
  .amdhsa_accum_offset {acc}
  .amdhsa_group_segment_fixed_size 0
  .amdhsa_kernarg_size 80
  .amdhsa_user_sgpr_count 2
  .amdhsa_user_sgpr_kernarg_segment_ptr 1
  .amdhsa_system_sgpr_workgroup_id_x 1
.end_amdhsa_kernel
"""

def build(extra_nops=0):
    K = {"prep": (k_prep(), 457, 256, 256, 256), "qkv": (k_qkv(), 256, 73728 + 4 * REC + 1024, 512, 256),
         "att": (k_att(), 256, 20480, 512, 256), "oproj": (k_oproj(), 256, 98304, 256, 256),
         "up": (k_up(), 256, 147456, 512, 256), "down": (k_down(), 256, 110592, 512, 256),
         "redmid": (k_red("mid"), 256, 256, 128, 128), "redout": (k_red("out"), 256, 0, 128, 128)}
    order = ["prep"] + ["qkv", "att", "oproj", "up", "down", "redmid"] + ["qkv", "att", "oproj", "up", "down", "redout"]
    order += ["redout"] * extra_nops
    head = [l for l in open(f"cdna_kernels/{NAME}.s.ref").read().split("\n") if l.startswith(";") and "@launch" not in l and "Override" not in l and "grid=ceil" not in l]
    out = "\n".join(head) + "\n"
    for n in order: out += f"; @launch kernel={n}_kernel grid=({K[n][1]},1,1) block=(256,1,1) lds={K[n][2]}\n"
    out += '.amdgcn_target "amdgcn-amd-amdhsa--gfx950"\n.text\n'
    for n, (progs, *_r) in K.items():
        for q in progs: out += q.finalize(verbose=True).text()
    out += '.section .rodata,"a"\n'
    for n, (progs, g, lds, nv, acc) in K.items(): out += kd(n, nv, acc)
    return out

if __name__ == "__main__":
    dst = sys.argv[1] if len(sys.argv) > 1 else f"cdna_kernels/{NAME}.s"
    open(dst, "w").write(build(int(sys.argv[2]) if len(sys.argv) > 2 else 0))
```

```python
import re

TRANS = ("v_exp_", "v_log_", "v_rcp_", "v_rsq_", "v_sqrt_", "v_sin_", "v_cos_")
REG = re.compile(r"^-?(?:abs\()?\|?([vas])(\d+)\)?\|?$")
RNG = re.compile(r"^-?([vas])\[(\d+):(\d+)\]$")


def v(i, n=1):
    return f"v{i}" if n == 1 else f"v[{i}:{i+n-1}]"
def a(i, n=1):
    return f"a{i}" if n == 1 else f"a[{i}:{i+n-1}]"
def s(i, n=1):
    return f"s{i}" if n == 1 else f"s[{i}:{i+n-1}]"
def R(i, n=1):
    assert (i < 256) == (i + n - 1 < 256), (i, n)
    return v(i, n) if i < 256 else a(i - 256, n)


def regs_of(op):
    op = op.strip()
    m = REG.match(op)
    if m:
        return [(m.group(1), int(m.group(2)))]
    m = RNG.match(op)
    if m:
        return [(m.group(1), i) for i in range(int(m.group(2)), int(m.group(3)) + 1)]
    if op == "vcc":
        return [("s", 106), ("s", 107)]
    if op == "vcc_lo": return [("s", 106)]
    if op == "vcc_hi": return [("s", 107)]
    if op == "exec":
        return [("s", 126), ("s", 127)]
    if op == "exec_lo": return [("s", 126)]
    if op == "exec_hi": return [("s", 127)]
    if op == "m0":
        return [("s", 124)]
    return []


class I:
    __slots__ = ("text", "op", "ops", "mods", "dst", "src", "kind", "tag", "take", "passes", "mA", "mC", "slots", "label", "target")

    def __init__(self, text, tag=None, take=None):
        self.text = text
        self.tag = tag
        self.take = take
        self.label = None
        self.target = None
        self.dst, self.src = [], []
        self.passes = 0
        self.mA, self.mC = [], []
        self.slots = 1
        t = text.split(";")[0].strip()
        if t.endswith(":"):
            self.kind, self.label, self.op, self.slots = "label", t[:-1], "", 0
            return
        if t.startswith(".") or not t:
            self.kind, self.op, self.slots = "dir", "", 0
            return
        parts = t.split(None, 1)
        op = self.op = parts[0]
        rest = parts[1] if len(parts) > 1 else ""
        raw = [x.strip() for x in re.split(r",(?![^\[]*\])", rest)] if rest else []
        mods = ""
        if raw:
            last = raw[-1].split(None, 1)
            raw[-1] = last[0] if last else ""
            mods = last[1] if len(last) > 1 else ""
        self.ops, self.mods = raw, mods
        rr = [regs_of(x) for x in raw]
        flat = lambda L: [r for x in L for r in x]
        if op == "WAITVM":
            self.kind = "waitvm"
        elif op.startswith("v_mfma"):
            self.kind = "mfma"
            self.dst, self.mA, self.mC = rr[0], rr[1] + rr[2], rr[3]
            self.src = self.mA + self.mC
            self.passes = 4 if "16x16" in op else 8
        elif op.startswith("v_"):
            self.kind = "valu"
            if op.startswith("v_nop"):
                pass
            elif op.startswith("v_permlane") and "swap" in op or op.startswith("v_swap"):
                self.dst = self.src = rr[0] + rr[1]
            elif "_co_" in op:
                self.dst, self.src = rr[0] + rr[1], flat(rr[2:])
            else:
                self.dst, self.src = rr[0], flat(rr[1:])
                if op.startswith(("v_fmac", "v_dot2c", "v_pk_fmac", "v_writelane")) or "dpp" in op or "row_" in mods or "quad_perm" in mods or "UNUSED_PRESERVE" in mods:
                    self.src = self.src + rr[0]
        elif op.startswith(("buffer_", "global_")):
            self.kind = "vmem"
            lds = " lds" in " " + mods or "_lds_" in op
            if lds:
                self.src = flat(rr) + [("s", 124)]
            elif "_load_" in op:
                self.dst, self.src = rr[0], flat(rr[1:])
                if "d16" in op:
                    self.src = self.src + rr[0]
            elif "atomic" in op and "sc0" in mods:
                self.dst, self.src = rr[0], flat(rr)
            elif op in ("buffer_wbl2", "buffer_inv"):
                pass
            else:
                self.src = flat(rr)
        elif op.startswith("ds_"):
            self.kind = "ds"
            if op.startswith(("ds_read", "ds_bpermute", "ds_permute", "ds_swizzle")) or "_rtn" in op:
                self.dst, self.src = rr[0], flat(rr[1:])
            else:
                self.src = flat(rr)
        elif op.startswith(("s_load", "s_memtime", "s_memrealtime")):
            self.kind = "smem"
            self.dst, self.src = rr[0], flat(rr[1:])
        elif op == "s_waitcnt":
            self.kind = "wait"
        elif op == "s_nop":
            self.kind = "nop"
            self.slots = int(raw[0], 0) + 1
        elif op.startswith(("s_branch", "s_cbranch")):
            self.kind = "branch"
            self.target = raw[0]
            if "vcc" in op: self.src = regs_of("vcc")
        elif op in ("s_barrier", "s_endpgm", "s_sleep", "s_setprio"):
            self.kind = "misc"
        elif op.startswith(("s_cmp", "s_bitcmp")):
            self.kind = "salu"
            self.src = flat(rr)
        elif op.startswith("s_"):
            self.kind = "salu"
            self.dst, self.src = rr[0], flat(rr[1:])
            if op.startswith(("s_addk", "s_mulk", "s_cmov", "s_bitset")):
                self.src = self.src + rr[0]
            if "saveexec" in op:
                self.dst = self.dst + regs_of("exec")
        else:
            raise ValueError("unknown instruction: " + text)

    def store_data(self):
        if self.kind == "vmem" and re.search(r"store_dwordx[34]", self.op):
            k = 0 if self.op.startswith("buffer") else 1
            return regs_of(self.ops[k])
        return []


def need(p, c):
    n = 0
    pd = set(p.dst)
    if p.kind == "valu":
        pv = {r for r in pd if r[0] != "s"}
        ps = {r for r in pd if r[0] == "s"}
        if pv:
            if c.kind == "mfma" and pv & set(c.src): n = max(n, 2)
            if c.kind == "valu" and pv & set(c.src):
                if c.op.startswith("v_permlane") or "dpp" in c.op or "row_" in c.mods or "quad_perm" in c.mods: n = max(n, 2)
                if c.op.startswith(("v_readlane", "v_readfirstlane")): n = max(n, 1)
                if p.op.startswith(TRANS) and not c.op.startswith(TRANS): n = max(n, 1)
            if c.kind == "valu" and ("dst_sel" in p.mods or ("op_sel" in p.mods and not p.op.startswith("v_pk"))) and pv & set(c.src + c.dst): n = max(n, 1)
            if p.op.startswith(TRANS) and c.kind in ("vmem", "ds") and pv & set(c.src): n = max(n, 1)
        if ps and ps & set(c.src):
            if c.kind == "valu": n = max(n, 4 if c.op.startswith(("v_readlane", "v_writelane")) else 2)
            if c.kind == "vmem": n = max(n, 5)
            if c.kind in ("salu", "branch"): n = max(n, 1)
    elif p.kind == "mfma":
        big = p.passes == 8
        if c.kind == "mfma":
            if pd & set(c.mA): n = max(n, 12 if big else 8)
            same = c.mC == p.dst and c.passes == p.passes
            if pd & set(c.mC) and not same: n = max(n, 10 if big else 6)
            if pd & set(c.dst) and not (c.dst == p.dst and c.passes == p.passes): n = max(n, 10 if big else 6)
        elif c.kind in ("valu", "vmem", "ds"):
            if pd & set(c.src + c.dst): n = max(n, 12 if big else 8)
            if c.kind == "valu" and set(p.mC) & set(c.dst): n = max(n, 7 if big else 3)
    elif p.kind == "salu":
        if ("s", 124) in pd and c.kind == "vmem" and ("s", 124) in c.src: n = max(n, 1)
    elif p.kind == "vmem":
        sd = set(p.store_data())
        if sd and sd & set(c.dst): n = max(n, 2)
    return n


class Prog:
    def __init__(self, name=""):
        self.ins = []
        self.name = name
        self.nops = []

    def __call__(self, text, tag=None, take=None):
        for line in text.split("\n"):
            line = line.strip()
            if line:
                self.ins.append(I(line, tag, take))
        return self

    def add(self, items):
        for it in items:
            if isinstance(it, I): self.ins.append(it)
            elif isinstance(it, tuple): self(it[0], tag=it[1])
            else: self(it)
        return self

    def traces(self, wrap=2):
        lab = {x.label: i for i, x in enumerate(self.ins) if x.kind == "label"}
        opt = [i for i, x in enumerate(self.ins) if x.kind == "branch" and x.take == "both"]
        out = []
        for forced in [None] + opt:
            seq, cnt, i = [], {}, 0
            while i < len(self.ins):
                x = self.ins[i]
                seq.append(i)
                if x.op == "s_endpgm": break
                if x.kind == "branch" and x.target in lab:
                    t = lab[x.target]
                    k = cnt.get(i, 0); cnt[i] = k + 1
                    if isinstance(x.take, (list, tuple)):
                        go = x.take[k % len(x.take)]
                    elif x.op == "s_branch": go = True
                    elif i == forced: go = True
                    elif t < i and x.take is None: go = k < wrap
                    else: go = x.take is True
                    if go:
                        i = t
                        continue
                i += 1
                assert len(seq) < 2000000, "trace does not end"
            out.append(seq)
        return out

    def _waits(self):
        req = {}
        changed = True
        while changed:
            changed = False
            for seq in self.traces():
                vm, lg = [], []
                for i in seq:
                    x = self.ins[i]
                    if x.kind == "wait":
                        m = re.search(r"vmcnt\((\d+)\)", x.text)
                        if m: vm = vm[max(0, len(vm) - int(m.group(1))):] if int(m.group(1)) else []
                        m = re.search(r"lgkmcnt\((\d+)\)", x.text)
                        if m:
                            n = int(m.group(1))
                            assert n == 0 or not any(e[1] == "smem" for e in lg), x.text
                            lg = lg[max(0, len(lg) - n):] if n else []
                        continue
                    nv = nl = None
                    touched = set(x.src) | set(x.dst)
                    if x.kind == "waitvm":
                        tags = x.ops
                        ks = [k for k, e in enumerate(vm) if e[1] in tags]
                        nv = len(vm) - 1 - max(ks) if ks else None
                    elif touched:
                        tv = set(x.src) if x.kind == "vmem" else touched
                        ks = [k for k, e in enumerate(vm) if e[0] & tv]
                        if ks: nv = len(vm) - 1 - max(ks)
                        tl = set(x.src) if x.kind == "ds" else touched
                        ks = [k for k, e in enumerate(lg) if e[0] & tl]
                        if ks:
                            nl = 0 if any(e[1] == "smem" for e in lg) else len(lg) - 1 - max(ks)
                    cur = req.get(i, [None, None])
                    new = list(cur)
                    if nv is not None: new[0] = min(63, nv) if cur[0] is None else min(cur[0], nv)
                    if nl is not None: new[1] = min(15, nl) if cur[1] is None else min(cur[1], nl)
                    if new != cur:
                        req[i] = new
                        changed = True
                    if new[0] is not None: vm = vm[len(vm) - new[0]:] if 0 < new[0] < len(vm) else ([] if new[0] == 0 else vm)
                    if new[1] is not None: lg = lg[len(lg) - new[1]:] if 0 < new[1] < len(lg) else ([] if new[1] == 0 else lg)
                    if x.kind == "vmem": vm.append((set(x.dst), x.tag))
                    elif x.kind == "ds": lg.append((set(x.dst), "ds"))
                    elif x.kind == "smem": lg.append((set(x.dst), "smem"))
        return req

    def finalize(self, verbose=False):
        req = self._waits()
        out = []
        for i, x in enumerate(self.ins):
            r = req.get(i)
            if r and (r[0] is not None or r[1] is not None):
                w = "s_waitcnt" + (f" vmcnt({r[0]})" if r[0] is not None else "") + (f" lgkmcnt({r[1]})" if r[1] is not None else "")
                out.append(I(w))
            if x.kind != "waitvm":
                out.append(x)
        self.ins = out
        while True:
            pad = {}
            for seq in self.traces():
                hist = []
                for i in seq:
                    x = self.ins[i]
                    if x.slots == 0: continue
                    extra = pad.get(i, 0)
                    dist = 0
                    for (p, sl) in reversed(hist):
                        n = need(p, x)
                        if n > dist + extra:
                            extra = n - dist
                        dist += sl
                        if dist >= 21: break
                    if extra:
                        pad[i] = extra
                        hist.append((I("s_nop 0"), extra))
                    hist.append((x, x.slots))
                    if len(hist) > 40: hist = hist[-24:]
            if not pad: break
            out = []
            for i, x in enumerate(self.ins):
                if i in pad:
                    self.nops.append((pad[i], x.text))
                    n = pad[i]
                    while n > 0:
                        k = min(n, 16)
                        out.append(I(f"s_nop {k-1}"))
                        n -= k
                out.append(x)
            self.ins = out
        if verbose:
            print(f"[{self.name}] {sum(1 for x in self.ins if x.slots)} instrs, pads: {sum(n for n, _ in self.nops)} states at {len(self.nops)} sites")
        return self

    def text(self):
        return "\n".join(("" if x.kind in ("label", "dir") else "    ") + x.text for x in self.ins) + "\n"


def cost(t):
    t = t[0] if isinstance(t, tuple) else t
    return 8 if t.startswith(TRANS) else 4


def weave(main, streams, budget):
    slots = [[] for _ in main]
    for items, st, en in streams:
        n = len(items)
        if not n: continue
        tot = sum(cost(x) for x in items)
        acc = 0
        for it in items:
            pos = st + int((en - st) * acc / tot)
            slots[min(pos, en - 1)].append(it)
            acc += cost(it)
    out = []
    for m, f in zip(main, slots):
        out += m if isinstance(m, list) else [m]
        out += f
    return out


def pack(main, streams, cap=8, report=None):
    n = len(main)
    slots = [[] for _ in range(n)]
    used = [0] * n
    def c(it): return sum(cost(x) for x in it) if isinstance(it, list) else cost(it)
    for items, st, en in streams:
        en = min(en, n)
        tot = sum(c(x) for x in items)
        acc, cur = 0, st
        for it in items:
            pos = max(cur, st + int((en - st) * acc / max(tot, 1)))
            k = c(it)
            while pos < en - 1 and used[pos] and used[pos] + k > cap: pos += 1
            pos = min(pos, en - 1)
            slots[pos] += it if isinstance(it, list) else [it]
            used[pos] += k
            cur = pos
            acc += k
    if report is not None:
        over = sum(max(0, u - cap) for u in used)
        print(f"  pack {report}: {n} gaps, filler {sum(used)} cyc, overflow {over} cyc")
    out = []
    for m, f in zip(main, slots):
        out += m if isinstance(m, list) else [m]
        out += f
    return out
```

```python
import math, struct, sys
from asmb import Prog, v, a, s, R, weave, I
from layout import *

NAME = "interleave_layers__mha_block__glu_gated_swiglu__prompt"
LOG2E = 1.4426950408889634
def fl(x): return hex(struct.unpack("<I", struct.pack("<f", x))[0])
M16 = "v_mfma_f32_16x16x32_bf16"
M32 = "v_mfma_f32_32x32x16_bf16"
M32K8 = "v_mfma_f32_32x32x8_bf16"
WSD = s(4, 4)
ARG = dict(x=0, wqkv=8, wo=16, w1=32, w3=40, w2=48, out=56, dbg=64, ws=72)

def srd(p, reg, arg, size):
    p(f"s_load_dwordx2 {s(reg,2)}, s[0:1], {ARG[arg]}")
    p(f"s_mov_b32 {s(reg+2)}, {hex(size)}")
    p(f"s_mov_b32 {s(reg+3)}, 0x00020000")

def entry(p, name, nwg):
    p(f".globl {name}_kernel\n.p2align 8\n.type {name}_kernel,@function\n{name}_kernel:")
    p(f"s_cmp_ge_u32 s2, {nwg}")
    p(f"s_cbranch_scc1 {name}_end")
    if DIAG:
        for i in range(1, 6): p(f"s_mov_b32 {s(64+2*i)}, 0")
        p("s_memrealtime s[80:81]")
        stamp(p, 0)
    srd(p, 4, "ws", WS["END"])
    p("v_lshrrev_b32 v1, 6, v0")
    p("v_and_b32 v0, 63, v0")
    p("v_readfirstlane_b32 s3, v1")

DIAG = False
KIDX = {"prep": 0, "qkv": 1, "att": 2, "oproj": 3, "up": 4, "down": 5, "redmid": 6, "redout": 7}
def stamp(p, i):
    if DIAG: p(f"s_memtime {s(64+2*i,2)}")

def leave(p, name):
    if DIAG and name != "prep":
        p("s_mov_b64 exec, -1")
        stamp(p, 6)
        p("s_waitcnt vmcnt(0)")
        stamp(p, 7)
        p("s_memrealtime s[82:83]")
        p("s_waitcnt lgkmcnt(0)")
        for i in range(10): p(f"v_mov_b32 {v(16+i)}, {s(64+2*i)}")
        p("s_lshl_b32 s60, s2, 2")
        p("s_add_u32 s60, s60, s3")
        p("s_lshl_b32 s60, s60, 6")
        p(f"s_add_u32 s60, s60, {KIDX[name] << 16}")
        p("v_mov_b32 v1, 0")
        p("s_mov_b64 exec, 1")
        for i in range(3): p(f"buffer_store_dwordx4 {v(16+4*i,4)}, v1, {WSD}, s60 offen offset:{16*i}")
    p(f"{name}_end:\ns_endpgm")

def unpack(dst, src):
    return [f"v_lshlrev_b32 {v(dst)}, 16, {v(src)}", f"v_and_b32 {v(dst+1)}, 0xffff0000, {v(src)}"]

def xsum(p, regs, tmp, bits):
    for b in bits:
        if b == 3:
            for r in regs: p(f"v_add_f32_dpp {v(r)}, {v(r)}, {v(r)} row_ror:8 row_mask:0xf bank_mask:0xf")
        else:
            op = "v_permlane16_swap_b32" if b == 4 else "v_permlane32_swap_b32"
            for k, r in enumerate(regs): p(f"v_mov_b32 {v(tmp+k)}, {v(r)}")
            for k, r in enumerate(regs): p(f"{op} {v(r)}, {v(tmp+k)}")
            for k, r in enumerate(regs): p(f"v_add_f32 {v(r)}, {v(r)}, {v(tmp+k)}")

def lnp(p, mode, lab):
    if mode == "in": srd(p, 8, "x", S * D * 2)
    if mode == "out": srd(p, 8, "out", S * D * 2)
    p(f"s_cmp_eq_u32 s3, 3")
    p(f"s_cbranch_scc1 {lab}_skip")
    p("v_and_b32 v2, 7, v0")
    p("v_lshrrev_b32 v3, 3, v0")
    p("s_lshl_b32 s16, s3, 3")
    p("v_add_u32 v3, s16, v3")
    p("v_mul_u32_u24 v4, 768, v3")
    p("v_lshl_add_u32 v4, v2, 4, v4")
    p("v_mul_u32_u24 v5, 48, v3")
    p("v_mul_u32_u24 v6, 1152, v2")
    p("v_add_u32 v5, v5, v6")
    p("s_lshr_b32 s16, s2, 1")
    p(f"s_mul_i32 s16, s16, {XT}")
    p("s_and_b32 s17, s2, 1")
    p("s_lshl_b32 s17, s17, 7")
    p("s_add_u32 s16, s16, s17")
    p("s_mul_i32 s17, s2, 9216")
    X = 16; T = 40; L = 64
    if mode == "in":
        for i in range(3): p(f"buffer_load_dwordx4 {v(L+4*i,4)}, v5, s[8:11], s17 offen offset:{16*i}")
        nsrc = 1
    else:
        for k in range(5):
            base = WS["X2"] if k == 0 else WS["PART"] + (k - 1) * XSZ
            p(f"s_add_u32 s18, s16, {hex(base)}")
            for i in range(3): p(f"buffer_load_dwordx4 {v(L+12*k+4*i,4)}, v4, {WSD}, s18 offen offset:{256*i}")
        nsrc = 5
    for k in range(nsrc):
        for u in range(12):
            if k == 0:
                p.add(unpack(X + 2 * u, L + u))
            else:
                t = T + 2 * (u % 4)
                p.add(unpack(t, L + 12 * k + u))
                p(f"v_add_f32 {v(X+2*u)}, {v(X+2*u)}, {v(t)}")
                p(f"v_add_f32 {v(X+2*u+1)}, {v(X+2*u+1)}, {v(t+1)}")
    if mode != "in":
        for u in range(12): p(f"v_cvt_pk_bf16_f32 {v(L+u)}, {v(X+2*u)}, {v(X+2*u+1)}")
    if mode == "out":
        for i in range(3): p(f"buffer_store_dwordx4 {v(L+4*i,4)}, v5, s[8:11], s17 offen offset:{16*i}")
        p(f"{lab}_skip:")
        return
    p(f"s_add_u32 s18, s16, {hex(WS['XP'])}")
    for i in range(3): p(f"buffer_store_dwordx4 {v(L+4*i,4)}, v4, {WSD}, s18 offen offset:{256*i}")
    p(f"v_add_f32 v8, {v(X)}, {v(X+1)}")
    p(f"v_mul_f32 v9, {v(X)}, {v(X)}")
    p(f"v_fmac_f32 v9, {v(X+1)}, {v(X+1)}")
    for u in range(2, 24):
        p(f"v_add_f32 v8, v8, {v(X+u)}")
        p(f"v_fmac_f32 v9, {v(X+u)}, {v(X+u)}")
    xsum(p, [8, 9], 10, [3, 4, 5])
    p("v_lshlrev_b32 v6, 5, v2")
    p("s_lshl_b32 s18, s3, 3")
    p("v_add_u32 v7, s18, v6")
    p("ds_write_b64 v7, v[8:9]")
    p("s_waitcnt lgkmcnt(0)")
    p("s_barrier")
    p("ds_read_b128 v[8:11], v6")
    p("ds_read_b64 v[12:13], v6 offset:16")
    p("v_add_f32 v8, v8, v10")
    p("v_add_f32 v9, v9, v11")
    p("v_add_f32 v8, v8, v12")
    p("v_add_f32 v9, v9, v13")
    p(f"v_mul_f32 v8, {fl(1/D)}, v8")
    p(f"v_mul_f32 v9, {fl(1/D)}, v9")
    p("v_fma_f32 v9, -v8, v8, v9")
    p("v_max_f32 v9, 0, v9")
    p(f"v_add_f32 v9, {fl(1e-5)}, v9")
    p("v_rsq_f32 v9, v9")
    p("v_mul_f32 v8, v8, v9")
    for u in range(24): p(f"v_fma_f32 {v(X+u)}, {v(X+u)}, v9, -v8")
    for u in range(12): p(f"v_cvt_pk_bf16_f32 {v(T+u)}, {v(X+2*u)}, {v(X+2*u+1)}")
    p(f"s_add_u32 s18, s16, {hex(WS['XN'])}")
    for i in range(3): p(f"buffer_store_dwordx4 {v(T+4*i,4)}, v4, {WSD}, s18 offen offset:{256*i}")
    p(f"s_branch {lab}_done")
    p(f"{lab}_skip:")
    p("s_barrier")
    p(f"{lab}_done:")

def selmat(p, dst, src):
    p(f"v_sub_u32 v12, {v(src)}, v3")
    p("v_and_b32 v13, 1, v12")
    p("v_lshlrev_b32 v13, 4, v13")
    p("v_lshlrev_b32 v13, v13, v11")
    p("v_lshrrev_b32 v12, 1, v12")
    for u in range(4):
        p(f"v_cmp_eq_u32 vcc, {u}, v12")
        p(f"v_cndmask_b32 {v(dst+u)}, 0, v13, vcc")

def prep_common(p):
    p("v_and_b32 v2, 15, v0")
    p("v_lshrrev_b32 v4, 4, v0")
    p("v_lshlrev_b32 v3, 3, v4")
    p("v_mov_b32 v11, 0x3f80")
    p("v_and_b32 v5, 12, v2")
    p("v_and_b32 v6, 3, v2")
    p("v_lshl_add_u32 v5, v5, 1, v6")
    p("v_lshlrev_b32 v1, 4, v0")

def pair_sels(p, S0):
    selmat(p, S0, 5)
    p("v_add_u32 v7, 4, v5")
    selmat(p, S0 + 4, 7)

def tr_block(p, A0, A1, sel, C, D, out):
    p(f"{M16} {v(D,4)}, {v(A0,4)}, {v(sel,4)}, {C}")
    p(f"{M16} {v(D+4,4)}, {v(A1,4)}, {v(sel,4)}, {C}")
    return [f"v_cvt_pk_bf16_f32 {v(out+u)}, {v(D+2*u)}, {v(D+2*u+1)}" for u in range(4)]

def prep13(p):
    srd(p, 8, "w1", D * F * 2)
    srd(p, 12, "w3", D * F * 2)
    prep_common(p)
    pair_sels(p, 16)
    p("s_and_b32 s21, s20, 1")
    p("s_lshr_b32 s22, s20, 1")
    p("s_waitcnt lgkmcnt(0)")
    p("s_cmp_eq_u32 s21, 1")
    p("s_cselect_b32 s8, s12, s8")
    p("s_cselect_b32 s9, s13, s9")
    p("s_mov_b32 s23, 9216")
    p("v_mul_lo_u32 v7, v5, s23")
    p("v_lshl_add_u32 v7, v4, 4, v7")
    p("s_lshl_b32 s23, s22, 6")
    L = 96
    for k in range(36):
        p(f"buffer_load_dwordx4 {v(L+4*k,4)}, v7, s[8:11], s23 offen")
        p(f"s_add_u32 s23, s23, {9216*(4 if k % 2 == 0 else 28)}")
    p(f"s_mul_i32 s24, s22, 7282")
    p("s_lshr_b32 s24, s24, 16")
    p("s_mul_i32 s25, s24, 9")
    p("s_sub_u32 s25, s22, s25")
    p(f"s_mul_i32 s26, s24, {2*CH13}")
    p("s_lshl_b32 s27, s21, 10")
    p("s_add_u32 s26, s26, s27")
    p(f"s_add_u32 s26, s26, {hex(WS['W13'])}")
    p("s_mul_i32 s27, s25, 73728")
    p("s_add_u32 s26, s26, s27")
    p("s_cmp_gt_u32 s25, 4")
    p(f"s_cselect_b32 s27, {5*73728-CH13}, 0")
    p("s_sub_u32 s26, s26, s27")
    p("s_cmp_eq_u32 s25, 4")
    p("s_mov_b32 s27, 2048")
    p("s_mov_b32 s28, 4096")
    p(f"s_cmov_b32 s27, {CH13}")
    p("s_cmov_b32 s28, 2048")
    p("s_add_u32 s27, s26, s27")
    for k in range(36):
        for b in range(2):
            p(f"{M16} {v(24+4*b,4)}, {v(L+4*k,4)}, {v(16+4*b,4)}, {'0' if k == 0 else v(24+4*b,4)}")
    for b in range(2):
        p(f"v_add_f32 {v(24+4*b)}, {v(24+4*b)}, {v(25+4*b)}")
        p(f"v_add_f32 {v(26+4*b)}, {v(26+4*b)}, {v(27+4*b)}")
        p(f"v_add_f32 {v(24+4*b)}, {v(24+4*b)}, {v(26+4*b)}")
    xsum(p, [24, 28], 8, [4, 5])
    for b in range(2):
        for u in (3, 2, 1, 0): p(f"v_mul_f32 {v(24+4*b+u)}, {fl(-1/D)}, {v(24+4*b)}")
    pend = []
    for ks in range(KS):
        for b in range(2):
            n = 2 * ks + b
            Dr, o = 32 + 8 * (n % 4), 64 + 4 * (n % 4)
            cv = tr_block(p, L + 8 * ks, L + 8 * ks + 4, 16 + 4 * b, v(24 + 4 * b, 4), Dr, o)
            cv += [f"buffer_store_dwordx4 {v(o,4)}, v1, {WSD}, {s(26+b)} offen", f"s_add_u32 {s(26+b)}, {s(26+b)}, s28"]
            pend.append(cv)
            if len(pend) > 2: p.add(pend.pop(0))
    for c in pend: p.add(c)

def prep_rows9(p, place):
    L = 96
    for rem in range(9):
        p(f"buffer_load_dwordx4 {v(L+8*rem,4)}, v7, s[8:11], s23 offen offset:{64*rem}")
        p(f"buffer_load_dwordx4 {v(L+8*rem+4,4)}, v8, s[8:11], s23 offen offset:{64*rem}")
    pend = []
    for rem in range(9):
        for b in range(2):
            n = 2 * rem + b
            Dr, o = 32 + 8 * (n % 4), 64 + 4 * (n % 4)
            cv = tr_block(p, L + 8 * rem, L + 8 * rem + 4, 16 + 4 * b, "0", Dr, o)
            cv += [f"s_add_u32 s27, s26, {place(rem, b)}", f"buffer_store_dwordx4 {v(o,4)}, v1, {WSD}, s27 offen"]
            pend.append(cv)
            if len(pend) > 2: p.add(pend.pop(0))
    for c in pend: p.add(c)

def prep2(p):
    srd(p, 8, "w2", D * F * 2)
    prep_common(p)
    pair_sels(p, 16)
    p("s_and_b32 s21, s20, 1")
    p("s_lshr_b32 s22, s20, 1")
    p("v_mul_u32_u24 v7, 1152, v5")
    p("v_lshl_add_u32 v7, v4, 4, v7")
    p("v_add_u32 v8, 4608, v7")
    p(f"s_mul_i32 s23, s22, {32*1152}")
    p("s_mul_i32 s24, s21, 576")
    p("s_add_u32 s23, s23, s24")
    p("s_mul_i32 s24, s22, 1821")
    p("s_lshr_b32 s24, s24, 16")
    p("s_mul_i32 s25, s24, 108")
    p("s_add_u32 s25, s25, s22")
    p("s_mul_i32 s24, s21, 72")
    p("s_add_u32 s25, s25, s24")
    p("s_mul_i32 s26, s25, 9216")
    p(f"s_add_u32 s26, s26, {hex(WS['W2'])}")
    def place(rem, b):
        dcs, t = (0, 2 * rem + b) if rem < 4 else ((b, 8) if rem == 4 else (1, 2 * (rem - 5) + b))
        return dcs * 36 * 9216 + t * 1024
    prep_rows9(p, place)

def prepo(p):
    srd(p, 8, "wo", D * D * 2)
    prep_common(p)
    pair_sels(p, 16)
    p("s_and_b32 s21, s20, 1")
    p("s_lshr_b32 s22, s20, 1")
    p("v_lshrrev_b32 v7, 3, v2")
    p("v_mul_u32_u24 v7, 18, v7")
    p("v_and_b32 v8, 7, v2")
    p("v_add_u32 v7, v7, v8")
    p("v_lshrrev_b32 v8, 1, v2")
    p("v_and_b32 v9, 1, v8")
    p("v_lshrrev_b32 v8, 1, v8")
    p("v_lshl_add_u32 v8, v8, 2, v9")
    p("v_mul_u32_u24 v8, 18, v8")
    p("v_and_b32 v9, 1, v2")
    p("v_add3_u32 v8, v8, v9, 16")
    p("s_cmp_lt_u32 s22, 16")
    p("s_cselect_b64 vcc, -1, 0")
    p(f"s_mov_b32 s24, {36*1152}")
    p(f"s_cmov_b32 s24, {8*1152}")
    p("v_cndmask_b32 v7, v8, v7, vcc")
    p("v_mul_u32_u24 v7, 1152, v7")
    p("v_lshl_add_u32 v7, v4, 4, v7")
    p("v_add_u32 v8, s24, v7")
    p(f"s_mul_i32 s23, s22, {36*1152}")
    p("s_sub_u32 s25, s22, 16")
    p(f"s_mul_i32 s25, s25, {288*1152}")
    p("s_cmp_lt_u32 s22, 16")
    p("s_cselect_b32 s23, s23, s25")
    p("s_mul_i32 s24, s21, 576")
    p("s_add_u32 s23, s23, s24")
    p(f"s_mul_i32 s26, s21, {4*92160}")
    p("s_mul_i32 s24, s22, 5120")
    p("s_add_u32 s26, s26, s24")
    p(f"s_add_u32 s26, s26, {hex(WS['WO'])}")
    def place(rem, b):
        if rem == 4: dcs, t = 1 + b, 4
        else:
            dcs = (0, 0, 1, 1, None, 2, 2, 3, 3)[rem]
            t = 2 * (rem - (0, 2, 5, 7)[dcs]) + b
        return dcs * 92160 + t * 1024
    prep_rows9(p, place)

def prepq(p):
    srd(p, 8, "wqkv", D * 3 * D * 2)
    prep_common(p)
    SQ, SK, SV, LQ, LK, LV = 16, 24, 32, 36, 40, 44
    p("v_mov_b32 v10, 99")
    for b in range(2):
        p(f"v_add_u32 v7, {4*b}, v5")
        p("v_cmp_gt_u32 vcc, 8, v2")
        p("v_cndmask_b32 v8, v10, v7, vcc")
        p("v_subrev_u32 v7, 16, v7")
        p("v_cndmask_b32 v9, v7, v10, vcc")
        selmat(p, SQ + 4 * b, 8)
        selmat(p, SK + 4 * b, 9)
    selmat(p, SV, 2)
    for dst, c0 in ((LK, 0), (LQ, 8), (LV, 1)):
        p(f"v_cmp_eq_u32 vcc, {c0}, v2")
        p("v_cndmask_b32 v7, v10, 16, vcc")
        p(f"v_cmp_eq_u32 vcc, {c0+4}, v2")
        p("v_cndmask_b32 v7, v7, 17, vcc")
        selmat(p, dst, 7)
    p("s_and_b32 s21, s20, 31")
    p("s_lshr_b32 s22, s20, 5")
    p("v_mul_u32_u24 v7, 3456, v5")
    p("v_lshl_add_u32 v7, v4, 4, v7")
    p(f"s_mul_i32 s23, s22, {96*3456}")
    p("s_mul_i32 s24, s21, 36")
    p("s_add_u32 s23, s23, s24")
    p("s_mul_i32 s26, s21, 73728")
    p("s_mul_i32 s24, s22, 12288")
    p("s_add_u32 s26, s26, s24")
    p(f"s_add_u32 s26, s26, {hex(WS['WQKV'])}")
    L = 128
    for k in range(6):
        for m in range(3): p(f"buffer_load_dwordx4 {v(L+12*k+4*m,4)}, v7, s[8:11], s23 offen offset:{1152*m}")
        p(f"s_add_u32 s23, s23, {3456*(4 if k % 2 == 0 else 28)}")
    for ks in range(3):
        for blk in range(2):
            A = L + 12 * (2 * ks + blk)
            terms = [[(0, SQ), (1, SK)], [(0, SQ + 4), (1, SK + 4)], [(2, SV)], [(0, LQ), (1, LK), (2, LV)]]
            for t, tl in enumerate(terms):
                Dr = 48 + 8 * t + 4 * blk
                for n, (m, sel) in enumerate(tl):
                    p(f"{M16} {v(Dr,4)}, {v(A+4*m,4)}, {v(sel,4)}, {'0' if n == 0 else v(Dr,4)}")
        for t in range(4):
            o = 80 + 16 * (ks % 2) + 4 * t
            for u in range(4): p(f"v_cvt_pk_bf16_f32 {v(o+u)}, {v(48+8*t+2*u)}, {v(48+8*t+2*u+1)}")
            p(f"buffer_store_dwordx4 {v(o,4)}, v1, {WSD}, s26 offen offset:{1024*t}")
        p("s_add_u32 s26, s26, 4096")

def k_prep():
    p = Prog("prep")
    entry(p, "prep", 256 + 201)
    p("s_cmp_lt_u32 s2, 256")
    p("s_cbranch_scc0 prep_w", take="both")
    lnp(p, "in", "prep_ln")
    p("s_endpgm")
    p("prep_w:")
    p("s_sub_u32 s20, s2, 256")
    p("s_lshl_b32 s20, s20, 2")
    p("s_add_u32 s20, s20, s3")
    progs = [p]
    secs = [("q", 192, prepq), ("a", 288, prep13), ("b", 288, prep2), ("o", 36, prepo)]
    for nm, n, fn in secs[:-1]:
        p(f"s_cmp_lt_u32 s20, {n}")
        p(f"s_cbranch_scc1 prep_{nm}")
        p(f"s_sub_u32 s20, s20, {n}")
    p("s_branch prep_o")
    leave(p, "prep")
    for nm, n, fn in secs:
        q = Prog("prep_" + nm)
        q(f"prep_{nm}:")
        q("s_waitcnt lgkmcnt(0)")
        fn(q)
        q("s_endpgm")
        progs.append(q)
    return progs

def xreg(n):
    return 256 + 4 * n if n < 64 else 224 + 4 * (n - 64)

def k_qkv():
    p = Prog("qkv")
    entry(p, "qkv", 256)
    p("s_and_b32 s16, s2, 7")
    p("s_lshr_b32 s17, s2, 3")
    p("v_lshlrev_b32 v1, 4, v0")
    p("s_mul_i32 s18, s17, 73728")
    p("s_lshl_b32 s19, s3, 10")
    p("s_add_u32 s18, s18, s19")
    p(f"s_add_u32 s18, s18, {hex(WS['WQKV'])}")
    p("s_lshl_b32 s20, s16, 2")
    p("s_add_u32 s20, s20, s3")
    p(f"s_mul_i32 s21, s20, {4*XT}")
    p(f"s_add_u32 s24, s21, {hex(WS['XN'])}")
    for t in range(1, 4): p(f"s_add_u32 {s(24+t)}, {s(23+t)}, {XT}")
    for ks in range(KS):
        p(f"s_add_u32 m0, s19, {4096*ks}")
        p(f"buffer_load_dwordx4 v1, {WSD}, s18 offen lds", tag="w")
        p("s_add_u32 s18, s18, 4096")
    def xl(ks):
        L = [f"buffer_load_dwordx4 {R(xreg(4*ks+t),4)}, v1, {WSD}, {s(24+t)} offen offset:{1024*(ks%4)}" for t in range(4)]
        if ks % 4 == 3: L += [f"s_add_u32 {s(24+t)}, {s(24+t)}, 4096" for t in range(4)]
        return L
    LA = 5
    for ks in range(LA): p.add(xl(ks))
    KB = 73728
    p("v_and_b32 v2, 15, v0")
    p("v_lshrrev_b32 v3, 4, v0")
    p(f"s_mul_i32 s22, s3, {REC}")
    p(f"s_add_u32 s22, s22, {KB}")
    p("v_lshrrev_b32 v4, 3, v2")
    p("v_and_b32 v5, 7, v2")
    p("v_lshl_add_u32 v4, v4, 4, v5")
    p("v_and_b32 v5, 1, v3")
    p("v_lshl_add_u32 v4, v5, 5, v4")
    p("v_cmp_gt_u32 vcc, 2, v3")
    p(f"v_mov_b32 v5, {KVB}")
    p("v_cndmask_b32 v6, 0, v5, vcc")
    p("v_cndmask_b32 v7, v5, 0, vcc")
    p("v_lshl_add_u32 v6, v4, 4, v6")
    p("v_lshl_add_u32 v7, v4, 3, v7")
    p("s_add_u32 s23, s22, 512")
    p("v_add_u32 v6, s23, v6")
    p("v_add_u32 v7, s22, v7")
    p("s_add_u32 s23, s22, 2560")
    p("v_mul_u32_u24 v8, 288, v3")
    p("v_lshl_add_u32 v8, v2, 4, v8")
    p("v_add_u32 v8, s23, v8")
    p("v_lshrrev_b32 v9, 2, v2")
    p("v_mul_u32_u24 v9, 288, v9")
    p("v_lshl_add_u32 v9, v3, 4, v9")
    p("v_and_b32 v10, 3, v2")
    p("v_lshl_add_u32 v9, v10, 1, v9")
    p("s_add_u32 s23, s23, 256")
    p("v_add_u32 v9, s23, v9")
    p(f"v_mov_b32 v5, {fl(LOG2E / math.sqrt(DH))}")
    p("v_cndmask_b32 v10, 1.0, v5, vcc")
    p("v_cndmask_b32 v11, v5, 1.0, vcc")
    p("v_cndmask_b32 v12, 0, 1.0, vcc")
    p("v_add_u32 v13, s22, v1")
    p("v_add_u32 v14, 0x8000, v1")
    stamp(p, 1)
    p("WAITVM w")
    p("s_barrier")
    stamp(p, 2)
    W, ACC = 16, 48
    def wr(ks):
        b, o = (1, 4096 * ks) if ks < 12 else (14, 4096 * ks - 0x8000)
        return [f"ds_read_b128 {v(W+16*(ks%2)+4*t,4)}, {v(b)} offset:{o+1024*t}" for t in range(4)]
    p.add(wr(0))
    for ks in range(KS):
        mf = []
        for t in range(4):
            for tt in range(4):
                d = v(ACC + 16 * tt + 4 * t, 4)
                w, x = v(W + 16 * (ks % 2) + 4 * t, 4), R(xreg(4 * ks + tt), 4)
                A, B = (x, w) if t == 2 else (w, x)
                mf.append(f"{M16} {d}, {A}, {B}, {'0' if ks == 0 else d}")
        st = []
        if ks + 1 < KS: st.append((wr(ks + 1), 0, 8))
        if ks + LA < KS: st.append((xl(ks + LA), 4, 16))
        p.add(weave(mf, st, None))
    T = 112
    stamp(p, 3)
    for tt in range(4):
        A0 = ACC + 16 * tt
        kt2, ab = tt >> 1, tt & 1
        for u in range(8): p(f"v_mul_f32 {v(A0+u)}, {v(A0+u)}, v10")
        p(f"v_mul_f32 {v(A0+12)}, {v(A0+12)}, v11")
        for u in range(4): p(f"v_cvt_pk_bf16_f32 {v(T+4*tt+u)}, {v(A0+2*u)}, {v(A0+2*u+1)}")
        p(f"ds_write_b128 v6, {v(T+4*tt,4)} offset:{kt2*1024+ab*128}")
        p(f"v_cvt_pk_bf16_f32 {v(A0+12)}, {v(A0+12)}, v12")
        p(f"ds_write_b32 v7, {v(A0+12)} offset:{ab*64+kt2*4}")
        p(f"v_cvt_pk_bf16_f32 {v(A0+13)}, {v(A0+13)}, {v(A0+13)}")
        for u in range(2): p(f"v_cvt_pk_bf16_f32 {v(T+16+4*kt2+2*ab+u)}, {v(A0+8+2*u)}, {v(A0+9+2*u)}")
        if ab: p(f"ds_write_b128 v8, {v(T+16+4*kt2,4)} offset:{kt2*1152}")
    p("s_mov_b64 exec, 0xffffffff")
    for tt in range(4): p(f"ds_write_b16 v9, {v(ACC+16*tt+13)} offset:{(tt>>1)*1152+(tt&1)*8}")
    p("s_mov_b64 exec, -1")
    p("s_lshl_b32 s23, s17, 5")
    p("s_add_u32 s23, s23, s20")
    p(f"s_mul_i32 s23, s23, {REC}")
    p(f"s_add_u32 s23, s23, {hex(WS['QKV'])}")
    p("s_add_u32 s28, s23, 4096")
    p("s_waitcnt lgkmcnt(0)")
    for k in range(8): p(f"ds_read_b128 {v(144+4*k,4)}, v13 offset:{1024*k}")
    for k in range(8):
        if k == 7: p("s_mov_b64 exec, 0xffff")
        p(f"buffer_store_dwordx4 {v(144+4*k,4)}, v1, {WSD}, {s(23 if k < 4 else 28)} offen offset:{1024*(k%4)}")
    leave(p, "qkv")
    return [p]

def k_att():
    p = Prog("att")
    entry(p, "att", 256)
    O, SS, P, Q1, Q2 = 16, 80, 112, 128, 144
    KV = lambda b: 256 + 28 * b
    p("s_and_b32 s16, s2, 7")
    p("s_lshr_b32 s17, s2, 3")
    p("v_lshlrev_b32 v1, 4, v0")
    p("v_lshlrev_b32 v2, 3, v0")
    p("v_and_b32 v4, 31, v0")
    p("v_lshrrev_b32 v5, 5, v0")
    p("v_cmp_eq_u32 vcc, 20, v4")
    p("v_cndmask_b32 v3, v4, 17, vcc")
    p("v_lshlrev_b32 v3, 4, v3")
    p("v_mul_u32_u24 v6, 288, v5")
    p("v_add_u32 v3, v3, v6")
    p("v_add_u32 v3, 2560, v3")
    p(f"s_mul_i32 s18, s17, {32*REC}")
    p(f"s_add_u32 s18, s18, {hex(WS['QKV'])}")
    p("s_lshl_b32 s19, s16, 2")
    p("s_add_u32 s20, s19, s3")
    p("s_xor_b32 s21, s20, 1")
    p(f"s_mul_i32 s22, s20, {REC}")
    p(f"s_mul_i32 s23, s21, {REC}")
    p(f"s_mul_i32 s24, s19, {REC}")
    p(f"s_add_u32 s25, s18, {KVB}")
    p("s_add_u32 s22, s22, s25")
    p("s_add_u32 s23, s23, s25")
    p("s_add_u32 s24, s24, s18")
    p("s_mov_b32 s30, 0x0011ffff")
    p("s_mov_b32 s31, 0x0011ffff")
    for u in range(2):
        p(f"buffer_load_dwordx2 {v(160+2*u,2)}, v2, {WSD}, {s(22+u)} offen")
        for k in range(2): p(f"buffer_load_dwordx4 {v(Q1+8*u+4*k,4)}, v1, {WSD}, {s(22+u)} offen offset:{512+1024*k}")
    p(f"buffer_load_dwordx2 v[164:165], v2, {WSD}, s24 offen")
    p(f"buffer_load_dwordx4 v[168:171], v1, {WSD}, s24 offen offset:512")
    p("v_and_b32 v6, 27, v4")
    p("v_cmp_eq_u32 vcc, 17, v6")
    p("v_mov_b32 v7, 0x3f803f80")
    p("v_cndmask_b32 v7, 0, v7, vcc")
    for b in range(4):
        for u in range(16): p(f"v_accvgpr_write_b32 {R(KV(b)+8+u)}, v7")
    p("s_and_b32 s26, s3, 1")
    p(f"s_mul_i32 s26, s26, {2*REC}")
    p("s_add_u32 s26, s26, s18")
    p("s_mov_b32 s27, s16")
    def unit_addr(par):
        if par == 0:
            return [f"s_mul_i32 s28, s27, {4*REC}", "s_add_u32 s28, s28, s26", "s_add_u32 s27, s27, 1", "s_and_b32 s27, s27, 7"]
        return [f"s_add_u32 s28, s28, {REC}"]
    def unit_loads(b):
        k = KV(b)
        L = [f"buffer_load_dwordx2 {R(k+24,2)}, v2, {WSD}, s28 offen"]
        L += [f"buffer_load_dwordx4 {R(k+4*j,4)}, v1, {WSD}, s28 offen offset:{512+1024*j}" for j in range(2)]
        V = ["s_mov_b64 exec, s[30:31]"]
        V += [f"buffer_load_dwordx4 {R(k+8+4*j,4)}, v3, {WSD}, s28 offen offset:{576*j}" for j in range(4)]
        V += ["s_mov_b64 exec, -1"]
        return L, V
    for b in range(3):
        L, V = unit_loads(b)
        p.add(unit_addr(b & 1) + L + V)
    for u in range(64): p(f"v_mov_b32 {v(O+u)}, 0")
    for i in range(4):
        p(f"v_mov_b32 {v(Q2+4*i)}, {v(160+i)}")
        p(f"v_mov_b32 {v(Q2+4*i+1)}, 0")
        p(f"v_mov_b32 {v(Q2+4*i+2)}, 0")
    T = 176
    stamp(p, 1)
    for i in range(4):
        p(f"{M32} {v(T+16*i,16)}, v[168:171], {v(Q1+4*i,4)}, 0")
        p(f"{M32K8} {v(T+16*i,16)}, v[164:165], {v(Q2+4*i,2)}, {v(T+16*i,16)}")
    p("v_cmp_gt_u32 vcc, 32, v0")
    p("s_mov_b32 s29, 0x07060100")
    for i in range(4):
        t = T + 16 * i
        p(f"v_max3_f32 {v(t)}, {v(t)}, {v(t+1)}, {v(t+2)}")
        for u in range(3, 15, 2): p(f"v_max3_f32 {v(t)}, {v(t)}, {v(t+u)}, {v(t+u+1)}")
        p(f"v_max_f32 {v(t)}, {v(t)}, {v(t+15)}")
        p(f"v_cndmask_b32 {v(t)}, 0, -{v(t)}, vcc")
        p(f"v_perm_b32 {v(Q2+4*i)}, {v(t)}, {v(160+i)}, s29")
        p(f"v_perm_b32 {v(Q2+4*i+3)}, {v(t)}, {v(160+i)}, s29")
    def qk(n):
        b, kt2, i = (n >> 3) & 3, (n >> 2) & 1, n & 3
        d = v(SS + 16 * (n & 1), 16)
        return [f"{M32} {d}, {R(KV(b)+4*kt2,4)}, {v(Q1+4*i,4)}, 0",
                f"{M32K8} {d}, {R(KV(b)+24,2)}, {v(Q2+4*i+2*kt2,2)}, {d}"]
    def pv(n):
        b, kt2, i = (n >> 3) & 3, (n >> 2) & 1, n & 3
        d = v(O + 16 * i, 16)
        return [f"{M32} {d}, {R(KV(b)+8+8*kt2+4*t,4)}, {v(P+8*(n&1)+4*t,4)}, {d}" for t in range(2)]
    def slot(n, first=False, extra=()):
        sb, pb = SS + 16 * (n & 1), P + 8 * (n & 1)
        mf = qk(n + 1) + ([] if first else pv(n - 1))
        E = [f"v_exp_f32 {v(sb+u)}, {v(sb+u)}" for u in range(16)]
        C = [f"v_cvt_pk_bf16_f32 {v(pb+u)}, {v(sb+2*u)}, {v(sb+2*u+1)}" for u in range(8)]
        out = []
        for g in range(4):
            if g < len(mf): out.append(mf[g])
            out += E[4 * g:4 * g + 3]
            if g: out.append(C[2 * g - 1])
            out += [E[4 * g + 3], C[2 * g]]
            if g == 1: out += list(extra)
        out.append(C[7])
        return out
    stamp(p, 2)
    p.add(qk(0))
    p("s_mov_b32 s33, 4")
    p.add(slot(0, first=True))
    p("s_branch att_l1")
    p(".p2align 6")
    p("att_l0:")
    p.add(slot(32))
    p("att_l1:")
    for n in range(1, 32):
        ex = []
        b = ((n >> 3) + 3) & 3
        L, V = unit_loads(b)
        if n & 7 == 1: ex = unit_addr(b & 1) + L
        if n & 7 == 2: ex = V
        if n == 31: ex = ["s_sub_u32 s33, s33, 1", "s_cmp_lg_u32 s33, 0"]
        p.add(slot(n, extra=ex))
    p("s_cbranch_scc1 att_l0")
    p.add(pv(127))
    p("att_red:")
    stamp(p, 3)
    p("s_mul_i32 s28, s3, 5120")
    p("s_xor_b32 s29, s3, 1")
    p("s_mul_i32 s29, s29, 5120")
    p("v_add_u32 v6, s28, v1")
    p("v_add_u32 v7, s28, v2")
    p("v_add_u32 v8, s29, v1")
    p("v_add_u32 v9, s29, v2")
    for k in range(2):
        o = O + 32 + 16 * k
        p(f"ds_write_b128 v6, {v(o,4)} offset:{2560*k}")
        p(f"ds_write_b128 v6, {v(o+4,4)} offset:{2560*k+1024}")
        p(f"ds_write_b64 v7, {v(o+8,2)} offset:{2560*k+2048}")
    p("v_and_b32 v10, 7, v4")
    p("v_lshrrev_b32 v11, 4, v4")
    p("v_lshl_add_u32 v10, v11, 3, v10")
    p("v_bfe_u32 v11, v4, 3, 1")
    p("v_lshlrev_b32 v12, 4, v10")
    p("v_lshl_add_u32 v12, v5, 8, v12")
    p("v_lshl_add_u32 v12, v11, 14, v12")
    p("v_lshl_add_u32 v13, v11, 4, v10")
    p("v_lshl_add_u32 v13, v5, 5, v13")
    p("v_lshlrev_b32 v13, 2, v13")
    p("s_lshl_b32 s34, s20, 16")
    p("s_lshl_b32 s35, s17, 9")
    p("s_add_u32 s34, s34, s35")
    p(f"s_add_u32 s34, s34, {hex(WS['OP'])}")
    p("s_add_u32 s35, s34, 0x8000")
    p("s_lshl_b32 s36, s17, 13")
    p("s_lshl_b32 s37, s20, 8")
    p("s_add_u32 s36, s36, s37")
    p(f"s_add_u32 s36, s36, {hex(WS['OL'])}")
    p("s_waitcnt lgkmcnt(0)")
    p("s_barrier")
    for k in range(2):
        t = T + 16 * k
        p(f"ds_read_b64 {v(t+8,2)}, v9 offset:{2560*k+2048}")
        p(f"ds_read_b128 {v(t,4)}, v8 offset:{2560*k}")
        p(f"ds_read_b128 {v(t+4,4)}, v8 offset:{2560*k+1024}")
    for k in range(2):
        o, t = O + 16 * k, T + 16 * k
        p(f"v_add_f32 {v(o+9)}, {v(o+9)}, {v(t+9)}")
        p(f"v_rcp_f32 {v(o+10)}, {v(o+9)}")
        for u in (8, 0, 1, 2, 3, 4, 5, 6, 7): p(f"v_add_f32 {v(o+u)}, {v(o+u)}, {v(t+u)}")
        for u in range(9): p(f"v_mul_f32 {v(o+u)}, {v(o+u)}, {v(o+10)}")
        for u in range(4): p(f"v_cvt_pk_bf16_f32 {v(t+u)}, {v(o+2*u)}, {v(o+2*u+1)}")
        p(f"buffer_store_dwordx4 {v(t,4)}, v12, {WSD}, {s(34+k)} offen")
    p(f"v_permlane32_swap_b32 {v(O+8)}, {v(O+24)}")
    p(f"v_cvt_pk_bf16_f32 v14, {v(O+8)}, {v(O+24)}")
    p(f"buffer_store_dword v14, v13, {WSD}, s36 offen")
    leave(p, "att")
    return [p]

def k_oproj():
    p = Prog("oproj")
    entry(p, "oproj", 256)
    B, W, ACC, RS = 16, 96, 136, 160
    p("s_and_b32 s16, s2, 7")
    p("s_lshr_b32 s17, s2, 3")
    p("s_and_b32 s18, s17, 3")
    p("s_lshr_b32 s17, s17, 2")
    p("s_lshl_b32 s16, s16, 4")
    p("s_lshl_b32 s18, s18, 2")
    p("s_add_u32 s16, s16, s18")
    p("s_add_u32 s16, s16, s3")
    p("v_lshlrev_b32 v1, 4, v0")
    p("s_mul_i32 s18, s17, 92160")
    p("s_lshl_b32 s19, s3, 12")
    p("s_add_u32 s18, s18, s19")
    p(f"s_add_u32 s18, s18, {hex(WS['WO'])}")
    p("s_lshl_b32 s20, s16, 14")
    p(f"s_add_u32 s20, s20, {hex(WS['OP'])}")
    p("s_lshl_b32 s21, s16, 6")
    p(f"s_add_u32 s21, s21, {hex(WS['OL'])}")
    p("v_and_b32 v2, 15, v0")
    p("v_lshrrev_b32 v3, 4, v0")
    p("v_lshlrev_b32 v4, 15, v3")
    p("v_lshl_add_u32 v4, v2, 2, v4")
    for g in range(6):
        p(f"s_add_u32 m0, s19, {16384*g}")
        for k in range(4): p(f"buffer_load_dwordx4 v1, {WSD}, s18 offen offset:{1024*k} lds", tag="w")
        p("s_add_u32 s18, s18, 16384")
    for ks in range(16):
        p(f"buffer_load_dwordx4 {v(B+4*ks,4)}, v1, {WSD}, s20 offen offset:{1024*(ks%4)}")
        if ks % 4 == 3: p("s_add_u32 s20, s20, 4096")
    for k in range(8):
        p(f"buffer_load_dword {v(B+64+k)}, v4, {WSD}, s21 offen")
        p(f"s_add_u32 s21, s21, {8192*(13 if k == 3 else 1)}")
    p("s_lshr_b32 s22, s17, 2")
    p("s_and_b32 s23, s17, 3")
    p("s_mul_i32 s22, s22, 9")
    p("s_mul_i32 s24, s23, 5")
    p("s_lshr_b32 s24, s24, 1")
    p("s_add_u32 s24, s24, s22")
    p("s_lshl_b32 s24, s24, 10")
    p("s_add_u32 s25, s22, 4")
    p("s_lshl_b32 s25, s25, 10")
    p("s_and_b32 s26, s23, 2")
    p("s_lshl_b32 s26, s26, 2")
    p("s_add_u32 s25, s25, s26")
    p(f"s_mul_i32 s26, s16, {XT}")
    p("s_add_u32 s24, s24, s26")
    p("s_add_u32 s25, s25, s26")
    p(f"s_add_u32 s26, s24, {hex(WS['XP'])}")
    p(f"s_add_u32 s27, s25, {hex(WS['XP'])}")
    p(f"s_add_u32 s24, s24, {hex(WS['X2'])}")
    p(f"s_add_u32 s25, s25, {hex(WS['X2'])}")
    for k in range(2): p(f"buffer_load_dwordx4 {v(RS+4*k,4)}, v1, {WSD}, s26 offen offset:{1024*k}")
    p(f"buffer_load_dwordx2 {v(RS+8,2)}, v1, {WSD}, s27 offen")
    p("v_add_u32 v5, 0x8000, v1")
    p("s_add_u32 s28, s23, 1")
    p("s_and_b32 s28, s28, 2")
    p("s_lshl_b32 s29, s17, 14")
    p("s_lshl_b32 s30, s16, 7")
    p("s_add_u32 s29, s29, s30")
    p(f"s_add_u32 s29, s29, {hex(WS['ST'])}")
    p("v_lshlrev_b32 v6, 3, v2")
    stamp(p, 1)
    p("WAITVM w")
    p("s_barrier")
    stamp(p, 2)
    def wr(ks):
        b, o = (1, 5120 * ks) if ks < 10 else (5, 5120 * ks - 0x8000)
        return [f"ds_read_b128 {v(W+20*(ks%2)+4*t,4)}, {v(b)} offset:{o+1024*t}" for t in range(5)]
    p.add(wr(0))
    for ks in range(KS):
        mf = [f"{M16} {v(ACC+4*t,4)}, {v(W+20*(ks%2)+4*t,4)}, {v(B+4*ks,4)}, {'0' if ks == 0 else v(ACC+4*t,4)}" for t in range(5)]
        p.add(weave(mf, [(wr(ks + 1), 0, 5)] if ks + 1 < KS else [], None))
    T = 176
    def fin(u0, n):
        for u in range(u0, u0 + n, 2): p.add(unpack(T + u, RS + u // 2))
        for u in range(u0, u0 + n): p(f"v_add_f32 {v(T+u)}, {v(T+u)}, {v(ACC+u)}")
        for u in range(u0, u0 + n, 2): p(f"v_cvt_pk_bf16_f32 {v(200+u//2)}, {v(T+u)}, {v(T+u+1)}")
    def stat(u0, n):
        for u in range(u0, u0 + n):
            p(f"v_add_f32 v8, v8, {v(T+u)}")
            p(f"v_fmac_f32 v9, {v(T+u)}, {v(T+u)}")
    stamp(p, 3)
    p("v_mov_b32 v8, 0")
    p("v_mov_b32 v9, 0")
    fin(0, 16)
    for k in range(2): p(f"buffer_store_dwordx4 {v(200+4*k,4)}, v1, {WSD}, s24 offen offset:{1024*k}")
    p("s_cmp_eq_u32 s28, 0")
    p("s_cbranch_scc1 oproj_nohalf", take="both")
    fin(16, 4)
    p(f"buffer_store_dwordx2 v[208:209], v1, {WSD}, s25 offen")
    stat(16, 4)
    p("oproj_nohalf:")
    stat(0, 16)
    xsum(p, [8, 9], 10, [4, 5])
    p("s_mov_b64 exec, 0xffff")
    p(f"buffer_store_dwordx2 v[8:9], v6, {WSD}, s29 offen")
    leave(p, "oproj")
    return [p]

def k_up():
    p = Prog("up")
    entry(p, "up", 256)
    W, ACC, C1, IR2, T, HO = 16, 48, 176, 180, 184, 200
    p("s_and_b32 s16, s2, 7")
    p("s_lshr_b32 s17, s2, 3")
    p("s_and_b32 s18, s16, 1")
    p("s_lshr_b32 s16, s16, 1")
    p("s_lshl_b32 s18, s18, 2")
    p("s_and_b32 s19, s17, 3")
    p("s_add_u32 s18, s18, s19")
    p("s_lshr_b32 s17, s17, 2")
    p("s_lshl_b32 s16, s16, 3")
    p("s_add_u32 s17, s17, s16")
    p("s_lshl_b32 s18, s18, 2")
    p("s_add_u32 s18, s18, s3")
    p("v_lshlrev_b32 v1, 4, v0")
    p("v_lshlrev_b32 v2, 3, v0")
    p(f"s_mul_i32 s20, s17, {CH13}")
    p("s_mul_i32 s19, s3, 6144")
    p("s_add_u32 s20, s20, s19")
    p(f"s_add_u32 s20, s20, {hex(WS['W13'])}")
    p(f"s_mul_i32 s21, s18, {4*XT}")
    p(f"s_add_u32 s24, s21, {hex(WS['X2'])}")
    for t in range(1, 4): p(f"s_add_u32 {s(24+t)}, {s(23+t)}, {XT}")
    def dma(stage):
        tag = f"w{stage % 6}"
        L = []
        for h in range(2):
            L.append(f"s_add_u32 m0, s19, {24576*(stage%6)+3072*h}")
            L += [(f"buffer_load_dwordx4 v1, {WSD}, s20 offen offset:{1024*k} lds", tag) for k in range(3)]
            L.append(f"s_add_u32 s20, s20, {3072 if h == 0 else 24576-3072}")
        return L
    def xl(ks):
        L = [f"buffer_load_dwordx4 {R(xreg(4*ks+t),4)}, v1, {WSD}, {s(24+t)} offen offset:{1024*(ks%4)}" for t in range(4)]
        if ks % 4 == 3: L += [f"s_add_u32 {s(24+t)}, {s(24+t)}, 4096" for t in range(4)]
        return L
    p.add(dma(0))
    LA = 5
    for ks in range(LA): p.add(xl(ks))
    p("s_lshl_b32 s22, s18, 9")
    p(f"s_add_u32 s22, s22, {hex(WS['ST'])}")
    for k in range(8):
        p(f"buffer_load_dwordx2 {v(ACC+64+2*k,2)}, v2, {WSD}, s22 offen")
        p("s_add_u32 s22, s22, 16384")
    p.add(dma(1))
    p("v_add_u32 v3, 49152, v1")
    p("v_add_u32 v4, 98304, v1")
    p("s_lshr_b32 s22, s17, 1")
    p("s_and_b32 s23, s17, 1")
    p("s_mul_i32 s22, s22, 9216")
    p(f"s_mul_i32 s28, s18, {4*HT}")
    p("s_add_u32 s22, s22, s28")
    p(f"s_add_u32 s22, s22, {hex(WS['HP'])}")
    p("s_mul_i32 s28, s23, 5120")
    p("s_add_u32 s28, s28, s22")
    p("s_lshl_b32 s23, s23, 3")
    p("s_add_u32 s32, s22, s23")
    p("s_add_u32 s32, s32, 4096")
    for t in range(1, 4):
        p(f"s_add_u32 {s(28+t)}, {s(27+t)}, {HT}")
        p(f"s_add_u32 {s(32+t)}, {s(31+t)}, {HT}")
    p("v_and_b32 v5, 15, v0")
    p("v_lshlrev_b32 v5, 2, v5")
    z = ACC + 64
    stats = []
    for k in range(1, 8):
        stats += [f"v_add_f32 {v(z)}, {v(z)}, {v(z+2*k)}", f"v_add_f32 {v(z+1)}, {v(z+1)}, {v(z+2*k+1)}"]
    stats += [f"v_mul_f32 {v(z)}, {fl(1/D)}, {v(z)}", f"v_mul_f32 {v(z+1)}, {fl(1/D)}, {v(z+1)}",
              f"v_fma_f32 {v(z+1)}, -{v(z)}, {v(z)}, {v(z+1)}", f"v_max_f32 {v(z+1)}, 0, {v(z+1)}",
              f"v_add_f32 {v(z+1)}, {fl(1e-5)}, {v(z+1)}", f"v_rsq_f32 {v(z)}, {v(z+1)}", "s_nop 0",
              f"v_mul_f32 {v(z)}, {fl(-LOG2E)}, {v(z)}"]
    for t in range(4):
        stats += [f"ds_bpermute_b32 {v(C1+t)}, v5, {v(z)} offset:{64*t}", f"ds_bpermute_b32 {v(IR2+t)}, v5, {v(z+1)} offset:{64*t}"]

    def rd(off, dst):
        b, o = (1, off) if off < 49152 else ((3, off - 49152) if off < 98304 else (4, off - 98304))
        return f"ds_read_b128 {v(dst,4)}, {v(b)} offset:{o}"
    def wr(pas, ks):
        if pas < 4:
            return [rd(73728 * (pas % 2) + 4096 * ks + 1024 * t, W + 16 * (ks % 2) + 4 * t) for t in range(4)]
        return [rd(2048 * ks + 1024 * t, W + 16 * (ks % 2) + 4 * t) for t in range(2)]
    def epi(acc, nb, sreg):
        L = []
        for tt in range(4):
            for b in range(nb):
                g = acc + 16 * tt + 8 * b
                u = g + 4
                t = T + 4 * ((2 * tt + b) % 2)
                L += [f"v_mul_f32 {v(t+i)}, {v(g+i)}, {v(C1+tt)}" for i in range(4)]
                L += [f"v_exp_f32 {v(t+i)}, {v(t+i)}" for i in range(4)]
                L += [f"v_mul_f32 {v(g+i)}, {v(g+i)}, {v(u+i)}" for i in range(2)]
                L += [f"v_fma_f32 {v(t+i)}, {v(t+i)}, {v(IR2+tt)}, {v(IR2+tt)}" for i in range(4)]
                L += [f"v_rcp_f32 {v(t+i)}, {v(t+i)}" for i in range(4)]
                L += [f"v_mul_f32 {v(g+i)}, {v(g+i)}, {v(u+i)}" for i in range(2, 4)]
                L += [f"v_mul_f32 {v(g+i)}, {v(g+i)}, {v(t+i)}" for i in range(4)]
                o = HO + 4 * (tt % 2) + 2 * b
                L += [f"v_cvt_pk_bf16_f32 {v(o+i)}, {v(g+2*i)}, {v(g+2*i+1)}" for i in range(2)]
            if nb == 2:
                L += [f"buffer_store_dwordx4 {v(HO+4*(tt%2),4)}, v1, {WSD}, {s(sreg+tt)} offen", f"s_add_u32 {s(sreg+tt)}, {s(sreg+tt)}, 1024"]
            else:
                L += [f"buffer_store_dwordx2 {v(HO+4*(tt%2),2)}, v1, {WSD}, {s(sreg+tt)} offen"]
        return L
    def sync(stage):
        return [f"WAITVM w{stage % 6}", "s_barrier"]
    def gpass(pas, nxt, extra, dmas):
        nt = 4 if pas < 4 else 2
        acc = ACC + 64 * (pas % 2)
        main, st = [], []
        per = 4 * nt
        for ks in range(KS):
            pre = []
            if pas < 4 and ks % 6 == 5 and (ks < 17 or nxt is not None): pre = sync(3 * pas + ks // 6 + 1)
            if pas == 4 and ks == 11: pre = sync(13)
            for t in range(nt):
                for tt in range(4):
                    d = v(acc + 16 * tt + 4 * t, 4)
                    m = f"{M16} {d}, {v(W+16*(ks%2)+4*t,4)}, {R(xreg(4*ks+tt),4)}, {'0' if ks == 0 else d}"
                    main.append([m] + pre if pre else m)
                    pre = []
            rs = wr(pas, ks + 1) if ks + 1 < KS else (wr(nxt, 0) if nxt is not None else [])
            st.append((rs, per * ks, per * ks + per // 2))
            if ks in dmas: st.append((dma(dmas[ks]), per * ks, per * (ks + 3)))
        return weave(main, st + extra, None)
    stamp(p, 1)
    p.add(sync(0))
    stamp(p, 2)
    p.add(wr(0, 0))
    xs = [(xl(ks + LA), 16 * ks + 4, 16 * ks + 16) for ks in range(KS - LA)]
    p.add(gpass(0, 1, xs + [(stats, 16 * 13, 16 * 17)], {3: 2, 9: 3, 12: 4, 15: 5}))
    stamp(p, 3)
    p("s_mov_b32 s36, 0")
    p(".p2align 3")
    p("up_loop:")
    body = gpass(1, 2, [(epi(ACC, 2, 28), 8, 280)], {0: 6, 6: 7, 12: 8})
    p.add(body)
    p("s_cmp_lg_u32 s36, 0")
    p("s_cbranch_scc1 up_last", take=[False, True])
    p.add(gpass(2, 1, [(epi(ACC + 64, 2, 28), 8, 280)], {0: 9, 6: 10, 12: 11}))
    p("s_mov_b32 s36, 1")
    p("s_branch up_loop")
    p("up_last:")
    stamp(p, 4)
    p.add(gpass(4, None, [(epi(ACC + 64, 2, 28), 4, 144)], {}))
    stamp(p, 5)
    p.add(epi(ACC, 1, 32))
    leave(p, "up")
    return [p]

def k_down():
    p = Prog("down")
    entry(p, "down", 256)
    W, ACC, T = 16, 96, 176
    HB = lambda k, tt: 256 + 8 * (k % 12) + 4 * tt
    p("s_and_b32 s16, s2, 7")
    p("s_lshr_b32 s17, s2, 3")
    p("s_and_b32 s18, s16, 1")
    p("s_lshr_b32 s16, s16, 1")
    p("s_lshl_b32 s18, s18, 3")
    p("s_and_b32 s19, s17, 7")
    p("s_add_u32 s18, s18, s19")
    p("s_lshr_b32 s17, s17, 3")
    p("s_lshl_b32 s18, s18, 2")
    p("s_add_u32 s18, s18, s3")
    p("v_lshlrev_b32 v1, 4, v0")
    p("s_lshl_b32 s20, s16, 2")
    p("s_add_u32 s20, s20, s17")
    p(f"s_mul_i32 s20, s20, {36*9216}")
    p("s_mul_i32 s19, s3, 9216")
    p("s_add_u32 s20, s20, s19")
    p(f"s_add_u32 s20, s20, {hex(WS['W2'])}")
    p(f"s_mul_i32 s24, s18, {2*HT}")
    p("s_mul_i32 s21, s16, 36864")
    p("s_add_u32 s24, s24, s21")
    p(f"s_add_u32 s24, s24, {hex(WS['HP'])}")
    p(f"s_add_u32 s25, s24, {HT}")
    def dma(stage):
        tag = f"w{stage % 3}"
        L = []
        for h in range(3):
            L.append(f"s_add_u32 m0, s19, {36864*(stage%3)+3072*h}")
            L += [(f"buffer_load_dwordx4 v1, {WSD}, s20 offen offset:{1024*k} lds", tag) for k in range(3)]
            L.append(f"s_add_u32 s20, s20, {3072 if h < 2 else 36864-6144}")
        return L
    def hl(k):
        L = [f"buffer_load_dwordx4 {R(HB(k,tt),4)}, v1, {WSD}, {s(24+tt)} offen offset:{1024*(k%4)}" for tt in range(2)]
        if k % 4 == 3: L += [f"s_add_u32 {s(24+tt)}, {s(24+tt)}, 4096" for tt in range(2)]
        return L
    p.add(dma(0))
    for k in range(4): p.add(hl(k))
    p.add(dma(1))
    for k in range(4, 11): p.add(hl(k))
    p("v_add_u32 v3, 55296, v1")
    for u in range(72): p(f"v_mov_b32 {v(ACC+u)}, 0")
    p("s_lshr_b32 s22, s17, 1")
    p("s_and_b32 s23, s17, 1")
    p("s_mul_i32 s22, s22, 9216")
    p(f"s_mul_i32 s28, s18, {2*XT}")
    p("s_add_u32 s22, s22, s28")
    p(f"s_mul_i32 s28, s16, {XSZ}")
    p("s_add_u32 s22, s22, s28")
    p(f"s_add_u32 s22, s22, {hex(WS['PART'])}")
    p("s_mul_i32 s28, s23, 5120")
    p("s_add_u32 s28, s28, s22")
    p("s_lshl_b32 s23, s23, 3")
    p("s_add_u32 s30, s22, s23")
    p("s_add_u32 s30, s30, 4096")
    p(f"s_add_u32 s29, s28, {XT}")
    p(f"s_add_u32 s31, s30, {XT}")
    def wr(k):
        off = 9216 * (k % 12)
        b, o = (1, off) if off < 55296 else (3, off - 55296)
        return [f"ds_read_b128 {v(W+36*(k%2)+4*t,4)}, {v(b)} offset:{o+1024*t}" for t in range(9)]
    stamp(p, 1)
    p("WAITVM w0")
    p("s_barrier")
    stamp(p, 2)
    p.add(wr(0))
    p.add(dma(2))
    p("s_mov_b32 s36, 3")
    p(".p2align 3")
    p("down_loop:")
    main, st = [], []
    for k in range(12):
        pre = ["s_waitcnt lgkmcnt(0)", f"WAITVM w{(k//4+1) % 3}", "s_barrier"] if k % 4 == 3 else []
        for t in range(9):
            for tt in range(2):
                d = v(ACC + 36 * tt + 4 * t, 4)
                m = f"{M16} {d}, {v(W+36*(k%2)+4*t,4)}, {R(HB(k,tt),4)}, {d}"
                main.append(pre + [m] if pre else m)
                pre = []
        st.append((wr(k + 1), 18 * k, 18 * k + 14))
        st.append((hl(k + 11), 18 * k + 1, 18 * k + 9))
        if k % 4 == 3: st.append((dma(k // 4), 18 * k + 1, 18 * k + 18))
    st.append((["s_sub_u32 s36, s36, 1"], 18 * 10, 18 * 10 + 1))
    p.add(weave(main, st, None))
    p("s_cmp_lg_u32 s36, 0")
    p("s_cbranch_scc1 down_loop")
    stamp(p, 3)
    for tt in range(2):
        for k in range(4):
            o = T + 20 * tt + 4 * k
            for u in range(4): p(f"v_cvt_pk_bf16_f32 {v(o+u)}, {v(ACC+36*tt+8*k+2*u)}, {v(ACC+36*tt+8*k+2*u+1)}")
            p(f"buffer_store_dwordx4 {v(o,4)}, v1, {WSD}, {s(28+tt)} offen offset:{1024*k}")
        o = T + 20 * tt + 16
        for u in range(2): p(f"v_cvt_pk_bf16_f32 {v(o+u)}, {v(ACC+36*tt+32+2*u)}, {v(ACC+36*tt+33+2*u)}")
        p(f"buffer_store_dwordx2 {v(o,2)}, v1, {WSD}, {s(30+tt)} offen")
    leave(p, "down")
    return [p]

def k_red(mode):
    nm = "red" + mode
    p = Prog(nm)
    entry(p, nm, 256)
    lnp(p, mode, nm + "_ln")
    leave(p, nm)
    return [p]

def kd(name, nv, acc):
    return f""".p2align 6
.amdhsa_kernel {name}_kernel
  .amdhsa_next_free_vgpr {nv}
  .amdhsa_next_free_sgpr 96
  .amdhsa_accum_offset {acc}
  .amdhsa_group_segment_fixed_size 0
  .amdhsa_kernarg_size 80
  .amdhsa_user_sgpr_count 2
  .amdhsa_user_sgpr_kernarg_segment_ptr 1
  .amdhsa_system_sgpr_workgroup_id_x 1
.end_amdhsa_kernel
"""

def build(extra_nops=0):
    K = {"prep": (k_prep(), 457, 256, 256, 256), "qkv": (k_qkv(), 256, 73728 + 4 * REC + 1024, 512, 256),
         "att": (k_att(), 256, 20480, 512, 256), "oproj": (k_oproj(), 256, 98304, 256, 256),
         "up": (k_up(), 256, 147456, 512, 256), "down": (k_down(), 256, 110592, 512, 256),
         "redmid": (k_red("mid"), 256, 256, 128, 128), "redout": (k_red("out"), 256, 0, 128, 128)}
    order = ["prep"] + ["qkv", "att", "oproj", "up", "down", "redmid"] + ["qkv", "att", "oproj", "up", "down", "redout"]
    order += ["redout"] * extra_nops
    head = [l for l in open(f"cdna_kernels/{NAME}.s.ref").read().split("\n") if l.startswith(";") and "@launch" not in l and "Override" not in l and "grid=ceil" not in l]
    out = "\n".join(head) + "\n"
    for n in order: out += f"; @launch kernel={n}_kernel grid=({K[n][1]},1,1) block=(256,1,1) lds={K[n][2]}\n"
    out += '.amdgcn_target "amdgcn-amd-amdhsa--gfx950"\n.text\n'
    for n, (progs, *_r) in K.items():
        for q in progs: out += q.finalize(verbose=True).text()
    out += '.section .rodata,"a"\n'
    for n, (progs, g, lds, nv, acc) in K.items(): out += kd(n, nv, acc)
    return out

if __name__ == "__main__":
    if "diag" in sys.argv:
        DIAG = True
        sys.argv.remove("diag")
    dst = sys.argv[1] if len(sys.argv) > 1 else f"cdna_kernels/{NAME}.s"
    open(dst, "w").write(build(int(sys.argv[2]) if len(sys.argv) > 2 else 0))
```

```python
from layout import S, D, H, DH, F, KS, XT, XSZ, CH13, REC, KVB, HT
def _alloc(items):
    off, m = 0, {}
    for name, size in items:
        m[name] = off
        off = (off + size + 0xFFFF) & ~0xFFFF
    m["END"] = off
    return m
WS = _alloc([("DIAG", 1 << 20), ("WQKV", 32 * 72 * 1024), ("WO", 8 * 90 * 1024 + 8192), ("W13", 32 * CH13), ("W2", 16 * 36 * 9216)])
FS = 128
AC = _alloc([("FLAG", 4608 * FS), ("XP", XSZ), ("XN", XSZ), ("KV", 32 * 32 * KVB), ("OP", 128 * 16384), ("OL", 32 * 8192),
             ("X2", XSZ), ("ST", 8 * 2048 * 8), ("HP", 128 * HT), ("PART", 4 * XSZ)])
ACT0 = WS["END"]
LSZ = AC["END"]
FQ, FA, FU, FD, FO, FR = (AC["FLAG"] + k * FS for k in (0, 1024, 2048, 3072, 4096, 4352))
TOTAL = ACT0 + 2 * LSZ
def hpos(fsl):
    e, rem = divmod(fsl, 9)
    return 8 * rem + 2 * e if rem < 4 else (32 + e if rem == 4 else 8 * (rem - 5) + 2 * e + 1)
if __name__ == "__main__":
    print(WS, AC, hex(ACT0), hex(LSZ), hex(TOTAL))
```

```python
import math, struct, sys
import gen as G
from gen import fl, M16, M32, M32K8, srd, unpack, xsum, LOG2E, NAME, kd, xreg
from asmb import Prog, v, a, s, R, pack, I
from layout2 import *

WSD = s(4, 4)
ACD = s(48, 4)
DIAG = False
OPT = dict(sig_slot=2, poll_slot=7, chk_slot=10, la_q=6, la_u=6)
SPIN = 200000

NAMES = []
def stamp_items(name):
    if not DIAG: return []
    if name not in NAMES: NAMES.append(name)
    i = NAMES.index(name)
    return [["s_memtime s[62:63]", "s_waitcnt lgkmcnt(0)", f"v_writelane_b32 v223, s62, {i}", f"v_writelane_b32 v221, s14, {i}"]]
SN = "start,go,wbar,qkvmain,attpro,attloop,attepi,sigA,pollA,opmain,opepi,sigO,pollO,up0,up123,down,dnepi,sigD,pollD,red,end".split(",")
def stamp(p, i):
    p.add(flat(stamp_items(SN[i] if isinstance(i, int) else i)))

def signal(off_sgpr, val, tmp):
    return [f"v_mov_b32 {v(tmp)}, {val}",
            ["s_mov_b64 exec, 1", f"buffer_store_dword {v(tmp)}, off, {ACD}, {off_sgpr} sc1", "s_mov_b64 exec, -1"]]

def flat(L):
    out = []
    for x in L: out += x if isinstance(x, list) else [x]
    return out

class Spins:
    def __init__(self): self.code = Prog("spin"); self.n = 0
    def check(self, voff, off_sgpr, val, tmp):
        k = self.n; self.n += 1
        q = self.code
        q(f"spin{k}:")
        q("s_sub_u32 s14, s14, 1")
        q(f"s_cbranch_scc1 spin{k}_out")
        q(f"buffer_load_dword {v(tmp)}, {v(voff)}, {ACD}, {off_sgpr} offen sc1")
        q("s_waitcnt vmcnt(0)")
        q(f"v_cmp_gt_u32 vcc, {val}, {v(tmp)}")
        q("s_cmp_lg_u64 vcc, 0")
        q(f"s_cbranch_scc1 spin{k}", take=False)
        q(f"s_branch back{k}", take=[False])
        q(f"spin{k}_out:")
        q("s_mov_b32 s14, 0")
        q(f"s_branch back{k}", take=[False])
        return [[f"v_cmp_gt_u32 vcc, {val}, {v(tmp)}", "s_cmp_lg_u64 vcc, 0", f"s_cbranch_scc1 spin{k}", f"back{k}:"]]
    def load(self, voff, off_sgpr, tmp):
        return [f"buffer_load_dword {v(tmp)}, {v(voff)}, {ACD}, {off_sgpr} offen sc1"]

QW = 36864
RB = 110592
SCR = 143360
WOL = 49152
LNS = 147456

def mega():
    p = Prog("mega")
    sp = Spins()
    nm = "main"
    p(f".globl {nm}_kernel\n.p2align 8\n.type {nm}_kernel,@function\n{nm}_kernel:")
    p("s_cmp_ge_u32 s2, 256")
    p(f"s_cbranch_scc1 {nm}_end")
    if DIAG:
        p("s_memrealtime s[58:59]")
        p("v_mov_b32 v223, 0")
        p("v_mov_b32 v221, 0")
    srd(p, 4, "ws", TOTAL)
    p("v_lshrrev_b32 v1, 6, v0")
    p("v_and_b32 v0, 63, v0")
    p("v_readfirstlane_b32 s3, v1")
    p("v_lshlrev_b32 v1, 4, v0")
    p("v_lshlrev_b32 v2, 3, v0")
    p("s_and_b32 s16, s2, 7")
    p("s_lshr_b32 s17, s2, 3")
    p("s_and_b32 s8, s16, 1")
    p("s_lshl_b32 s8, s8, 2")
    p("s_and_b32 s18, s17, 3")
    p("s_add_u32 s8, s8, s18")
    p("s_lshr_b32 s9, s16, 1")
    p("s_lshl_b32 s9, s9, 3")
    p("s_lshr_b32 s17, s17, 2")
    p("s_add_u32 s9, s9, s17")
    p("s_lshl_b32 s10, s8, 2")
    p("s_add_u32 s10, s10, s3")
    p("s_mov_b32 s13, 0")
    p(f"s_mov_b32 s14, {SPIN}")
    p("s_mul_i32 s11, s9, 73728")
    p(f"s_add_u32 s11, s11, {hex(WS['WQKV'])}")
    p(f"s_add_u32 s48, s4, {hex(ACT0)}")
    p("s_addc_u32 s49, s5, 0")
    p(f"s_mov_b32 s50, {hex(2*LSZ)}")
    p("s_mov_b32 s51, 0x00020000")
    stamp(p, 0)
    p("s_mul_i32 s19, s3, 18432")
    p("s_add_u32 s20, s19, s11")
    for g in range(6):
        p(f"s_add_u32 m0, s19, {QW+3072*g}")
        for k in range(3): p(f"buffer_load_dwordx4 v1, {WSD}, s20 offen offset:{1024*k} lds", tag="wq")
        p("s_add_u32 s20, s20, 3072")
    p("s_branch qkv_go")

    p("layer:")
    p("v_and_b32 v3, 7, v0")
    p(f"v_mul_u32_u24 v3, {FS}, v3")
    p(f"s_mul_i32 s16, s10, {8*FS}")
    p(f"s_add_u32 s16, s16, {FR}")
    p.add(sp.load(3, "s16", 4))
    p.add(flat(sp.check(3, "s16", 1, 4)))
    p("qkv_go:")
    stamp(p, 1)
    p(f"s_mul_i32 s24, s10, {4*XT}")
    p(f"s_add_u32 s24, s24, {hex(AC['XN'])}")
    for t in range(1, 4): p(f"s_add_u32 {s(24+t)}, {s(23+t)}, {XT}")
    xq = lambda ks, t: 256 + 16 * (ks % 9) + 4 * t
    def xlq(ks):
        L = [f"buffer_load_dwordx4 {R(xq(ks,t),4)}, v1, {ACD}, {s(24+t)} offen offset:{1024*(ks%4)} sc1" for t in range(4)]
        if ks % 4 == 3: L += [f"s_add_u32 {s(24+t)}, {s(24+t)}, 4096" for t in range(4)]
        return L
    LA = OPT["la_q"]
    for ks in range(LA): p.add(xlq(ks))
    p(f"v_add_u32 v14, {QW}, v1")
    p(f"v_add_u32 v15, {QW+0x8000}, v1")
    KK = lambda b: 256 + 152 + 10 * b
    VV = lambda b: 256 + 192 + 16 * b
    setup = f"""v_and_b32 v4, 15, v0
v_lshrrev_b32 v3, 4, v0
s_mul_i32 s22, s3, {REC}
s_add_u32 s22, s22, {RB}
v_lshrrev_b32 v6, 3, v4
v_and_b32 v5, 7, v4
v_lshl_add_u32 v11, v6, 4, v5
v_and_b32 v5, 1, v3
v_lshl_add_u32 v11, v5, 5, v11
v_cmp_gt_u32 vcc, 2, v3
v_mov_b32 v5, {KVB}
s_add_u32 s23, s22, 512
v_cndmask_b32 v6, 0, v5, vcc
v_cndmask_b32 v7, v5, 0, vcc
v_lshl_add_u32 v6, v11, 4, v6
v_lshl_add_u32 v7, v11, 3, v7
v_add_u32 v6, s23, v6
v_add_u32 v7, s22, v7
s_add_u32 s23, s22, 2560
v_mul_u32_u24 v8, 288, v3
v_lshl_add_u32 v8, v4, 4, v8
v_add_u32 v8, s23, v8
v_lshrrev_b32 v9, 2, v4
v_mul_u32_u24 v9, 288, v9
v_lshl_add_u32 v9, v3, 4, v9
v_and_b32 v10, 3, v4
v_lshl_add_u32 v9, v10, 1, v9
s_add_u32 s23, s23, 256
v_add_u32 v9, s23, v9
v_mov_b32 v5, {fl(LOG2E / math.sqrt(DH))}
v_cndmask_b32 v10, 1.0, v5, vcc
v_cndmask_b32 v11, v5, 1.0, vcc
v_cndmask_b32 v12, 0, 1.0, vcc
v_add_u32 v13, s22, v1
v_and_b32 v4, 31, v0
v_lshrrev_b32 v5, 5, v0
v_cmp_eq_u32 vcc, 20, v4
s_mul_i32 s18, s9, {32*KVB}
s_add_u32 s18, s18, {hex(AC['KV'])}
v_cndmask_b32 v3, v4, 17, vcc
v_lshlrev_b32 v3, 4, v3
v_mul_u32_u24 v208, 288, v5
v_add_u32 v3, v3, v208
v_add_u32 v3, 2560, v3
v_and_b32 v208, 27, v4
v_cmp_eq_u32 vcc, 17, v208
v_mov_b32 v209, 0x3f803f80
s_mul_i32 s23, s10, {KVB}
s_add_u32 s23, s23, s18
v_cndmask_b32 v209, 0, v209, vcc
s_add_u32 s21, s23, 4096
s_xor_b32 s16, s3, 1
s_mul_i32 s16, s16, {REC}
s_add_u32 s16, s16, {RB}
s_and_b32 s17, s3, 1
s_mul_i32 s19, s17, {2*REC}
s_add_u32 s19, s19, {RB}
v_add_u32 v210, s22, v2
v_add_u32 v211, s16, v1
v_add_u32 v212, s16, v2
v_add_u32 v213, s19, v1
v_add_u32 v214, s19, v2
v_add_u32 v215, s19, v3
v_add_u32 v216, {RB}, v1
v_add_u32 v217, {RB}, v2
s_mov_b32 s30, 0x0011ffff
s_mov_b32 s31, 0x0011ffff""".split("\n")
    setup += [f"v_accvgpr_write_b32 {R(VV(0)+u)}, v209" for u in range(64)]
    p("WAITVM wq")
    p("s_barrier")
    stamp(p, 2)
    W, ACC = 16, 48
    def wrq(ks):
        b, o = (14, 4096 * ks) if ks < 12 else (15, 4096 * ks - 0x8000)
        return [f"ds_read_b128 {v(W+16*(ks%2)+4*t,4)}, {v(b)} offset:{o+1024*t}" for t in range(4)]
    p.add(wrq(0))
    p("s_waitcnt lgkmcnt(0)")
    main, st = [], []
    for ks in range(KS):
        for t in range(4):
            for tt in range(4):
                d = v(ACC + 16 * tt + 4 * t, 4)
                w, x = v(W + 16 * (ks % 2) + 4 * t, 4), R(xq(ks, tt), 4)
                A, B = (x, w) if t == 2 else (w, x)
                main.append(f"{M16} {d}, {A}, {B}, {'0' if ks == 0 else d}")
        if ks + 1 < KS:
            st.append((["s_waitcnt lgkmcnt(0)"], 16 * ks + 15, 16 * ks + 16))
            st.append((wrq(ks + 1), 16 * ks + 4, 16 * ks + 8))
        if ks + LA < KS: st.append((xlq(ks + LA), 16 * ks + 4, 16 * ks + 14))
    st.append((setup, 20, 280))
    p.add(pack(main, st, report="qkv"))
    stamp(p, 3)
    T = 112
    for tt in range(4):
        A0 = ACC + 16 * tt
        kt2, ab = tt >> 1, tt & 1
        for u in range(8): p(f"v_mul_f32 {v(A0+u)}, {v(A0+u)}, v10")
        for u in range(4): p(f"v_cvt_pk_bf16_f32 {v(T+4*tt+u)}, {v(A0+2*u)}, {v(A0+2*u+1)}")
        p(f"ds_write_b128 v6, {v(T+4*tt,4)} offset:{kt2*1024+ab*128}")
        for u in range(2): p(f"v_cvt_pk_bf16_f32 {v(T+16+4*kt2+2*ab+u)}, {v(A0+8+2*u)}, {v(A0+9+2*u)}")
        if ab: p(f"ds_write_b128 v8, {v(T+16+4*kt2,4)} offset:{kt2*1152}")
        p(f"v_mul_f32 {v(A0+12)}, {v(A0+12)}, v11")
        p(f"v_cvt_pk_bf16_f32 {v(A0+13)}, {v(A0+13)}, {v(A0+13)}")
        p(f"v_cvt_pk_bf16_f32 {v(A0+12)}, {v(A0+12)}, v12")
        p(f"ds_write_b32 v7, {v(A0+12)} offset:{ab*64+kt2*4}")
    p("s_mov_b64 exec, 0xffffffff")
    for tt in range(4): p(f"ds_write_b16 v9, {v(ACC+16*tt+13)} offset:{(tt>>1)*1152+(tt&1)*8}")
    p("s_mov_b64 exec, -1")
    for k in range(5): p(f"ds_read_b128 {v(176+4*k,4)}, v13 offset:{1024*k}")
    p("s_waitcnt lgkmcnt(5)")
    p("s_barrier")

    O, SS, P, Q1, Q2 = 16, 80, 112, 128, 144
    p(f"ds_read_b64 v[160:161], v210 offset:{KVB}")
    p(f"ds_read_b64 v[162:163], v212 offset:{KVB}")
    p("ds_read_b64 v[164:165], v217")
    p("ds_read_b128 v[168:171], v216 offset:512")
    for u in range(2):
        for k in range(2): p(f"ds_read_b128 {v(Q1+8*u+4*k,4)}, {v(211 if u else 13)} offset:{KVB+512+1024*k}")
    for k in range(5):
        if k == 4: p("s_mov_b32 exec_hi, 0xffff")
        p(f"buffer_store_dwordx4 {v(176+4*k,4)}, v1, {ACD}, {s(23 if k < 4 else 21)} offen offset:{1024*(k%4)} sc1", tag="kv")
    p("s_mov_b64 exec, -1")
    for i in range(4):
        p(f"v_mov_b32 {v(Q2+4*i)}, {v(160+i)}")
        p(f"v_mov_b32 {v(Q2+4*i+1)}, 0")
        p(f"v_mov_b32 {v(Q2+4*i+2)}, 0")
    for b in range(2):
        p(f"ds_read_b64 {R(KK(b)+8,2)}, v214 offset:{REC*b}")
        for j in range(2): p(f"ds_read_b128 {R(KK(b)+4*j,4)}, v213 offset:{REC*b+512+1024*j}")
    for i in range(4):
        p(f"{M32} {v(O+16*i,16)}, v[168:171], {v(Q1+4*i,4)}, 0")
        p(f"{M32K8} {v(O+16*i,16)}, v[164:165], {v(Q2+4*i,2)}, {v(O+16*i,16)}")
    p("s_mov_b64 exec, s[30:31]")
    for b in range(2):
        for j in range(4): p(f"ds_read_b128 {R(VV(b)+4*j,4)}, v215 offset:{REC*b+576*j}")
    p("s_mov_b64 exec, -1")
    p("v_cmp_gt_u32 vcc, 32, v0")
    p("s_mov_b32 s29, 0x07060100")
    p(f"s_mul_i32 s26, s17, {2*KVB}")
    p("s_add_u32 s26, s26, s18")
    p("s_add_u32 s27, s8, 1")
    p("s_and_b32 s27, s27, 7")
    for i in range(4):
        t = O + 16 * i
        p(f"v_max3_f32 {v(t)}, {v(t)}, {v(t+1)}, {v(t+2)}")
        for u in range(3, 15, 2): p(f"v_max3_f32 {v(t)}, {v(t)}, {v(t+u)}, {v(t+u+1)}")
        p(f"v_max_f32 {v(t)}, {v(t)}, {v(t+15)}")
        p(f"v_cndmask_b32 {v(t)}, 0, -{v(t)}, vcc")
        p(f"v_perm_b32 {v(Q2+4*i)}, {v(t)}, {v(160+i)}, s29")
        p(f"v_perm_b32 {v(Q2+4*i+3)}, {v(t)}, {v(160+i)}, s29")
        if i == 0:
            p(f"{M32} {v(SS,16)}, {R(KK(0),4)}, {v(Q1,4)}, 0")
        if i == 1:
            p(f"{M32K8} {v(SS,16)}, {R(KK(0)+8,2)}, {v(Q2,2)}, {v(SS,16)}")
    p("s_waitcnt lgkmcnt(0)")
    p("s_barrier")
    stamp(p, 4)
    def unit_addr(par):
        if par == 0:
            return [f"s_mul_i32 s28, s27, {4*KVB}", "s_add_u32 s27, s27, 1", "s_add_u32 s28, s28, s26", "s_and_b32 s27, s27, 7"]
        return [f"s_add_u32 s28, s28, {KVB}"]
    def unit_loads(b):
        tg = f"u{b}"
        L = [(f"buffer_load_dwordx2 {R(KK(b)+8,2)}, v2, {ACD}, s28 offen sc1", tg)]
        L += [(f"buffer_load_dwordx4 {R(KK(b)+4*j,4)}, v1, {ACD}, s28 offen offset:{512+1024*j} sc1", tg) for j in range(2)]
        V = ["s_mov_b64 exec, s[30:31]"]
        V += [(f"buffer_load_dwordx4 {R(VV(b)+4*j,4)}, v3, {ACD}, s28 offen offset:{576*j} sc1", tg) for j in range(4)]
        V += ["s_mov_b64 exec, -1"]
        return L, V
    def qk(n):
        b, kt2, i = (n >> 3) & 3, (n >> 2) & 1, n & 3
        d = v(SS + 16 * (n & 1), 16)
        return [f"{M32} {d}, {R(KK(b)+4*kt2,4)}, {v(Q1+4*i,4)}, 0",
                f"{M32K8} {d}, {R(KK(b)+8,2)}, {v(Q2+4*i+2*kt2,2)}, {d}"]
    def pv(n, init=False):
        b, kt2, i = (n >> 3) & 3, (n >> 2) & 1, n & 3
        d = v(O + 16 * i, 16)
        return [f"{M32} {d}, {R(VV(b)+8*kt2+4*t,4)}, {v(P+8*(n&1)+4*t,4)}, {'0' if init and t == 0 else d}" for t in range(2)]
    def slot(n, peeled=False, extra=(), pre=()):
        sb, pb = SS + 16 * (n & 1), P + 8 * (n & 1)
        mf = qk(n + 1) + ([] if peeled and n == 0 else pv(n - 1, peeled and n <= 4))
        E = [f"v_exp_f32 {v(sb+u)}, {v(sb+u)}" for u in range(16)]
        C = [f"v_cvt_pk_bf16_f32 {v(pb+u)}, {v(sb+2*u)}, {v(sb+2*u+1)}" for u in range(8)]
        out = list(pre)
        for g in range(4):
            if g < len(mf): out.append(mf[g])
            out += E[4 * g:4 * g + 3]
            if g: out.append(C[2 * g - 1])
            out += [E[4 * g + 3], C[2 * g]]
            if g == 1: out += list(extra)
        out.append(C[7])
        return out
    ex = {n: [] for n in range(16)}
    ex[0] += f"""s_lshl_b32 s16, s9, 5
s_add_u32 s19, s16, s10
s_mul_i32 s19, s19, {FS}
s_add_u32 s19, s19, {FQ}
s_lshl_b32 s22, s17, 1
s_add_u32 s16, s16, s22
s_mul_i32 s16, s16, {FS}
s_add_u32 s16, s16, {FQ}
v_and_b32 v6, 14, v0
v_and_b32 v7, 1, v0
v_lshl_add_u32 v6, v6, 1, v7
v_mul_u32_u24 v6, {FS}, v6""".split("\n")
    ex[OPT["sig_slot"]] += ["WAITVM kv"] + flat(signal("s19", 1, 7))
    ex[OPT["poll_slot"]] += sp.load(6, "s16", 8)
    c0 = OPT["chk_slot"]
    L, V = unit_loads(2)
    ex[c0] += flat(sp.check(6, "s16", 1, 8)) + unit_addr(0) + L + V
    L, V = unit_loads(3)
    ex[c0 + 1] += unit_addr(1) + L + V
    L, V = unit_loads(0)
    ex[c0 + 2] += unit_addr(0) + L + V
    ex[4] += f"""s_lshl_b32 s34, s3, 12
s_and_b32 s36, s9, 7
s_mul_i32 s35, s36, 92160
s_add_u32 s35, s35, s34
s_add_u32 s35, s35, {hex(WS['WO'])}
s_mul_i32 s37, s9, {CH13}
s_add_u32 s37, s37, {hex(WS['W13'])}
s_add_u32 s38, s37, s34
s_add_u32 s39, s34, {WOL}
s_mov_b32 s33, 4""".split("\n")
    ex[c0] = flat(stamp_items("att_a")) + ex[c0] + flat(stamp_items("att_b"))
    for n in range(16): p.add(slot(n, True, ex[n], ["WAITVM u2"] if n == 15 else []))
    stamp(p, "att_c")
    p("s_branch att_l2")
    p(".p2align 6")
    p("att_l0:")
    def pre_dma():
        return ["s_mov_b32 m0, s39", "s_add_u32 s39, s39, 16384"] + \
               [(f"buffer_load_dwordx4 v1, {WSD}, s35 offen offset:{1024*k} lds", "pf") for k in range(4)] + ["s_add_u32 s35, s35, 16384"]
    for n in range(32):
        if n == 16: p("att_l2:")
        e = []
        b = ((n >> 3) + 3) & 3
        L, V = unit_loads(b)
        if n & 7 == 1: e = unit_addr(b & 1) + L
        if n & 7 == 2: e = V
        if n in (4, 6, 12): e = pre_dma()
        if n == 8: e = ["s_cmp_eq_u32 s33, 1", "s_cmov_b32 s26, 0x40000000"]
        if n == 30: e = ["s_cmp_eq_u32 s33, 2", "s_cmov_b32 s35, s38", "s_cmov_b32 s39, s34"]
        if n == 31: e = ["s_sub_u32 s33, s33, 1", "s_cmp_lg_u32 s33, 0"]
        p.add(slot(n + 32, False, e, [f"WAITVM u{((n+1)>>3)&3}"] if n & 7 == 7 else []))
    p("s_cbranch_scc1 att_l0", take=[True, True, True, False])
    p.add(pv(127))
    stamp(p, 5)
    p(f"""s_add_u32 s28, s3, 1
s_and_b32 s28, s28, 3
s_mul_i32 s28, s28, 5120
s_xor_b32 s29, s3, 1
s_add_u32 s29, s29, 1
s_and_b32 s29, s29, 3
s_mul_i32 s29, s29, 5120
s_add_u32 s28, s28, {SCR}
s_add_u32 s29, s29, {SCR}
v_add_u32 v6, s28, v1
v_add_u32 v7, s28, v2
v_add_u32 v8, s29, v1
v_add_u32 v9, s29, v2""")
    p("WAITVM pf")
    for k in range(2):
        o = O + 32 + 16 * k
        p(f"ds_write_b128 v6, {v(o,4)} offset:{2560*k}")
        p(f"ds_write_b128 v6, {v(o+4,4)} offset:{2560*k+1024}")
        p(f"ds_write_b64 v7, {v(o+8,2)} offset:{2560*k+2048}")
    RS = 160
    p(f"""s_lshr_b32 s40, s9, 3
s_lshl_b32 s41, s8, 2
s_add_u32 s40, s40, s41
s_lshl_b32 s41, s40, 2
s_add_u32 s41, s41, s3
s_lshr_b32 s22, s36, 2
s_and_b32 s23, s36, 3
s_mul_i32 s22, s22, 9
s_mul_i32 s24, s23, 5
s_lshr_b32 s24, s24, 1
s_add_u32 s24, s24, s22
s_lshl_b32 s24, s24, 10
s_add_u32 s25, s22, 4
s_lshl_b32 s25, s25, 10
s_and_b32 s26, s23, 2
s_lshl_b32 s26, s26, 2
s_add_u32 s25, s25, s26
s_mul_i32 s26, s41, {XT}
s_add_u32 s24, s24, s26
s_add_u32 s25, s25, s26
s_add_u32 s26, s24, {hex(AC['XP'])}
s_add_u32 s27, s25, {hex(AC['XP'])}""")
    for k in range(2): p(f"buffer_load_dwordx4 {v(RS+4*k,4)}, v1, {ACD}, s26 offen offset:{1024*k} sc1")
    p(f"buffer_load_dwordx2 {v(RS+8,2)}, v1, {ACD}, s27 offen sc1")
    p(f"""v_and_b32 v10, 7, v4
v_lshrrev_b32 v11, 4, v4
v_lshl_add_u32 v10, v11, 3, v10
v_bfe_u32 v11, v4, 3, 1
v_lshlrev_b32 v12, 4, v10
v_lshl_add_u32 v12, v5, 8, v12
v_lshl_add_u32 v12, v11, 14, v12
v_lshl_add_u32 v13, v11, 4, v10
v_lshl_add_u32 v13, v5, 5, v13
v_lshlrev_b32 v13, 2, v13
s_lshl_b32 s16, s10, 16
s_lshl_b32 s17, s9, 9
s_add_u32 s16, s16, s17
s_add_u32 s16, s16, {hex(AC['OP'])}
s_add_u32 s17, s16, 0x8000
s_lshl_b32 s18, s9, 13
s_lshl_b32 s19, s10, 8
s_add_u32 s18, s18, s19
s_add_u32 s18, s18, {hex(AC['OL'])}
s_waitcnt lgkmcnt(0)
s_barrier""")
    T = 176
    for k in range(2):
        t = T + 16 * k
        p(f"ds_read_b64 {v(t+8,2)}, v9 offset:{2560*k+2048}")
        p(f"ds_read_b128 {v(t,4)}, v8 offset:{2560*k}")
        p(f"ds_read_b128 {v(t+4,4)}, v8 offset:{2560*k+1024}")
    for k in range(2):
        o, t = O + 16 * k, T + 16 * k
        p(f"v_add_f32 {v(o+9)}, {v(o+9)}, {v(t+9)}")
        p(f"v_rcp_f32 {v(o+10)}, {v(o+9)}")
        for u in (8, 0, 1, 2, 3, 4, 5, 6, 7): p(f"v_add_f32 {v(o+u)}, {v(o+u)}, {v(t+u)}")
        for u in range(9): p(f"v_mul_f32 {v(o+u)}, {v(o+u)}, {v(o+10)}")
        for u in range(4): p(f"v_cvt_pk_bf16_f32 {v(t+u)}, {v(o+2*u)}, {v(o+2*u+1)}")
        p(f"buffer_store_dwordx4 {v(t,4)}, v12, {ACD}, {s(16+k)} offen sc1")
    p(f"v_permlane32_swap_b32 {v(O+8)}, {v(O+24)}")
    p(f"v_cvt_pk_bf16_f32 v14, {v(O+8)}, {v(O+24)}")
    p(f"buffer_store_dword v14, v13, {ACD}, s18 offen sc1")
    stamp(p, 6)

    B, W, ACC = 16, 96, 136
    p(f"""s_lshl_b32 s16, s10, 5
s_add_u32 s16, s16, s9
s_mul_i32 s16, s16, {FS}
s_add_u32 s16, s16, {FA}
s_mul_i32 s17, s40, {32*FS}
s_add_u32 s17, s17, {FA}
v_mul_u32_u24 v7, {FS}, v4
s_lshl_b32 s20, s41, 14
s_add_u32 s20, s20, {hex(AC['OP'])}
s_lshl_b32 s21, s41, 6
s_add_u32 s21, s21, {hex(AC['OL'])}
v_and_b32 v10, 15, v0
v_lshrrev_b32 v3, 4, v0
v_lshlrev_b32 v4, 15, v3
v_lshl_add_u32 v4, v10, 2, v4
s_add_u32 s24, s24, {hex(AC['X2'])}
s_add_u32 s25, s25, {hex(AC['X2'])}
v_add_u32 v3, {WOL}, v1
v_add_u32 v5, {WOL+0x8000}, v1
s_add_u32 s28, s23, 1
s_and_b32 s28, s28, 2
s_lshl_b32 s29, s36, 14
s_lshl_b32 s30, s41, 7
s_add_u32 s29, s29, s30
s_add_u32 s29, s29, {hex(AC['ST'])}
v_lshlrev_b32 v6, 3, v10""")
    def wro(ks):
        b, o = (3, 5120 * ks) if ks < 10 else (5, 5120 * ks - 0x8000)
        return [f"ds_read_b128 {v(W+20*(ks%2)+4*t,4)}, {v(b)} offset:{o+1024*t}" for t in range(5)]
    p.add(wro(0))
    p("s_waitcnt vmcnt(0)")
    p.add(flat(signal("s16", 1, 8)))
    stamp(p, 7)
    p.add(sp.load(7, "s17", 9))
    p.add(flat(sp.check(7, "s17", 1, 9)))
    stamp(p, 8)
    for ks in range(16):
        p(f"buffer_load_dwordx4 {v(B+4*ks,4)}, v1, {ACD}, s20 offen offset:{1024*(ks%4)} sc1")
        if ks % 4 == 3: p("s_add_u32 s20, s20, 4096")
    for k in range(8):
        p(f"buffer_load_dword {v(B+64+k)}, v4, {ACD}, s21 offen sc1")
        if k < 7: p(f"s_add_u32 s21, s21, {8192*(13 if k == 3 else 1)}")
    for u in range(0, 20, 2): p.add(unpack(T + u, RS + u // 2))
    main, st = [], []
    for ks in range(KS):
        main += [f"{M16} {v(ACC+4*t,4)}, {v(W+20*(ks%2)+4*t,4)}, {v(B+4*ks,4)}, {v((T if ks == 0 else ACC)+4*t,4)}" for t in range(5)]
        if ks + 1 < KS: st.append((wro(ks + 1), 5 * ks, 5 * ks + 5))
    p.add(pack(main, st))
    stamp(p, 9)
    p("v_mov_b32 v8, 0")
    p("v_mov_b32 v9, 0")
    p(f"""s_lshl_b32 s16, s40, 3
s_add_u32 s16, s16, s36
s_mul_i32 s16, s16, {FS}
s_add_u32 s16, s16, {FO}
s_mul_i32 s17, s10, {8*FS}
s_add_u32 s17, s17, {FO}""")
    def stat(u0, n):
        for u in range(u0, u0 + n):
            p(f"v_add_f32 v8, v8, {v(ACC+u)}")
            p(f"v_fmac_f32 v9, {v(ACC+u)}, {v(ACC+u)}")
    for k in range(2):
        for u in range(4): p(f"v_cvt_pk_bf16_f32 {v(200+4*k+u)}, {v(ACC+8*k+2*u)}, {v(ACC+8*k+2*u+1)}")
        p(f"buffer_store_dwordx4 {v(200+4*k,4)}, v1, {ACD}, s24 offen offset:{1024*k} sc1")
    p("s_cmp_eq_u32 s28, 0")
    p("s_cbranch_scc1 oproj_nohalf", take="both")
    for u in range(2): p(f"v_cvt_pk_bf16_f32 {v(208+u)}, {v(ACC+16+2*u)}, {v(ACC+17+2*u)}")
    p(f"buffer_store_dwordx2 v[208:209], v1, {ACD}, s25 offen sc1")
    stat(16, 4)
    p("oproj_nohalf:")
    stat(0, 16)
    xsum(p, [8, 9], 10, [4, 5])
    p("s_mov_b64 exec, 0xffff")
    p(f"buffer_store_dwordx2 v[8:9], v6, {ACD}, s29 offen sc1")
    p("s_mov_b64 exec, -1")

    W, ACC, C1, IR2, T, HO = 16, 48, 176, 180, 184, 200
    p(f"""s_mul_i32 s19, s3, 6144
s_add_u32 s20, s37, s19
s_add_u32 s20, s20, 49152
s_mul_i32 s24, s10, {4*XT}
s_add_u32 s24, s24, {hex(AC['X2'])}
s_add_u32 s25, s24, {XT}
s_add_u32 s26, s25, {XT}
s_add_u32 s27, s26, {XT}
s_lshl_b32 s22, s10, 9
s_add_u32 s22, s22, {hex(AC['ST'])}
v_and_b32 v7, 7, v0
v_mul_u32_u24 v7, {FS}, v7
v_add_u32 v3, 49152, v1
v_add_u32 v4, 98304, v1
v_and_b32 v5, 15, v0
v_lshlrev_b32 v5, 2, v5
s_mov_b32 s42, {24576-3072}
s_mov_b32 s43, {24576-3072}""")
    stamp(p, 10)
    p("s_waitcnt vmcnt(0)")
    p("s_barrier")
    p("s_cmp_lg_u32 s3, 0")
    p("s_cbranch_scc1 up_nosig", take="both")
    p.add(flat(signal("s16", 1, 8)))
    p("up_nosig:")
    stamp(p, 11)
    def dma(stage):
        tag = f"w{stage % 6}"
        L = []
        for h in range(2):
            L.append(f"s_add_u32 m0, s19, {24576*(stage%6)+3072*h}")
            L += [(f"buffer_load_dwordx4 v1, {WSD}, s20 offen offset:{1024*k} lds", tag) for k in range(3)]
            inc = 3072 if h == 0 else {6: "s42", 7: "s43"}.get(stage, 24576 - 3072)
            L.append(f"s_add_u32 s20, s20, {inc}")
        return L
    def xl(ks):
        L = [f"buffer_load_dwordx4 {R(xreg(4*ks+t),4)}, v1, {ACD}, {s(24+t)} offen offset:{1024*(ks%4)} sc1" for t in range(4)]
        if ks % 4 == 3: L += [f"s_add_u32 {s(24+t)}, {s(24+t)}, 4096" for t in range(4)]
        return L
    def rd(off, dst):
        b, o = (1, off) if off < 49152 else ((3, off - 49152) if off < 98304 else (4, off - 98304))
        return f"ds_read_b128 {R(dst,4)}, {v(b)} offset:{o}"
    def wr(pas, ks):
        if pas < 4:
            return [rd(73728 * (pas % 2) + 4096 * ks + 1024 * t, W + 16 * (ks % 2) + 4 * t) for t in range(4)]
        return [rd(2048 * ks + 1024 * t, W + 16 * (ks % 2) + 4 * t) for t in range(2)]
    p.add(dma(2) + dma(3) + wr(0, 0))
    p.add(sp.load(7, "s17", 9))
    p.add(flat(sp.check(7, "s17", 1, 9)))
    stamp(p, 12)
    LA = OPT["la_u"]
    for ks in range(LA): p.add(xl(ks))
    z = ACC + 64
    stl = []
    for k in range(8):
        stl += [f"buffer_load_dwordx2 {v(z+2*k,2)}, v2, {ACD}, s22 offen sc1", "s_add_u32 s22, s22, 16384"]
    addr = f"""s_lshr_b32 s44, s9, 3
s_and_b32 s45, s9, 7
s_mul_i32 s28, s10, {4*HT}
s_mul_i32 s23, s44, 36864
s_add_u32 s23, s23, {hex(AC['HP'])}
s_add_u32 s32, s28, s23
s_lshl_b32 s28, s45, 10
s_add_u32 s28, s28, s32
s_and_b32 s46, s45, 1
s_lshr_b32 s45, s45, 1
s_lshl_b32 s29, s45, 10
s_add_u32 s32, s32, s29
s_lshl_b32 s29, s46, 3
s_add_u32 s32, s32, s29
s_add_u32 s32, s32, 32768
s_add_u32 s29, s28, {HT}
s_add_u32 s30, s29, {HT}
s_add_u32 s31, s30, {HT}
s_add_u32 s33, s32, {HT}
s_add_u32 s34, s33, {HT}
s_add_u32 s35, s34, {HT}
s_lshl_b32 s16, s8, 1
s_add_u32 s46, s46, s16
s_lshl_b32 s46, s46, 2
s_add_u32 s46, s46, s3
s_mul_i32 s38, s46, {2*HT}
s_add_u32 s38, s38, s23
s_add_u32 s39, s38, {HT}
s_lshl_b32 s47, s44, 2
s_add_u32 s47, s47, s45
s_mul_i32 s40, s47, {36*9216}
s_add_u32 s40, s40, {hex(WS['W2'])}
s_lshl_b32 s16, s10, 5
s_add_u32 s16, s16, s9
s_mul_i32 s16, s16, {FS}
s_add_u32 s16, s16, {FU}
s_lshr_b32 s17, s46, 1
s_lshl_b32 s17, s17, 2
s_add_u32 s17, s17, s44
s_mul_i32 s17, s17, {8*FS}
s_add_u32 s17, s17, {FU}
s_mov_b32 s36, 0""".split("\n")
    stats = []
    for k in range(1, 8):
        stats += [f"v_add_f32 {v(z)}, {v(z)}, {v(z+2*k)}", f"v_add_f32 {v(z+1)}, {v(z+1)}, {v(z+2*k+1)}"]
    stats += [f"v_mul_f32 {v(z)}, {fl(1/D)}, {v(z)}", f"v_mul_f32 {v(z+1)}, {fl(1/D)}, {v(z+1)}",
              f"v_fma_f32 {v(z+1)}, -{v(z)}, {v(z)}, {v(z+1)}", f"v_max_f32 {v(z+1)}, 0, {v(z+1)}",
              f"v_add_f32 {v(z+1)}, {fl(1e-5)}, {v(z+1)}", f"v_rsq_f32 {v(z)}, {v(z+1)}",
              f"v_mul_f32 {v(z)}, {fl(-LOG2E)}, {v(z)}"]
    for t in range(4):
        stats += [f"ds_bpermute_b32 {v(C1+t)}, v5, {v(z)} offset:{64*t}", f"ds_bpermute_b32 {v(IR2+t)}, v5, {v(z+1)} offset:{64*t}"]
    def epi(acc, nb, sreg, tag):
        L = []
        for tt in range(4):
            for b in range(nb):
                g = acc + 16 * tt + 8 * b
                u = g + 4
                t = T + 4 * ((2 * tt + b) % 2)
                L += [f"v_mul_f32 {v(t+i)}, {v(g+i)}, {v(C1+tt)}" for i in range(4)]
                L += [f"v_exp_f32 {v(t+i)}, {v(t+i)}" for i in range(4)]
                L += [f"v_mul_f32 {v(g+i)}, {v(g+i)}, {v(u+i)}" for i in range(2)]
                L += [f"v_fma_f32 {v(t+i)}, {v(t+i)}, {v(IR2+tt)}, {v(IR2+tt)}" for i in range(4)]
                L += [f"v_rcp_f32 {v(t+i)}, {v(t+i)}" for i in range(4)]
                L += [f"v_mul_f32 {v(g+i)}, {v(g+i)}, {v(u+i)}" for i in range(2, 4)]
                L += [f"v_mul_f32 {v(g+i)}, {v(g+i)}, {v(t+i)}" for i in range(4)]
                o = HO + 4 * (tt % 2) + 2 * b
                L += [f"v_cvt_pk_bf16_f32 {v(o+i)}, {v(g+2*i)}, {v(g+2*i+1)}" for i in range(2)]
            if nb == 2:
                L += [(f"buffer_store_dwordx4 {v(HO+4*(tt%2),4)}, v1, {ACD}, {s(sreg+tt)} offen sc1", tag), f"s_add_u32 {s(sreg+tt)}, {s(sreg+tt)}, 8192"]
            else:
                L += [(f"buffer_store_dwordx2 {v(HO+4*(tt%2),2)}, v1, {ACD}, {s(sreg+tt)} offen sc1", tag)]
        return L
    def gpass(pas, nxt, dmas):
        nt = 4 if pas < 4 else 2
        acc = ACC + 64 * (pas % 2)
        main, st, lo = [], [], []
        per = 4 * nt
        for ks in range(KS):
            for t in range(nt):
                for tt in range(4):
                    d = v(acc + 16 * tt + 4 * t, 4)
                    main.append(f"{M16} {d}, {v(W+16*(ks%2)+4*t,4)}, {R(xreg(4*ks+tt),4)}, {'0' if ks == 0 else d}")
            o = 0
            if pas < 4 and ks % 6 == 5 and not (pas == 0 and ks == 5):
                st.append(([[f"WAITVM w{(3*pas+ks//6+1) % 6}", "s_barrier"]], per * ks, per * ks + 1)); o = 1
            if pas == 4 and ks == 11:
                st.append(([["WAITVM w1, w2", "s_barrier"]], per * ks, per * ks + 1)); o = 1
            rs = wr(pas, ks + 1) if ks + 1 < KS else nxt
            rs = [rs[k:k + 2] for k in range(0, len(rs), 2)]
            st.append((rs, per * ks + o, per * ks + o + len(rs)))
            st.append((["s_waitcnt lgkmcnt(0)"], per * ks + per - 1, per * ks + per))
            if ks in dmas: lo.append((dma(dmas[ks]), per * ks + 3, per * (ks + 2)))
        return main, st + lo
    p("s_waitcnt lgkmcnt(0)")
    main, st = gpass(0, wr(1, 0), {13: 4, 15: 5})
    xs = [(xl(ks + LA), 16 * ks + 4, 16 * ks + 14) for ks in range(KS - LA)]
    p.add(pack(main, st + xs + [(stl, 16 * 9, 16 * 12), (addr, 20, 16 * 9), (stats, 16 * 15, 16 * 18 - 6)], report="up0"))
    stamp(p, 13)
    p(".p2align 3")
    p("up_loop:")
    main, st = gpass(1, wr(2, 0), {0: 6, 6: 7, 12: 8})
    sig1 = [["WAITVM hB"], f"v_mov_b32 v8, s36", ["s_mov_b64 exec, 1", f"buffer_store_dword v8, off, {ACD}, s16 sc1", "s_mov_b64 exec, -1"]]
    p.add(pack(main, st + [(sig1, 16 * 4, 16 * 4 + 8), (epi(ACC, 2, 28, "hA"), 6, 286)], report="up1"))
    p("s_cmp_lg_u32 s36, 0")
    p("s_cbranch_scc1 up_last", take=[False, True])
    main, st = gpass(2, wr(1, 0), {0: 9, 6: 10, 12: 11})
    jump = f"""s_sub_u32 s21, s40, s37
s_sub_u32 s21, s21, {CH13-(24576-3072)}
s_cmp_ge_u32 s3, 2
s_cselect_b32 s42, s21, s42
s_cselect_b32 s43, s43, s21
s_mov_b32 s36, 1""".split("\n")
    jump = jump[:2] + [jump[2:5]] + jump[5:]
    p.add(pack(main, st + [(jump, 16 * 3, 16 * 5), (epi(ACC + 64, 2, 28, "hB"), 6, 286)], report="up2"))
    p("s_branch up_loop")
    p("up_last:")
    stamp(p, 14)

    DW = lambda k, t: 256 + 96 + 36 * (k % 2) + 4 * t
    HB = lambda k, tt: 256 + 8 * (k % 12) + 4 * tt
    DQ = [16 + 4 * i for i in range(8)] + [208 + 4 * i for i in range(2)] + [224 + 4 * i for i in range(8)]
    DA = lambda t, tt: DQ[9 * tt + t] if t < 8 else DQ[8 + tt]
    DA = lambda t, tt: (16 if tt == 0 else 224) + 4 * t if t < 8 else 208 + 4 * tt
    def ddma(stage):
        tag = f"d{stage % 3}"
        L = []
        if stage == 9: L.append("s_add_u32 s20, s11, s18")
        for h in range(3):
            L.append(f"s_add_u32 m0, s18, {36864*(stage%3+1)+3072*h}")
            L += [(f"buffer_load_dwordx4 v1, {WSD}, s20 offen offset:{1024*k} lds", tag) for k in range(3)]
            L.append(f"s_add_u32 s20, s20, {3072 if h < 2 else 36864-6144}")
        return L
    def hl(k):
        L = [f"buffer_load_dwordx4 {R(HB(k,tt),4)}, v1, {ACD}, {s(38+tt)} offen offset:{1024*(k%4)} sc1" for tt in range(2)]
        if k % 4 == 3: L += [f"s_add_u32 {s(38+tt)}, {s(38+tt)}, 4096" for tt in range(2)]
        return L
    def wrd(k):
        return [rd(36864 + 9216 * (k % 12) + 1024 * t, DW(k, t)) for t in range(9)]
    main, st = gpass(4, wrd(0), {})
    H0 = len(main)
    lo = []
    for k in range(36):
        g0 = H0 + 18 * k
        for t in range(9):
            for tt in range(2):
                d = v(DA(t, tt), 4)
                main.append(f"{M16} {d}, {R(DW(k,t),4)}, {R(HB(k,tt),4)}, {'0' if k == 0 else d}")
        o = 0
        if k % 4 == 3:
            sg = k // 4
            if k < 35: st.append(([[f"WAITVM d{(sg+1) % 3}", "s_barrier"]], g0, g0 + 1)); o = 1
            if sg + 3 <= 10: lo.append((ddma(sg + 3), g0 + 6, g0 + 40))
        if k < 35:
            rs = wrd(k + 1)
            rs = [rs[j:j + 2] for j in range(0, 9, 2)]
            st.append((rs, g0 + o, g0 + o + 10))
            st.append((["s_waitcnt lgkmcnt(0)"], g0 + 17, g0 + 18))
        if k + 11 < 36: lo.append((hl(k + 11), g0 + 11, g0 + 16))
    dpre = ["s_mul_i32 s18, s3, 9216", "s_add_u32 s20, s40, s18", "s_add_u32 s20, s20, 36864"] + ddma(1) + ddma(2)
    def level(val, load_at, chk_at):
        return [(sp.load(7, "s17", 9), load_at, load_at + 1), (sp.check(7, "s17", val, 9), chk_at, chk_at + 1)]
    def sig(val, tag, at):
        return [([[f"WAITVM {tag}"]] + signal("s16", val, 8), at, at + 6)]
    fl_ = level(1, 2, 8 * 6) + sig(2, "hA", 8 * 6 + 2)
    fl_ += level(2, H0 + 18 * 1, H0 + 18 * 5 + 9) + sig(3, "hB", H0 + 18 * 6)
    fl_ += level(3, H0 + 18 * 10, H0 + 18 * 13 + 9) + sig(4, "hH", H0 + 18 * 14)
    fl_ += level(4, H0 + 18 * 18, H0 + 18 * 21 + 9)
    h0 = [x for k in range(11) for x in hl(k)]
    paddr = f"""s_lshr_b32 s22, s45, 1
s_and_b32 s23, s45, 1
s_mul_i32 s22, s22, 9216
s_mul_i32 s28, s46, {2*XT}
s_add_u32 s22, s22, s28
s_mul_i32 s28, s44, {XSZ}
s_add_u32 s22, s22, s28
s_add_u32 s22, s22, {hex(AC['PART'])}
s_mul_i32 s28, s23, 5120
s_add_u32 s28, s28, s22
s_lshl_b32 s23, s23, 3
s_add_u32 s30, s22, s23
s_add_u32 s30, s30, 4096
s_add_u32 s29, s28, {XT}
s_add_u32 s31, s30, {XT}
s_lshl_b32 s22, s46, 4
s_add_u32 s22, s22, s47
s_mul_i32 s22, s22, {FS}
s_add_u32 s22, s22, {FD}
s_lshl_b32 s26, s8, 5
s_add_u32 s26, s26, s9
s_lshr_b32 s23, s26, 1
s_mul_i32 s23, s23, {XT}
s_and_b32 s24, s26, 1
s_lshl_b32 s24, s24, 7
s_add_u32 s23, s23, s24
s_mul_i32 s24, s26, 9216
s_lshr_b32 s25, s26, 2
s_mul_i32 s25, s25, {16*FS}
s_add_u32 s25, s25, {FD}
s_min_u32 s27, s3, 2
s_lshl_b32 s27, s27, 3
v_and_b32 v10, 7, v0
v_lshrrev_b32 v11, 3, v0
v_add_u32 v11, s27, v11
v_mul_u32_u24 v12, 768, v11
v_lshl_add_u32 v12, v10, 4, v12
v_mul_u32_u24 v13, 48, v11
v_mul_u32_u24 v14, 1152, v10
v_add_u32 v13, v13, v14
v_and_b32 v14, 15, v0
v_mul_u32_u24 v14, {FS}, v14
v_lshlrev_b32 v15, 5, v10
v_add_u32 v15, {LNS}, v15
v_add_u32 v6, s27, v15
s_add_u32 s27, s23, {hex(AC['X2'])}""".split("\n")
    X, TT, L0 = 48, 72, 96
    paddr += [f"buffer_load_dwordx4 {v(L0+4*i,4)}, v12, {ACD}, s27 offen offset:{256*i} sc1" for i in range(3)]
    streams = st + fl_ + [(dpre, 4, 8 * 6), (h0, 8 * 7, 8 * 17)] + lo
    streams += [(epi(ACC + 64, 2, 28, "hB"), 4, H0 + 18 * 3), (epi(ACC, 1, 32, "hH"), H0 + 18 * 3, H0 + 18 * 11), (paddr, H0 + 18 * 24, H0 + 18 * 33)]
    for nm_, at in [("hp6", 49), ("half", H0 - 1)] + [(f"d{k}", H0 + 18 * k + 17) for k in (2, 5, 9, 13, 17, 21, 25, 29)]:
        streams.append((stamp_items(nm_), at, at + 1))
    p.add(pack(main, streams, report="down"))
    stamp(p, 15)
    for tt in range(2):
        for k in range(4):
            o = 160 + 20 * tt + 4 * k
            for u in range(4): p(f"v_cvt_pk_bf16_f32 {v(o+u)}, {v(DA(2*k,tt)+2*u)}, {v(DA(2*k,tt)+2*u+1)}")
            p(f"buffer_store_dwordx4 {v(o,4)}, v1, {ACD}, {s(28+tt)} offen offset:{1024*k} sc1")
    for tt in range(2):
        o = 160 + 20 * tt + 16
        for u in range(2): p(f"v_cvt_pk_bf16_f32 {v(o+u)}, {v(DA(8,tt)+2*u)}, {v(DA(8,tt)+2*u+1)}")
        p(f"buffer_store_dwordx2 {v(o,2)}, v1, {ACD}, {s(30+tt)} offen sc1")
    for u in range(12): p.add(unpack(X + 2 * u, L0 + u))
    srd(p, 52, "out", S * D * 2)
    stamp(p, 16)
    p("s_waitcnt vmcnt(0)")
    p.add(flat(signal("s22", 1, 8)))
    stamp(p, 17)

    p("s_cmp_eq_u32 s3, 3")
    p("s_cbranch_scc1 red_idle")
    p.add(sp.load(14, "s25", 9))
    p.add(flat(sp.check(14, "s25", 1, 9)))
    stamp(p, 18)
    for k in range(4):
        p(f"s_add_u32 s27, s23, {hex(AC['PART'] + k*XSZ)}")
        for i in range(3): p(f"buffer_load_dwordx4 {v(L0+12*k+4*i,4)}, v12, {ACD}, s27 offen offset:{256*i} sc1")
    for k in range(4):
        for u in range(12):
            t = TT + 2 * (u % 4)
            p.add(unpack(t, L0 + 12 * k + u))
            p(f"v_add_f32 {v(X+2*u)}, {v(X+2*u)}, {v(t)}")
            p(f"v_add_f32 {v(X+2*u+1)}, {v(X+2*u+1)}, {v(t+1)}")
    p("s_cmp_lg_u32 s13, 0")
    p("s_cbranch_scc1 red_out", take=[False, True])
    p(f"v_add_f32 v8, {v(X)}, {v(X+1)}")
    p(f"v_mul_f32 v9, {v(X)}, {v(X)}")
    p(f"v_fmac_f32 v9, {v(X+1)}, {v(X+1)}")
    for u in range(2, 24):
        p(f"v_add_f32 v8, v8, {v(X+u)}")
        p(f"v_fmac_f32 v9, {v(X+u)}, {v(X+u)}")
    xsum(p, [8, 9], 10, [3, 4, 5])
    p("ds_write_b64 v6, v[8:9]")
    for u in range(12): p(f"v_cvt_pk_bf16_f32 {v(L0+u)}, {v(X+2*u)}, {v(X+2*u+1)}")
    p(f"s_add_u32 s27, s23, {hex(LSZ + AC['XP'])}")
    p("s_waitcnt lgkmcnt(0)")
    p("s_barrier")
    p("ds_read_b128 v[8:11], v15")
    p("ds_read_b64 v[6:7], v15 offset:16")
    for i in range(3): p(f"buffer_store_dwordx4 {v(L0+4*i,4)}, v12, {ACD}, s27 offen offset:{256*i} sc1")
    p(f"""v_add_f32 v8, v8, v10
v_add_f32 v9, v9, v11
v_add_f32 v8, v8, v6
v_add_f32 v9, v9, v7
v_mul_f32 v8, {fl(1/D)}, v8
v_mul_f32 v9, {fl(1/D)}, v9
v_fma_f32 v9, -v8, v8, v9
v_max_f32 v9, 0, v9
v_add_f32 v9, {fl(1e-5)}, v9
v_rsq_f32 v9, v9
s_add_u32 s27, s23, {hex(LSZ + AC['XN'])}
v_mul_f32 v8, v8, v9""")
    for i in range(3):
        for u in range(8): p(f"v_fma_f32 {v(X+8*i+u)}, {v(X+8*i+u)}, v9, -v8")
        for u in range(4): p(f"v_cvt_pk_bf16_f32 {v(TT+4*i+u)}, {v(X+8*i+2*u)}, {v(X+8*i+2*u+1)}")
        p(f"buffer_store_dwordx4 {v(TT+4*i,4)}, v12, {ACD}, s27 offen offset:{256*i} sc1")
    stamp(p, 19)
    p("red_join:")
    p(f"s_mul_i32 s16, s26, {FS}")
    p(f"s_add_u32 s16, s16, {FR}")
    p(f"s_add_u32 s48, s48, {hex(LSZ)}")
    p("s_addc_u32 s49, s49, 0")
    p(f"s_mov_b32 s50, {hex(LSZ)}")
    p("s_mov_b32 s13, 1")
    p("s_waitcnt vmcnt(0)")
    p("s_barrier")
    if DIAG:
        p("v_mov_b32 v222, v223")
        p("v_mov_b32 v220, v221")
    p("s_cmp_lg_u32 s3, 0")
    p("s_cbranch_scc1 layer", take=False)
    p.add(flat(signal("s16", 1, 8)))
    p("s_branch layer")
    p("red_out:")
    for i in range(3):
        for u in range(4): p(f"v_cvt_pk_bf16_f32 {v(TT+4*i+u)}, {v(X+8*i+2*u)}, {v(X+8*i+2*u+1)}")
        p(f"buffer_store_dwordx4 {v(TT+4*i,4)}, v13, s[52:55], s24 offen offset:{16*i}")
    p("fin:")
    if DIAG:
        stamp(p, 19)
        p("s_waitcnt vmcnt(0)")
        stamp(p, 20)
        p("s_memrealtime s[62:63]")
        p("s_waitcnt lgkmcnt(0)")
        p("v_writelane_b32 v223, s58, 62")
        p("v_writelane_b32 v223, s62, 63")
        p("s_lshl_b32 s60, s2, 2")
        p("s_add_u32 s60, s60, s3")
        p("s_lshl_b32 s60, s60, 10")
        p(f"buffer_store_dwordx4 v[220:223], v1, {WSD}, s60 offen")
    p(f"{nm}_end:")
    p("s_endpgm")
    q = Prog("idle")
    q("red_idle:")
    q("s_waitcnt lgkmcnt(0)")
    q("s_cmp_lg_u32 s13, 0")
    q("s_cbranch_scc1 fin")
    q("s_barrier")
    q("s_branch red_join")
    return [p, q, sp.code]

def k_prep():
    G.WS = dict(WS, XP=ACT0 + AC["XP"], XN=ACT0 + AC["XN"], END=TOTAL)
    progs = G.k_prep()
    z = [I(x) for x in f"""s_mul_i32 s16, s2, {18*FS}
s_add_u32 s16, s16, {hex(ACT0 + AC['FLAG'])}
s_add_u32 s17, s16, {hex(LSZ)}
v_mul_u32_u24 v2, {FS}, v0
v_mov_b32 v3, 0
s_waitcnt lgkmcnt(0)
s_mov_b64 exec, 0x3ffff
buffer_store_dword v3, v2, {WSD}, s16 offen
buffer_store_dword v3, v2, {WSD}, s17 offen""".split("\n")]
    p = progs[0]
    k = [i for i, x in enumerate(p.ins) if x.label == "prep_ln_skip"][0]
    p.ins[k + 1:k + 1] = z
    b = progs[3]
    k = [i for i, x in enumerate(b.ins) if x.text == "s_mul_i32 s25, s24, 108"][0]
    b.ins[k:k + 2] = [I(x) for x in """s_mul_i32 s25, s24, 36
s_sub_u32 s25, s22, s25
s_mul_i32 s28, s25, 7282
s_lshr_b32 s28, s28, 16
s_mul_i32 s29, s28, 9
s_sub_u32 s29, s25, s29
s_lshl_b32 s25, s29, 3
s_lshl_b32 s30, s28, 1
s_add_u32 s25, s25, s30
s_sub_u32 s30, s25, 39
s_add_u32 s31, s28, 32
s_cmp_gt_u32 s29, 4
s_cmov_b32 s25, s30
s_cmp_eq_u32 s29, 4
s_cmov_b32 s25, s31
s_mul_i32 s24, s24, 144
s_add_u32 s25, s25, s24""".split("\n")]
    return progs

def build():
    K = {"prep": (k_prep(), 457, 256, 256, 256), "main": (mega(), 256, 163840, 512, 256)}
    head = [l for l in open(f"cdna_kernels/{NAME}.s.ref").read().split("\n") if l.startswith(";") and "@launch" not in l and "Override" not in l and "grid=ceil" not in l]
    out = "\n".join(head) + "\n"
    for n in K: out += f"; @launch kernel={n}_kernel grid=({K[n][1]},1,1) block=(256,1,1) lds={K[n][2]}\n"
    out += '.amdgcn_target "amdgcn-amd-amdhsa--gfx950"\n.text\n'
    for n, (progs, *_r) in K.items():
        for q in progs: out += q.finalize(verbose=True).text()
    out += '.section .rodata,"a"\n'
    for n, (progs, g, lds, nv, acc) in K.items(): out += kd(n, nv, acc)
    return out

if __name__ == "__main__":
    args = sys.argv[1:]
    if "diag" in args:
        DIAG = True
        args.remove("diag")
    for x in [x for x in args if "=" in x]:
        k, val = x.split("="); OPT[k] = int(val); args.remove(x)
    txt = build()
    if DIAG: txt = "; stamps " + ",".join(NAMES) + "\n" + txt
    open(args[0] if args else f"cdna_kernels/{NAME}.s", "w").write(txt)
```

```python
import re

TRANS = ("v_exp_", "v_log_", "v_rcp_", "v_rsq_", "v_sqrt_", "v_sin_", "v_cos_")
REG = re.compile(r"^-?(?:abs\()?\|?([vas])(\d+)\)?\|?$")
RNG = re.compile(r"^-?([vas])\[(\d+):(\d+)\]$")


def v(i, n=1):
    return f"v{i}" if n == 1 else f"v[{i}:{i+n-1}]"
def a(i, n=1):
    return f"a{i}" if n == 1 else f"a[{i}:{i+n-1}]"
def s(i, n=1):
    return f"s{i}" if n == 1 else f"s[{i}:{i+n-1}]"
def R(i, n=1):
    assert (i < 256) == (i + n - 1 < 256), (i, n)
    return v(i, n) if i < 256 else a(i - 256, n)


def regs_of(op):
    op = op.strip()
    m = REG.match(op)
    if m:
        return [(m.group(1), int(m.group(2)))]
    m = RNG.match(op)
    if m:
        return [(m.group(1), i) for i in range(int(m.group(2)), int(m.group(3)) + 1)]
    if op == "vcc":
        return [("s", 106), ("s", 107)]
    if op == "vcc_lo": return [("s", 106)]
    if op == "vcc_hi": return [("s", 107)]
    if op == "exec":
        return [("s", 126), ("s", 127)]
    if op == "exec_lo": return [("s", 126)]
    if op == "exec_hi": return [("s", 127)]
    if op == "m0":
        return [("s", 124)]
    return []


class I:
    __slots__ = ("text", "op", "ops", "mods", "dst", "src", "kind", "tag", "take", "passes", "mA", "mC", "slots", "label", "target")

    def __init__(self, text, tag=None, take=None):
        self.text = text
        self.tag = tag
        self.take = take
        self.label = None
        self.target = None
        self.dst, self.src = [], []
        self.passes = 0
        self.mA, self.mC = [], []
        self.slots = 1
        t = text.split(";")[0].strip()
        if t.endswith(":"):
            self.kind, self.label, self.op, self.slots = "label", t[:-1], "", 0
            return
        if t.startswith(".") or not t:
            self.kind, self.op, self.slots = "dir", "", 0
            return
        parts = t.split(None, 1)
        op = self.op = parts[0]
        rest = parts[1] if len(parts) > 1 else ""
        raw = [x.strip() for x in re.split(r",(?![^\[]*\])", rest)] if rest else []
        mods = ""
        if raw:
            last = raw[-1].split(None, 1)
            raw[-1] = last[0] if last else ""
            mods = last[1] if len(last) > 1 else ""
        self.ops, self.mods = raw, mods
        rr = [regs_of(x) for x in raw]
        flat = lambda L: [r for x in L for r in x]
        if op == "WAITVM":
            self.kind = "waitvm"
        elif op.startswith("v_mfma"):
            self.kind = "mfma"
            self.dst, self.mA, self.mC = rr[0], rr[1] + rr[2], rr[3]
            self.src = self.mA + self.mC
            self.passes = 4 if "16x16" in op else 8
        elif op.startswith("v_"):
            self.kind = "valu"
            if op.startswith("v_nop"):
                pass
            elif op.startswith("v_permlane") and "swap" in op or op.startswith("v_swap"):
                self.dst = self.src = rr[0] + rr[1]
            elif "_co_" in op:
                self.dst, self.src = rr[0] + rr[1], flat(rr[2:])
            else:
                self.dst, self.src = rr[0], flat(rr[1:])
                if op.startswith(("v_fmac", "v_dot2c", "v_pk_fmac", "v_writelane")) or "dpp" in op or "row_" in mods or "quad_perm" in mods or "UNUSED_PRESERVE" in mods:
                    self.src = self.src + rr[0]
        elif op.startswith(("buffer_", "global_")):
            self.kind = "vmem"
            lds = " lds" in " " + mods or "_lds_" in op
            if lds:
                self.src = flat(rr) + [("s", 124)]
            elif "_load_" in op:
                self.dst, self.src = rr[0], flat(rr[1:])
                if "d16" in op:
                    self.src = self.src + rr[0]
            elif "atomic" in op and "sc0" in mods:
                self.dst, self.src = rr[0], flat(rr)
            elif op in ("buffer_wbl2", "buffer_inv"):
                pass
            else:
                self.src = flat(rr)
        elif op.startswith("ds_"):
            self.kind = "ds"
            if op.startswith(("ds_read", "ds_bpermute", "ds_permute", "ds_swizzle")) or "_rtn" in op:
                self.dst, self.src = rr[0], flat(rr[1:])
            else:
                self.src = flat(rr)
        elif op.startswith(("s_load", "s_memtime", "s_memrealtime")):
            self.kind = "smem"
            self.dst, self.src = rr[0], flat(rr[1:])
        elif op == "s_waitcnt":
            self.kind = "wait"
        elif op == "s_nop":
            self.kind = "nop"
            self.slots = int(raw[0], 0) + 1
        elif op.startswith(("s_branch", "s_cbranch")):
            self.kind = "branch"
            self.target = raw[0]
            if "vcc" in op: self.src = regs_of("vcc")
        elif op in ("s_barrier", "s_endpgm", "s_sleep", "s_setprio"):
            self.kind = "misc"
        elif op.startswith(("s_cmp", "s_bitcmp")):
            self.kind = "salu"
            self.src = flat(rr)
        elif op.startswith("s_"):
            self.kind = "salu"
            self.dst, self.src = rr[0], flat(rr[1:])
            if op.startswith(("s_addk", "s_mulk", "s_cmov", "s_bitset")):
                self.src = self.src + rr[0]
            if "saveexec" in op:
                self.dst = self.dst + regs_of("exec")
        else:
            raise ValueError("unknown instruction: " + text)

    def store_data(self):
        if self.kind == "vmem" and re.search(r"store_dwordx[34]", self.op):
            k = 0 if self.op.startswith("buffer") else 1
            return regs_of(self.ops[k])
        return []


def need(p, c):
    n = 0
    pd = set(p.dst)
    if p.kind == "valu":
        pv = {r for r in pd if r[0] != "s"}
        ps = {r for r in pd if r[0] == "s"}
        if pv:
            if c.kind == "mfma" and pv & set(c.src): n = max(n, 2)
            if c.kind == "valu" and pv & set(c.src):
                if c.op.startswith("v_permlane") or "dpp" in c.op or "row_" in c.mods or "quad_perm" in c.mods: n = max(n, 2)
                if c.op.startswith(("v_readlane", "v_readfirstlane")): n = max(n, 1)
                if p.op.startswith(TRANS) and not c.op.startswith(TRANS): n = max(n, 1)
            if c.kind == "valu" and ("dst_sel" in p.mods or ("op_sel" in p.mods and not p.op.startswith("v_pk"))) and pv & set(c.src + c.dst): n = max(n, 1)
            if p.op.startswith(TRANS) and c.kind in ("vmem", "ds") and pv & set(c.src): n = max(n, 1)
        if ps and ps & set(c.src):
            if c.kind == "valu": n = max(n, 4 if c.op.startswith(("v_readlane", "v_writelane")) else 2)
            if c.kind == "vmem": n = max(n, 5)
            if c.kind in ("salu", "branch"): n = max(n, 1)
    elif p.kind == "mfma":
        big = p.passes == 8
        if c.kind == "mfma":
            if pd & set(c.mA): n = max(n, 12 if big else 8)
            same = c.mC == p.dst and c.passes == p.passes
            if pd & set(c.mC) and not same: n = max(n, 10 if big else 6)
            if pd & set(c.dst) and not (c.dst == p.dst and c.passes == p.passes): n = max(n, 10 if big else 6)
        elif c.kind in ("valu", "vmem", "ds"):
            if pd & set(c.src + c.dst): n = max(n, 12 if big else 8)
            if c.kind == "valu" and set(p.mC) & set(c.dst): n = max(n, 7 if big else 3)
    elif p.kind == "salu":
        if ("s", 124) in pd and c.kind == "vmem" and ("s", 124) in c.src: n = max(n, 1)
    elif p.kind == "vmem":
        sd = set(p.store_data())
        if sd and sd & set(c.dst): n = max(n, 2)
    return n


class Prog:
    def __init__(self, name=""):
        self.ins = []
        self.name = name
        self.nops = []

    def __call__(self, text, tag=None, take=None):
        for line in text.split("\n"):
            line = line.strip()
            if line:
                self.ins.append(I(line, tag, take))
        return self

    def add(self, items):
        for it in items:
            if isinstance(it, I): self.ins.append(it)
            elif isinstance(it, tuple): self(it[0], tag=it[1])
            else: self(it)
        return self

    def traces(self, wrap=2):
        lab = {x.label: i for i, x in enumerate(self.ins) if x.kind == "label"}
        opt = [i for i, x in enumerate(self.ins) if x.kind == "branch" and x.take == "both"]
        out = []
        for forced in [None] + opt:
            seq, cnt, i = [], {}, 0
            while i < len(self.ins):
                x = self.ins[i]
                seq.append(i)
                if x.op == "s_endpgm": break
                if x.kind == "branch" and x.target in lab:
                    t = lab[x.target]
                    k = cnt.get(i, 0); cnt[i] = k + 1
                    if isinstance(x.take, (list, tuple)):
                        go = x.take[k % len(x.take)]
                    elif x.op == "s_branch": go = True
                    elif i == forced: go = True
                    elif t < i and x.take is None: go = k < wrap
                    else: go = x.take is True
                    if go:
                        i = t
                        continue
                i += 1
                assert len(seq) < 2000000, "trace does not end"
            out.append(seq)
        return out

    def _waits(self):
        req = {}
        changed = True
        while changed:
            changed = False
            for seq in self.traces():
                vm, lg = [], []
                for i in seq:
                    x = self.ins[i]
                    if x.kind == "wait":
                        m = re.search(r"vmcnt\((\d+)\)", x.text)
                        if m: vm = vm[max(0, len(vm) - int(m.group(1))):] if int(m.group(1)) else []
                        m = re.search(r"lgkmcnt\((\d+)\)", x.text)
                        if m:
                            n = int(m.group(1))
                            assert n == 0 or not any(e[1] == "smem" for e in lg), x.text
                            lg = lg[max(0, len(lg) - n):] if n else []
                        continue
                    nv = nl = None
                    touched = set(x.src) | set(x.dst)
                    if x.kind == "waitvm":
                        tags = x.ops
                        ks = [k for k, e in enumerate(vm) if e[1] in tags]
                        nv = len(vm) - 1 - max(ks) if ks else None
                    elif touched:
                        tv = set(x.src) if x.kind == "vmem" else touched
                        ks = [k for k, e in enumerate(vm) if e[0] & tv]
                        if ks: nv = len(vm) - 1 - max(ks)
                        tl = set(x.src) if x.kind == "ds" else touched
                        ks = [k for k, e in enumerate(lg) if e[0] & tl]
                        if ks:
                            nl = 0 if any(e[1] == "smem" for e in lg) else len(lg) - 1 - max(ks)
                    cur = req.get(i, [None, None])
                    new = list(cur)
                    if nv is not None: new[0] = min(63, nv) if cur[0] is None else min(cur[0], nv)
                    if nl is not None: new[1] = min(15, nl) if cur[1] is None else min(cur[1], nl)
                    if new != cur:
                        req[i] = new
                        changed = True
                    if new[0] is not None: vm = vm[len(vm) - new[0]:] if 0 < new[0] < len(vm) else ([] if new[0] == 0 else vm)
                    if new[1] is not None: lg = lg[len(lg) - new[1]:] if 0 < new[1] < len(lg) else ([] if new[1] == 0 else lg)
                    if x.kind == "vmem": vm.append((set(x.dst), x.tag))
                    elif x.kind == "ds": lg.append((set(x.dst), "ds"))
                    elif x.kind == "smem": lg.append((set(x.dst), "smem"))
        return req

    def finalize(self, verbose=False):
        req = self._waits()
        out = []
        for i, x in enumerate(self.ins):
            r = req.get(i)
            if r and (r[0] is not None or r[1] is not None):
                w = "s_waitcnt" + (f" vmcnt({r[0]})" if r[0] is not None else "") + (f" lgkmcnt({r[1]})" if r[1] is not None else "")
                out.append(I(w))
            if x.kind != "waitvm":
                out.append(x)
        self.ins = out
        while True:
            pad = {}
            for seq in self.traces():
                hist = []
                for i in seq:
                    x = self.ins[i]
                    if x.slots == 0: continue
                    extra = pad.get(i, 0)
                    dist = 0
                    for (p, sl) in reversed(hist):
                        n = need(p, x)
                        if n > dist + extra:
                            extra = n - dist
                        dist += sl
                        if dist >= 21: break
                    if extra:
                        pad[i] = extra
                        hist.append((I("s_nop 0"), extra))
                    hist.append((x, x.slots))
                    if len(hist) > 40: hist = hist[-24:]
            if not pad: break
            out = []
            for i, x in enumerate(self.ins):
                if i in pad:
                    self.nops.append((pad[i], x.text))
                    n = pad[i]
                    while n > 0:
                        k = min(n, 16)
                        out.append(I(f"s_nop {k-1}"))
                        n -= k
                out.append(x)
            self.ins = out
        if verbose:
            print(f"[{self.name}] {sum(1 for x in self.ins if x.slots)} instrs, pads: {sum(n for n, _ in self.nops)} states at {len(self.nops)} sites")
        return self

    def text(self):
        return "\n".join(("" if x.kind in ("label", "dir") else "    ") + x.text for x in self.ins) + "\n"


def cost(t):
    t = t[0] if isinstance(t, tuple) else t
    return 8 if t.startswith(TRANS) else 4


def weave(main, streams, budget):
    slots = [[] for _ in main]
    for items, st, en in streams:
        n = len(items)
        if not n: continue
        tot = sum(cost(x) for x in items)
        acc = 0
        for it in items:
            pos = st + int((en - st) * acc / tot)
            slots[min(pos, en - 1)].append(it)
            acc += cost(it)
    out = []
    for m, f in zip(main, slots):
        out += m if isinstance(m, list) else [m]
        out += f
    return out


def pack(main, streams, cap=8, report=None):
    n = len(main)
    slots = [[] for _ in range(n)]
    used = [0] * n
    def c(it): return sum(cost(x) for x in it) if isinstance(it, list) else cost(it)
    for items, st, en in streams:
        en = min(en, n)
        tot = sum(c(x) for x in items)
        acc, cur = 0, st
        for it in items:
            pos = max(cur, st + int((en - st) * acc / max(tot, 1)))
            k = c(it)
            while pos < en - 1 and used[pos] and used[pos] + k > cap: pos += 1
            pos = min(pos, en - 1)
            slots[pos] += it if isinstance(it, list) else [it]
            used[pos] += k
            cur = pos
            acc += k
    if report is not None:
        over = sum(max(0, u - cap) for u in used)
        print(f"  pack {report}: {n} gaps, filler {sum(used)} cyc, overflow {over} cyc")
    out = []
    for m, f in zip(main, slots):
        out += m if isinstance(m, list) else [m]
        out += f
    return out


RANK = {"salu": 0, "wait": 0, "waitvm": 0, "nop": 0, "misc": 0, "branch": 0, "smem": 0, "vmem": 1, "ds": 2, "valu": 3}
NOSCC = ("s_mov", "s_cmov", "s_mul_i32", "s_cselect", "s_movk")

class Item:
    def __init__(self, it):
        self.raw = it if isinstance(it, list) else [it]
        self.ins = [I(x[0] if isinstance(x, tuple) else x) for x in self.raw]
        real = [x for x in self.ins if x.slots]
        self.group = len(real) > 1
        self.rank = RANK[real[0].kind]
        self.cost = sum(8 if x.op.startswith(TRANS) else 4 for x in real)
        self.dst, self.src = set(), set()
        for x in real:
            self.dst |= set(x.dst); self.src |= set(x.src)
        self.fence = any(x.kind in ("wait", "waitvm", "misc", "branch", "smem") for x in real)
        self.mem = any(x.kind == "vmem" for x in real)
        self.trans = any(x.op.startswith(TRANS) for x in real)
        self.pos = None

def sched(main, streams, cap=8, report=None, look=24):
    n = len(main)
    gaps = [[] for _ in range(n)]
    used = [0] * n
    def price(g, it):
        if it.group:
            return None if gaps[g] else it.cost - (4 if it.rank == 0 else 0)
        if any(x.group for x in gaps[g]): return None
        if it.rank == 0: return 4 if any(x.rank == 0 for x in gaps[g]) else 0
        if it.rank in (1, 2) and any(x.rank == it.rank for x in gaps[g]): return None
        return it.cost
    def put(g, it, c):
        it.pos = g; gaps[g].append(it); used[g] += c
    forced = 0
    for st in streams:
        items, a0, b0 = [Item(x) for x in st[0]], st[1], min(st[2], n)
        mode = st[3] if len(st) > 3 else "even"
        deps = []
        for k, it in enumerate(items):
            if mode == "even": d = [k - 1] if k else []
            else: d = [j for j in range(k) if items[j].fence or it.fence or (it.mem and items[j].mem)
                       or (items[j].dst & (it.src | it.dst)) or (items[j].src & it.dst)]
            deps.append(d)
        tot = sum(x.cost for x in items); acc = 0; rel = []
        for it in items:
            rel.append(a0 + int((b0 - a0) * acc / max(tot, 1)) if mode == "even" else a0); acc += it.cost
        todo = list(range(len(items)))
        def ready(k, g):
            for j in deps[k]:
                q = items[j]
                if q.pos is None: return False
                if q.pos == g and (q.rank > items[k].rank or q.trans or (("s", 124) in q.dst and items[k].mem)): return False
            return True
        for g in range(a0, b0):
            again = True
            while again and todo:
                again = False
                cand = [k for k in todo[:look] if rel[k] <= g and ready(k, g)]
                if used[g] == 0: cand.sort(key=lambda k: (not items[k].trans, k))
                for k in cand:
                    c = price(g, items[k])
                    if c is not None and (used[g] + c <= cap or (items[k].group and not gaps[g])):
                        put(g, items[k], c); todo.remove(k); again = True
                        break
        for k in todo:
            items[k].rank = 9
            put(b0 - 1, items[k], items[k].cost); forced += 1
    if report is not None:
        over = sum(max(0, u - cap) for u in used)
        print(f"  sched {report}: {n} gaps, filler {sum(used)} cyc, overflow {over} cyc, forced {forced}")
    out = []
    for m, f in zip(main, gaps):
        out.append(m)
        for it in sorted(f, key=lambda x: x.rank): out += it.raw
    return out
```

```python
import math, struct, sys
from asmb import Prog, v, a, s, R, weave, I
from layout import *

NAME = "interleave_layers__mha_block__glu_gated_swiglu__prompt"
LOG2E = 1.4426950408889634
def fl(x): return hex(struct.unpack("<I", struct.pack("<f", x))[0])
M16 = "v_mfma_f32_16x16x32_bf16"
M32 = "v_mfma_f32_32x32x16_bf16"
M32K8 = "v_mfma_f32_32x32x8_bf16"
WSD = s(4, 4)
ARG = dict(x=0, wqkv=8, wo=16, w1=32, w3=40, w2=48, out=56, dbg=64, ws=72)

def srd(p, reg, arg, size):
    p(f"s_load_dwordx2 {s(reg,2)}, s[0:1], {ARG[arg]}")
    p(f"s_mov_b32 {s(reg+2)}, {hex(size)}")
    p(f"s_mov_b32 {s(reg+3)}, 0x00020000")

def entry(p, name, nwg):
    p(f".globl {name}_kernel\n.p2align 8\n.type {name}_kernel,@function\n{name}_kernel:")
    p(f"s_cmp_ge_u32 s2, {nwg}")
    p(f"s_cbranch_scc1 {name}_end")
    if DIAG:
        for i in range(1, 6): p(f"s_mov_b32 {s(64+2*i)}, 0")
        p("s_memrealtime s[80:81]")
        stamp(p, 0)
    srd(p, 4, "ws", WS["END"])
    p("v_lshrrev_b32 v1, 6, v0")
    p("v_and_b32 v0, 63, v0")
    p("v_readfirstlane_b32 s3, v1")

DIAG = False
KIDX = {"prep": 0, "qkv": 1, "att": 2, "oproj": 3, "up": 4, "down": 5, "redmid": 6, "redout": 7}
def stamp(p, i):
    if DIAG: p(f"s_memtime {s(64+2*i,2)}")

def leave(p, name):
    if DIAG and name != "prep":
        p("s_mov_b64 exec, -1")
        stamp(p, 6)
        p("s_waitcnt vmcnt(0)")
        stamp(p, 7)
        p("s_memrealtime s[82:83]")
        p("s_waitcnt lgkmcnt(0)")
        for i in range(10): p(f"v_mov_b32 {v(16+i)}, {s(64+2*i)}")
        p("s_lshl_b32 s60, s2, 2")
        p("s_add_u32 s60, s60, s3")
        p("s_lshl_b32 s60, s60, 6")
        p(f"s_add_u32 s60, s60, {KIDX[name] << 16}")
        p("v_mov_b32 v1, 0")
        p("s_mov_b64 exec, 1")
        for i in range(3): p(f"buffer_store_dwordx4 {v(16+4*i,4)}, v1, {WSD}, s60 offen offset:{16*i}")
    p(f"{name}_end:\ns_endpgm")

def unpack(dst, src):
    return [f"v_lshlrev_b32 {v(dst)}, 16, {v(src)}", f"v_and_b32 {v(dst+1)}, 0xffff0000, {v(src)}"]

def xsum(p, regs, tmp, bits):
    for b in bits:
        if b == 3:
            for r in regs: p(f"v_add_f32_dpp {v(r)}, {v(r)}, {v(r)} row_ror:8 row_mask:0xf bank_mask:0xf")
        else:
            op = "v_permlane16_swap_b32" if b == 4 else "v_permlane32_swap_b32"
            for k, r in enumerate(regs): p(f"v_mov_b32 {v(tmp+k)}, {v(r)}")
            for k, r in enumerate(regs): p(f"{op} {v(r)}, {v(tmp+k)}")
            for k, r in enumerate(regs): p(f"v_add_f32 {v(r)}, {v(r)}, {v(tmp+k)}")

def lnp(p, mode, lab):
    if mode == "in": srd(p, 8, "x", S * D * 2)
    if mode == "out": srd(p, 8, "out", S * D * 2)
    p(f"s_cmp_eq_u32 s3, 3")
    p(f"s_cbranch_scc1 {lab}_skip")
    p("v_and_b32 v2, 7, v0")
    p("v_lshrrev_b32 v3, 3, v0")
    p("s_lshl_b32 s16, s3, 3")
    p("v_add_u32 v3, s16, v3")
    p("v_mul_u32_u24 v4, 768, v3")
    p("v_lshl_add_u32 v4, v2, 4, v4")
    p("v_mul_u32_u24 v5, 48, v3")
    p("v_mul_u32_u24 v6, 1152, v2")
    p("v_add_u32 v5, v5, v6")
    p("s_lshr_b32 s16, s2, 1")
    p(f"s_mul_i32 s16, s16, {XT}")
    p("s_and_b32 s17, s2, 1")
    p("s_lshl_b32 s17, s17, 7")
    p("s_add_u32 s16, s16, s17")
    p("s_mul_i32 s17, s2, 9216")
    X = 16; T = 40; L = 64
    if mode == "in":
        for i in range(3): p(f"buffer_load_dwordx4 {v(L+4*i,4)}, v5, s[8:11], s17 offen offset:{16*i}")
        nsrc = 1
    else:
        for k in range(5):
            base = WS["X2"] if k == 0 else WS["PART"] + (k - 1) * XSZ
            p(f"s_add_u32 s18, s16, {hex(base)}")
            for i in range(3): p(f"buffer_load_dwordx4 {v(L+12*k+4*i,4)}, v4, {WSD}, s18 offen offset:{256*i}")
        nsrc = 5
    for k in range(nsrc):
        for u in range(12):
            if k == 0:
                p.add(unpack(X + 2 * u, L + u))
            else:
                t = T + 2 * (u % 4)
                p.add(unpack(t, L + 12 * k + u))
                p(f"v_add_f32 {v(X+2*u)}, {v(X+2*u)}, {v(t)}")
                p(f"v_add_f32 {v(X+2*u+1)}, {v(X+2*u+1)}, {v(t+1)}")
    if mode != "in":
        for u in range(12): p(f"v_cvt_pk_bf16_f32 {v(L+u)}, {v(X+2*u)}, {v(X+2*u+1)}")
    if mode == "out":
        for i in range(3): p(f"buffer_store_dwordx4 {v(L+4*i,4)}, v5, s[8:11], s17 offen offset:{16*i}")
        p(f"{lab}_skip:")
        return
    p(f"s_add_u32 s18, s16, {hex(WS['XP'])}")
    for i in range(3): p(f"buffer_store_dwordx4 {v(L+4*i,4)}, v4, {WSD}, s18 offen offset:{256*i}")
    p(f"v_add_f32 v8, {v(X)}, {v(X+1)}")
    p(f"v_mul_f32 v9, {v(X)}, {v(X)}")
    p(f"v_fmac_f32 v9, {v(X+1)}, {v(X+1)}")
    for u in range(2, 24):
        p(f"v_add_f32 v8, v8, {v(X+u)}")
        p(f"v_fmac_f32 v9, {v(X+u)}, {v(X+u)}")
    xsum(p, [8, 9], 10, [3, 4, 5])
    p("v_lshlrev_b32 v6, 5, v2")
    p("s_lshl_b32 s18, s3, 3")
    p("v_add_u32 v7, s18, v6")
    p("ds_write_b64 v7, v[8:9]")
    p("s_waitcnt lgkmcnt(0)")
    p("s_barrier")
    p("ds_read_b128 v[8:11], v6")
    p("ds_read_b64 v[12:13], v6 offset:16")
    p("v_add_f32 v8, v8, v10")
    p("v_add_f32 v9, v9, v11")
    p("v_add_f32 v8, v8, v12")
    p("v_add_f32 v9, v9, v13")
    p(f"v_mul_f32 v8, {fl(1/D)}, v8")
    p(f"v_mul_f32 v9, {fl(1/D)}, v9")
    p("v_fma_f32 v9, -v8, v8, v9")
    p("v_max_f32 v9, 0, v9")
    p(f"v_add_f32 v9, {fl(1e-5)}, v9")
    p("v_rsq_f32 v9, v9")
    p("v_mul_f32 v8, v8, v9")
    for u in range(24): p(f"v_fma_f32 {v(X+u)}, {v(X+u)}, v9, -v8")
    for u in range(12): p(f"v_cvt_pk_bf16_f32 {v(T+u)}, {v(X+2*u)}, {v(X+2*u+1)}")
    p(f"s_add_u32 s18, s16, {hex(WS['XN'])}")
    for i in range(3): p(f"buffer_store_dwordx4 {v(T+4*i,4)}, v4, {WSD}, s18 offen offset:{256*i}")
    p(f"s_branch {lab}_done")
    p(f"{lab}_skip:")
    p("s_barrier")
    p(f"{lab}_done:")

def selmat(p, dst, src):
    p(f"v_sub_u32 v12, {v(src)}, v3")
    p("v_and_b32 v13, 1, v12")
    p("v_lshlrev_b32 v13, 4, v13")
    p("v_lshlrev_b32 v13, v13, v11")
    p("v_lshrrev_b32 v12, 1, v12")
    for u in range(4):
        p(f"v_cmp_eq_u32 vcc, {u}, v12")
        p(f"v_cndmask_b32 {v(dst+u)}, 0, v13, vcc")

def prep_common(p):
    p("v_and_b32 v2, 15, v0")
    p("v_lshrrev_b32 v4, 4, v0")
    p("v_lshlrev_b32 v3, 3, v4")
    p("v_mov_b32 v11, 0x3f80")
    p("v_and_b32 v5, 12, v2")
    p("v_and_b32 v6, 3, v2")
    p("v_lshl_add_u32 v5, v5, 1, v6")
    p("v_lshlrev_b32 v1, 4, v0")

def pair_sels(p, S0):
    selmat(p, S0, 5)
    p("v_add_u32 v7, 4, v5")
    selmat(p, S0 + 4, 7)
    selmat(p, S0 + 8, 2)
    p("v_add_u32 v7, 16, v2")
    selmat(p, S0 + 12, 7)

def tr_block(p, A0, A1, sel, C, D, out):
    p(f"{M16} {v(D,4)}, {v(A0,4)}, {v(sel,4)}, {C}")
    p(f"{M16} {v(D+4,4)}, {v(A1,4)}, {v(sel,4)}, {C}")
    return [f"v_cvt_pk_bf16_f32 {v(out+u)}, {v(D+2*u)}, {v(D+2*u+1)}" for u in range(4)]

def prep13(p):
    srd(p, 8, "w1", D * F * 2)
    srd(p, 12, "w3", D * F * 2)
    prep_common(p)
    p("s_and_b32 s21, s20, 1")
    p("s_lshr_b32 s22, s20, 1")
    p("s_mul_i32 s24, s22, 7282")
    p("s_lshr_b32 s24, s24, 16")
    p("s_mul_i32 s25, s24, 9")
    p("s_sub_u32 s25, s22, s25")
    p("s_cmp_eq_u32 s25, 4")
    p("s_cselect_b64 vcc, -1, 0")
    p("s_cselect_b32 s26, 16, 4")
    p("v_cndmask_b32 v8, v5, v2, vcc")
    p("v_add_u32 v9, s26, v8")
    selmat(p, 16, 8)
    selmat(p, 20, 9)
    p("s_waitcnt lgkmcnt(0)")
    p("s_cmp_eq_u32 s21, 1")
    p("s_cselect_b32 s8, s12, s8")
    p("s_cselect_b32 s9, s13, s9")
    p("s_mov_b32 s23, 9216")
    p("v_mul_lo_u32 v7, v5, s23")
    p("v_lshl_add_u32 v7, v4, 4, v7")
    p("s_lshl_b32 s23, s22, 6")
    L = 96
    for k in range(36):
        p(f"buffer_load_dwordx4 {v(L+4*k,4)}, v7, s[8:11], s23 offen")
        p(f"s_add_u32 s23, s23, {9216*(4 if k % 2 == 0 else 28)}")
    p(f"s_mul_i32 s26, s24, {2*CH13}")
    p("s_lshl_b32 s27, s21, 10")
    p("s_add_u32 s26, s26, s27")
    p(f"s_add_u32 s26, s26, {hex(WS['W13'])}")
    p("s_mul_i32 s27, s25, 73728")
    p("s_add_u32 s26, s26, s27")
    p("s_cmp_gt_u32 s25, 4")
    p(f"s_cselect_b32 s27, {5*73728-CH13}, 0")
    p("s_sub_u32 s26, s26, s27")
    p("s_cmp_eq_u32 s25, 4")
    p("s_mov_b32 s27, 2048")
    p("s_mov_b32 s28, 4096")
    p(f"s_cmov_b32 s27, {CH13}")
    p("s_cmov_b32 s28, 2048")
    p("s_add_u32 s27, s26, s27")
    for k in range(36):
        for b in range(2):
            p(f"{M16} {v(24+4*b,4)}, {v(L+4*k,4)}, {v(16+4*b,4)}, {'0' if k == 0 else v(24+4*b,4)}")
    for b in range(2):
        p(f"v_add_f32 {v(24+4*b)}, {v(24+4*b)}, {v(25+4*b)}")
        p(f"v_add_f32 {v(26+4*b)}, {v(26+4*b)}, {v(27+4*b)}")
        p(f"v_add_f32 {v(24+4*b)}, {v(24+4*b)}, {v(26+4*b)}")
    xsum(p, [24, 28], 8, [4, 5])
    for b in range(2):
        for u in (3, 2, 1, 0): p(f"v_mul_f32 {v(24+4*b+u)}, {fl(-1/D)}, {v(24+4*b)}")
    pend = []
    for ks in range(KS):
        for b in range(2):
            n = 2 * ks + b
            Dr, o = 32 + 8 * (n % 4), 64 + 4 * (n % 4)
            cv = tr_block(p, L + 8 * ks, L + 8 * ks + 4, 16 + 4 * b, v(24 + 4 * b, 4), Dr, o)
            cv += [f"buffer_store_dwordx4 {v(o,4)}, v1, {WSD}, {s(26+b)} offen", f"s_add_u32 {s(26+b)}, {s(26+b)}, s28"]
            pend.append(cv)
            if len(pend) > 2: p.add(pend.pop(0))
    for c in pend: p.add(c)

def prep_rows9(p, place):
    L = 96
    for rem in range(9):
        p(f"buffer_load_dwordx4 {v(L+8*rem,4)}, v7, s[8:11], s23 offen offset:{64*rem}")
        p(f"buffer_load_dwordx4 {v(L+8*rem+4,4)}, v8, s[8:11], s23 offen offset:{64*rem}")
    pend = []
    for rem in range(9):
        for b in range(2):
            n = 2 * rem + b
            Dr, o = 32 + 8 * (n % 4), 64 + 4 * (n % 4)
            cv = tr_block(p, L + 8 * rem, L + 8 * rem + 4, (24 if rem == 4 else 16) + 4 * b, "0", Dr, o)
            cv += [f"s_add_u32 s27, s26, {place(rem, b)}", f"buffer_store_dwordx4 {v(o,4)}, v1, {WSD}, s27 offen"]
            pend.append(cv)
            if len(pend) > 2: p.add(pend.pop(0))
    for c in pend: p.add(c)

def prep2(p):
    srd(p, 8, "w2", D * F * 2)
    prep_common(p)
    pair_sels(p, 16)
    p("s_and_b32 s21, s20, 1")
    p("s_lshr_b32 s22, s20, 1")
    p("v_mul_u32_u24 v7, 1152, v5")
    p("v_lshl_add_u32 v7, v4, 4, v7")
    p("v_add_u32 v8, 4608, v7")
    p(f"s_mul_i32 s23, s22, {32*1152}")
    p("s_mul_i32 s24, s21, 576")
    p("s_add_u32 s23, s23, s24")
    p("s_mul_i32 s24, s22, 1821")
    p("s_lshr_b32 s24, s24, 16")
    p("s_mul_i32 s25, s24, 108")
    p("s_add_u32 s25, s25, s22")
    p("s_mul_i32 s24, s21, 72")
    p("s_add_u32 s25, s25, s24")
    p("s_mul_i32 s26, s25, 9216")
    p(f"s_add_u32 s26, s26, {hex(WS['W2'])}")
    def place(rem, b):
        dcs, t = (0, 2 * rem + b) if rem < 4 else ((b, 8) if rem == 4 else (1, 2 * (rem - 5) + b))
        return dcs * 36 * 9216 + t * 1024
    prep_rows9(p, place)

def prepo(p):
    srd(p, 8, "wo", D * D * 2)
    prep_common(p)
    pair_sels(p, 16)
    p("s_and_b32 s21, s20, 1")
    p("s_lshr_b32 s22, s20, 1")
    p("v_lshrrev_b32 v7, 3, v2")
    p("v_mul_u32_u24 v7, 18, v7")
    p("v_and_b32 v8, 7, v2")
    p("v_add_u32 v7, v7, v8")
    p("v_lshrrev_b32 v8, 1, v2")
    p("v_and_b32 v9, 1, v8")
    p("v_lshrrev_b32 v8, 1, v8")
    p("v_lshl_add_u32 v8, v8, 2, v9")
    p("v_mul_u32_u24 v8, 18, v8")
    p("v_and_b32 v9, 1, v2")
    p("v_add3_u32 v8, v8, v9, 16")
    p("s_cmp_lt_u32 s22, 16")
    p("s_cselect_b64 vcc, -1, 0")
    p(f"s_mov_b32 s24, {36*1152}")
    p(f"s_cmov_b32 s24, {8*1152}")
    p("v_cndmask_b32 v7, v8, v7, vcc")
    p("v_mul_u32_u24 v7, 1152, v7")
    p("v_lshl_add_u32 v7, v4, 4, v7")
    p("v_add_u32 v8, s24, v7")
    p(f"s_mul_i32 s23, s22, {36*1152}")
    p("s_sub_u32 s25, s22, 16")
    p(f"s_mul_i32 s25, s25, {288*1152}")
    p("s_cmp_lt_u32 s22, 16")
    p("s_cselect_b32 s23, s23, s25")
    p("s_mul_i32 s24, s21, 576")
    p("s_add_u32 s23, s23, s24")
    p(f"s_mul_i32 s26, s21, {4*92160}")
    p("s_mul_i32 s24, s22, 5120")
    p("s_add_u32 s26, s26, s24")
    p(f"s_add_u32 s26, s26, {hex(WS['WO'])}")
    def place(rem, b):
        if rem == 4: dcs, t = 1 + b, 4
        else:
            dcs = (0, 0, 1, 1, None, 2, 2, 3, 3)[rem]
            t = 2 * (rem - (0, 2, 5, 7)[dcs]) + b
        return dcs * 92160 + t * 1024
    prep_rows9(p, place)

def prepq(p):
    srd(p, 8, "wqkv", D * 3 * D * 2)
    prep_common(p)
    SQ, SK, SV, LQ, LK, LV = 16, 24, 32, 36, 40, 44
    p("v_mov_b32 v10, 99")
    for b in range(2):
        p(f"v_add_u32 v7, {4*b}, v5")
        p("v_cmp_gt_u32 vcc, 8, v2")
        p("v_cndmask_b32 v8, v10, v7, vcc")
        p("v_subrev_u32 v7, 16, v7")
        p("v_cndmask_b32 v9, v7, v10, vcc")
        selmat(p, SQ + 4 * b, 8)
        selmat(p, SK + 4 * b, 9)
    selmat(p, SV, 2)
    for dst, c0 in ((LK, 0), (LQ, 8), (LV, 1)):
        p(f"v_cmp_eq_u32 vcc, {c0}, v2")
        p("v_cndmask_b32 v7, v10, 16, vcc")
        p(f"v_cmp_eq_u32 vcc, {c0+4}, v2")
        p("v_cndmask_b32 v7, v7, 17, vcc")
        selmat(p, dst, 7)
    p("s_and_b32 s21, s20, 31")
    p("s_lshr_b32 s22, s20, 5")
    p("v_mul_u32_u24 v7, 3456, v5")
    p("v_lshl_add_u32 v7, v4, 4, v7")
    p(f"s_mul_i32 s23, s22, {96*3456}")
    p("s_mul_i32 s24, s21, 36")
    p("s_add_u32 s23, s23, s24")
    p("s_mul_i32 s26, s21, 73728")
    p("s_mul_i32 s24, s22, 12288")
    p("s_add_u32 s26, s26, s24")
    p(f"s_add_u32 s26, s26, {hex(WS['WQKV'])}")
    L = 128
    for k in range(6):
        for m in range(3): p(f"buffer_load_dwordx4 {v(L+12*k+4*m,4)}, v7, s[8:11], s23 offen offset:{1152*m}")
        p(f"s_add_u32 s23, s23, {3456*(4 if k % 2 == 0 else 28)}")
    for ks in range(3):
        for blk in range(2):
            A = L + 12 * (2 * ks + blk)
            terms = [[(0, SQ), (1, SK)], [(0, SQ + 4), (1, SK + 4)], [(2, SV)], [(0, LQ), (1, LK), (2, LV)]]
            for t, tl in enumerate(terms):
                Dr = 48 + 8 * t + 4 * blk
                for n, (m, sel) in enumerate(tl):
                    p(f"{M16} {v(Dr,4)}, {v(A+4*m,4)}, {v(sel,4)}, {'0' if n == 0 else v(Dr,4)}")
        for t in range(4):
            o = 80 + 16 * (ks % 2) + 4 * t
            for u in range(4): p(f"v_cvt_pk_bf16_f32 {v(o+u)}, {v(48+8*t+2*u)}, {v(48+8*t+2*u+1)}")
            p(f"buffer_store_dwordx4 {v(o,4)}, v1, {WSD}, s26 offen offset:{1024*t}")
        p("s_add_u32 s26, s26, 4096")

def k_prep():
    p = Prog("prep")
    entry(p, "prep", 256 + 201)
    p("s_cmp_lt_u32 s2, 256")
    p("s_cbranch_scc0 prep_w", take="both")
    lnp(p, "in", "prep_ln")
    p("s_endpgm")
    p("prep_w:")
    p("s_sub_u32 s20, s2, 256")
    p("s_lshl_b32 s20, s20, 2")
    p("s_add_u32 s20, s20, s3")
    progs = [p]
    secs = [("q", 192, prepq), ("a", 288, prep13), ("b", 288, prep2), ("o", 36, prepo)]
    for nm, n, fn in secs[:-1]:
        p(f"s_cmp_lt_u32 s20, {n}")
        p(f"s_cbranch_scc1 prep_{nm}")
        p(f"s_sub_u32 s20, s20, {n}")
    p("s_branch prep_o")
    leave(p, "prep")
    for nm, n, fn in secs:
        q = Prog("prep_" + nm)
        q(f"prep_{nm}:")
        q("s_waitcnt lgkmcnt(0)")
        fn(q)
        q("s_endpgm")
        progs.append(q)
    return progs

def xreg(n):
    return 256 + 4 * n if n < 64 else 224 + 4 * (n - 64)

def k_qkv():
    p = Prog("qkv")
    entry(p, "qkv", 256)
    p("s_and_b32 s16, s2, 7")
    p("s_lshr_b32 s17, s2, 3")
    p("v_lshlrev_b32 v1, 4, v0")
    p("s_mul_i32 s18, s17, 73728")
    p("s_lshl_b32 s19, s3, 10")
    p("s_add_u32 s18, s18, s19")
    p(f"s_add_u32 s18, s18, {hex(WS['WQKV'])}")
    p("s_lshl_b32 s20, s16, 2")
    p("s_add_u32 s20, s20, s3")
    p(f"s_mul_i32 s21, s20, {4*XT}")
    p(f"s_add_u32 s24, s21, {hex(WS['XN'])}")
    for t in range(1, 4): p(f"s_add_u32 {s(24+t)}, {s(23+t)}, {XT}")
    for ks in range(KS):
        p(f"s_add_u32 m0, s19, {4096*ks}")
        p(f"buffer_load_dwordx4 v1, {WSD}, s18 offen lds", tag="w")
        p("s_add_u32 s18, s18, 4096")
    def xl(ks):
        L = [f"buffer_load_dwordx4 {R(xreg(4*ks+t),4)}, v1, {WSD}, {s(24+t)} offen offset:{1024*(ks%4)}" for t in range(4)]
        if ks % 4 == 3: L += [f"s_add_u32 {s(24+t)}, {s(24+t)}, 4096" for t in range(4)]
        return L
    LA = 5
    for ks in range(LA): p.add(xl(ks))
    KB = 73728
    p("v_and_b32 v2, 15, v0")
    p("v_lshrrev_b32 v3, 4, v0")
    p(f"s_mul_i32 s22, s3, {REC}")
    p(f"s_add_u32 s22, s22, {KB}")
    p("v_lshrrev_b32 v4, 3, v2")
    p("v_and_b32 v5, 7, v2")
    p("v_lshl_add_u32 v4, v4, 4, v5")
    p("v_and_b32 v5, 1, v3")
    p("v_lshl_add_u32 v4, v5, 5, v4")
    p("v_cmp_gt_u32 vcc, 2, v3")
    p(f"v_mov_b32 v5, {KVB}")
    p("v_cndmask_b32 v6, 0, v5, vcc")
    p("v_cndmask_b32 v7, v5, 0, vcc")
    p("v_lshl_add_u32 v6, v4, 4, v6")
    p("v_lshl_add_u32 v7, v4, 3, v7")
    p("s_add_u32 s23, s22, 512")
    p("v_add_u32 v6, s23, v6")
    p("v_add_u32 v7, s22, v7")
    p("s_add_u32 s23, s22, 2560")
    p("v_mul_u32_u24 v8, 288, v3")
    p("v_lshl_add_u32 v8, v2, 4, v8")
    p("v_add_u32 v8, s23, v8")
    p("v_lshrrev_b32 v9, 2, v2")
    p("v_mul_u32_u24 v9, 288, v9")
    p("v_lshl_add_u32 v9, v3, 4, v9")
    p("v_and_b32 v10, 3, v2")
    p("v_lshl_add_u32 v9, v10, 1, v9")
    p("s_add_u32 s23, s23, 256")
    p("v_add_u32 v9, s23, v9")
    p(f"v_mov_b32 v5, {fl(LOG2E / math.sqrt(DH))}")
    p("v_cndmask_b32 v10, 1.0, v5, vcc")
    p("v_cndmask_b32 v11, v5, 1.0, vcc")
    p("v_cndmask_b32 v12, 0, 1.0, vcc")
    p("v_add_u32 v13, s22, v1")
    p("v_add_u32 v14, 0x8000, v1")
    stamp(p, 1)
    p("WAITVM w")
    p("s_barrier")
    stamp(p, 2)
    W, ACC = 16, 48
    def wr(ks):
        b, o = (1, 4096 * ks) if ks < 12 else (14, 4096 * ks - 0x8000)
        return [f"ds_read_b128 {v(W+16*(ks%2)+4*t,4)}, {v(b)} offset:{o+1024*t}" for t in range(4)]
    p.add(wr(0))
    for ks in range(KS):
        mf = []
        for t in range(4):
            for tt in range(4):
                d = v(ACC + 16 * tt + 4 * t, 4)
                w, x = v(W + 16 * (ks % 2) + 4 * t, 4), R(xreg(4 * ks + tt), 4)
                A, B = (x, w) if t == 2 else (w, x)
                mf.append(f"{M16} {d}, {A}, {B}, {'0' if ks == 0 else d}")
        st = []
        if ks + 1 < KS: st.append((wr(ks + 1), 0, 8))
        if ks + LA < KS: st.append((xl(ks + LA), 4, 16))
        p.add(weave(mf, st, None))
    T = 112
    stamp(p, 3)
    for tt in range(4):
        A0 = ACC + 16 * tt
        kt2, ab = tt >> 1, tt & 1
        for u in range(8): p(f"v_mul_f32 {v(A0+u)}, {v(A0+u)}, v10")
        p(f"v_mul_f32 {v(A0+12)}, {v(A0+12)}, v11")
        for u in range(4): p(f"v_cvt_pk_bf16_f32 {v(T+4*tt+u)}, {v(A0+2*u)}, {v(A0+2*u+1)}")
        p(f"ds_write_b128 v6, {v(T+4*tt,4)} offset:{kt2*1024+ab*128}")
        p(f"v_cvt_pk_bf16_f32 {v(A0+12)}, {v(A0+12)}, v12")
        p(f"ds_write_b32 v7, {v(A0+12)} offset:{ab*64+kt2*4}")
        p(f"v_cvt_pk_bf16_f32 {v(A0+13)}, {v(A0+13)}, {v(A0+13)}")
        for u in range(2): p(f"v_cvt_pk_bf16_f32 {v(T+16+4*kt2+2*ab+u)}, {v(A0+8+2*u)}, {v(A0+9+2*u)}")
        if ab: p(f"ds_write_b128 v8, {v(T+16+4*kt2,4)} offset:{kt2*1152}")
    p("s_mov_b64 exec, 0xffffffff")
    for tt in range(4): p(f"ds_write_b16 v9, {v(ACC+16*tt+13)} offset:{(tt>>1)*1152+(tt&1)*8}")
    p("s_mov_b64 exec, -1")
    p("s_lshl_b32 s23, s17, 5")
    p("s_add_u32 s23, s23, s20")
    p(f"s_mul_i32 s23, s23, {REC}")
    p(f"s_add_u32 s23, s23, {hex(WS['QKV'])}")
    p("s_add_u32 s28, s23, 4096")
    p("s_waitcnt lgkmcnt(0)")
    for k in range(8): p(f"ds_read_b128 {v(144+4*k,4)}, v13 offset:{1024*k}")
    for k in range(8):
        if k == 7: p("s_mov_b64 exec, 0xffff")
        p(f"buffer_store_dwordx4 {v(144+4*k,4)}, v1, {WSD}, {s(23 if k < 4 else 28)} offen offset:{1024*(k%4)}")
    leave(p, "qkv")
    return [p]

def k_att():
    p = Prog("att")
    entry(p, "att", 256)
    O, SS, P, Q1, Q2 = 16, 80, 112, 128, 144
    KV = lambda b: 256 + 28 * b
    p("s_and_b32 s16, s2, 7")
    p("s_lshr_b32 s17, s2, 3")
    p("v_lshlrev_b32 v1, 4, v0")
    p("v_lshlrev_b32 v2, 3, v0")
    p("v_and_b32 v4, 31, v0")
    p("v_lshrrev_b32 v5, 5, v0")
    p("v_cmp_eq_u32 vcc, 20, v4")
    p("v_cndmask_b32 v3, v4, 17, vcc")
    p("v_lshlrev_b32 v3, 4, v3")
    p("v_mul_u32_u24 v6, 288, v5")
    p("v_add_u32 v3, v3, v6")
    p("v_add_u32 v3, 2560, v3")
    p(f"s_mul_i32 s18, s17, {32*REC}")
    p(f"s_add_u32 s18, s18, {hex(WS['QKV'])}")
    p("s_lshl_b32 s19, s16, 2")
    p("s_add_u32 s20, s19, s3")
    p("s_xor_b32 s21, s20, 1")
    p(f"s_mul_i32 s22, s20, {REC}")
    p(f"s_mul_i32 s23, s21, {REC}")
    p(f"s_mul_i32 s24, s19, {REC}")
    p(f"s_add_u32 s25, s18, {KVB}")
    p("s_add_u32 s22, s22, s25")
    p("s_add_u32 s23, s23, s25")
    p("s_add_u32 s24, s24, s18")
    p("s_mov_b32 s30, 0x0011ffff")
    p("s_mov_b32 s31, 0x0011ffff")
    for u in range(2):
        p(f"buffer_load_dwordx2 {v(160+2*u,2)}, v2, {WSD}, {s(22+u)} offen")
        for k in range(2): p(f"buffer_load_dwordx4 {v(Q1+8*u+4*k,4)}, v1, {WSD}, {s(22+u)} offen offset:{512+1024*k}")
    p(f"buffer_load_dwordx2 v[164:165], v2, {WSD}, s24 offen")
    p(f"buffer_load_dwordx4 v[168:171], v1, {WSD}, s24 offen offset:512")
    p("v_and_b32 v6, 27, v4")
    p("v_cmp_eq_u32 vcc, 17, v6")
    p("v_mov_b32 v7, 0x3f803f80")
    p("v_cndmask_b32 v7, 0, v7, vcc")
    for b in range(4):
        for u in range(16): p(f"v_accvgpr_write_b32 {R(KV(b)+8+u)}, v7")
    p("s_and_b32 s26, s3, 1")
    p(f"s_mul_i32 s26, s26, {2*REC}")
    p("s_add_u32 s26, s26, s18")
    p("s_mov_b32 s27, s16")
    def unit_addr(par):
        if par == 0:
            return [f"s_mul_i32 s28, s27, {4*REC}", "s_add_u32 s28, s28, s26", "s_add_u32 s27, s27, 1", "s_and_b32 s27, s27, 7"]
        return [f"s_add_u32 s28, s28, {REC}"]
    def unit_loads(b):
        k = KV(b)
        L = [f"buffer_load_dwordx2 {R(k+24,2)}, v2, {WSD}, s28 offen"]
        L += [f"buffer_load_dwordx4 {R(k+4*j,4)}, v1, {WSD}, s28 offen offset:{512+1024*j}" for j in range(2)]
        V = ["s_mov_b64 exec, s[30:31]"]
        V += [f"buffer_load_dwordx4 {R(k+8+4*j,4)}, v3, {WSD}, s28 offen offset:{576*j}" for j in range(4)]
        V += ["s_mov_b64 exec, -1"]
        return L, V
    for b in range(3):
        L, V = unit_loads(b)
        p.add(unit_addr(b & 1) + L + V)
    for u in range(64): p(f"v_mov_b32 {v(O+u)}, 0")
    for i in range(4):
        p(f"v_mov_b32 {v(Q2+4*i)}, {v(160+i)}")
        p(f"v_mov_b32 {v(Q2+4*i+1)}, 0")
        p(f"v_mov_b32 {v(Q2+4*i+2)}, 0")
    T = 176
    stamp(p, 1)
    for i in range(4):
        p(f"{M32} {v(T+16*i,16)}, v[168:171], {v(Q1+4*i,4)}, 0")
        p(f"{M32K8} {v(T+16*i,16)}, v[164:165], {v(Q2+4*i,2)}, {v(T+16*i,16)}")
    p("v_cmp_gt_u32 vcc, 32, v0")
    p("s_mov_b32 s29, 0x07060100")
    for i in range(4):
        t = T + 16 * i
        p(f"v_max3_f32 {v(t)}, {v(t)}, {v(t+1)}, {v(t+2)}")
        for u in range(3, 15, 2): p(f"v_max3_f32 {v(t)}, {v(t)}, {v(t+u)}, {v(t+u+1)}")
        p(f"v_max_f32 {v(t)}, {v(t)}, {v(t+15)}")
        p(f"v_cndmask_b32 {v(t)}, 0, -{v(t)}, vcc")
        p(f"v_perm_b32 {v(Q2+4*i)}, {v(t)}, {v(160+i)}, s29")
        p(f"v_perm_b32 {v(Q2+4*i+3)}, {v(t)}, {v(160+i)}, s29")
    def qk(n):
        b, kt2, i = (n >> 3) & 3, (n >> 2) & 1, n & 3
        d = v(SS + 16 * (n & 1), 16)
        return [f"{M32} {d}, {R(KV(b)+4*kt2,4)}, {v(Q1+4*i,4)}, 0",
                f"{M32K8} {d}, {R(KV(b)+24,2)}, {v(Q2+4*i+2*kt2,2)}, {d}"]
    def pv(n):
        b, kt2, i = (n >> 3) & 3, (n >> 2) & 1, n & 3
        d = v(O + 16 * i, 16)
        return [f"{M32} {d}, {R(KV(b)+8+8*kt2+4*t,4)}, {v(P+8*(n&1)+4*t,4)}, {d}" for t in range(2)]
    def slot(n, first=False, extra=()):
        sb, pb = SS + 16 * (n & 1), P + 8 * (n & 1)
        mf = qk(n + 1) + ([] if first else pv(n - 1))
        E = [f"v_exp_f32 {v(sb+u)}, {v(sb+u)}" for u in range(16)]
        C = [f"v_cvt_pk_bf16_f32 {v(pb+u)}, {v(sb+2*u)}, {v(sb+2*u+1)}" for u in range(8)]
        out = []
        for g in range(4):
            if g < len(mf): out.append(mf[g])
            out += E[4 * g:4 * g + 3]
            if g: out.append(C[2 * g - 1])
            out += [E[4 * g + 3], C[2 * g]]
            if g == 1: out += list(extra)
        out.append(C[7])
        return out
    stamp(p, 2)
    p.add(qk(0))
    p("s_mov_b32 s33, 4")
    p.add(slot(0, first=True))
    p("s_branch att_l1")
    p(".p2align 6")
    p("att_l0:")
    p.add(slot(32))
    p("att_l1:")
    for n in range(1, 32):
        ex = []
        b = ((n >> 3) + 3) & 3
        L, V = unit_loads(b)
        if n & 7 == 1: ex = unit_addr(b & 1) + L
        if n & 7 == 2: ex = V
        if n == 31: ex = ["s_sub_u32 s33, s33, 1", "s_cmp_lg_u32 s33, 0"]
        p.add(slot(n, extra=ex))
    p("s_cbranch_scc1 att_l0")
    p.add(pv(127))
    p("att_red:")
    stamp(p, 3)
    p("s_mul_i32 s28, s3, 5120")
    p("s_xor_b32 s29, s3, 1")
    p("s_mul_i32 s29, s29, 5120")
    p("v_add_u32 v6, s28, v1")
    p("v_add_u32 v7, s28, v2")
    p("v_add_u32 v8, s29, v1")
    p("v_add_u32 v9, s29, v2")
    for k in range(2):
        o = O + 32 + 16 * k
        p(f"ds_write_b128 v6, {v(o,4)} offset:{2560*k}")
        p(f"ds_write_b128 v6, {v(o+4,4)} offset:{2560*k+1024}")
        p(f"ds_write_b64 v7, {v(o+8,2)} offset:{2560*k+2048}")
    p("v_and_b32 v10, 7, v4")
    p("v_lshrrev_b32 v11, 4, v4")
    p("v_lshl_add_u32 v10, v11, 3, v10")
    p("v_bfe_u32 v11, v4, 3, 1")
    p("v_lshlrev_b32 v12, 4, v10")
    p("v_lshl_add_u32 v12, v5, 8, v12")
    p("v_lshl_add_u32 v12, v11, 14, v12")
    p("v_lshl_add_u32 v13, v11, 4, v10")
    p("v_lshl_add_u32 v13, v5, 5, v13")
    p("v_lshlrev_b32 v13, 2, v13")
    p("s_lshl_b32 s34, s20, 16")
    p("s_lshl_b32 s35, s17, 9")
    p("s_add_u32 s34, s34, s35")
    p(f"s_add_u32 s34, s34, {hex(WS['OP'])}")
    p("s_add_u32 s35, s34, 0x8000")
    p("s_lshl_b32 s36, s17, 13")
    p("s_lshl_b32 s37, s20, 8")
    p("s_add_u32 s36, s36, s37")
    p(f"s_add_u32 s36, s36, {hex(WS['OL'])}")
    p("s_waitcnt lgkmcnt(0)")
    p("s_barrier")
    for k in range(2):
        t = T + 16 * k
        p(f"ds_read_b64 {v(t+8,2)}, v9 offset:{2560*k+2048}")
        p(f"ds_read_b128 {v(t,4)}, v8 offset:{2560*k}")
        p(f"ds_read_b128 {v(t+4,4)}, v8 offset:{2560*k+1024}")
    for k in range(2):
        o, t = O + 16 * k, T + 16 * k
        p(f"v_add_f32 {v(o+9)}, {v(o+9)}, {v(t+9)}")
        p(f"v_rcp_f32 {v(o+10)}, {v(o+9)}")
        for u in (8, 0, 1, 2, 3, 4, 5, 6, 7): p(f"v_add_f32 {v(o+u)}, {v(o+u)}, {v(t+u)}")
        for u in range(9): p(f"v_mul_f32 {v(o+u)}, {v(o+u)}, {v(o+10)}")
        for u in range(4): p(f"v_cvt_pk_bf16_f32 {v(t+u)}, {v(o+2*u)}, {v(o+2*u+1)}")
        p(f"buffer_store_dwordx4 {v(t,4)}, v12, {WSD}, {s(34+k)} offen")
    p(f"v_permlane32_swap_b32 {v(O+8)}, {v(O+24)}")
    p(f"v_cvt_pk_bf16_f32 v14, {v(O+8)}, {v(O+24)}")
    p(f"buffer_store_dword v14, v13, {WSD}, s36 offen")
    leave(p, "att")
    return [p]

def k_oproj():
    p = Prog("oproj")
    entry(p, "oproj", 256)
    B, W, ACC, RS = 16, 96, 136, 160
    p("s_and_b32 s16, s2, 7")
    p("s_lshr_b32 s17, s2, 3")
    p("s_and_b32 s18, s17, 3")
    p("s_lshr_b32 s17, s17, 2")
    p("s_lshl_b32 s16, s16, 4")
    p("s_lshl_b32 s18, s18, 2")
    p("s_add_u32 s16, s16, s18")
    p("s_add_u32 s16, s16, s3")
    p("v_lshlrev_b32 v1, 4, v0")
    p("s_mul_i32 s18, s17, 92160")
    p("s_lshl_b32 s19, s3, 12")
    p("s_add_u32 s18, s18, s19")
    p(f"s_add_u32 s18, s18, {hex(WS['WO'])}")
    p("s_lshl_b32 s20, s16, 14")
    p(f"s_add_u32 s20, s20, {hex(WS['OP'])}")
    p("s_lshl_b32 s21, s16, 6")
    p(f"s_add_u32 s21, s21, {hex(WS['OL'])}")
    p("v_and_b32 v2, 15, v0")
    p("v_lshrrev_b32 v3, 4, v0")
    p("v_lshlrev_b32 v4, 15, v3")
    p("v_lshl_add_u32 v4, v2, 2, v4")
    for g in range(6):
        p(f"s_add_u32 m0, s19, {16384*g}")
        for k in range(4): p(f"buffer_load_dwordx4 v1, {WSD}, s18 offen offset:{1024*k} lds", tag="w")
        p("s_add_u32 s18, s18, 16384")
    for ks in range(16):
        p(f"buffer_load_dwordx4 {v(B+4*ks,4)}, v1, {WSD}, s20 offen offset:{1024*(ks%4)}")
        if ks % 4 == 3: p("s_add_u32 s20, s20, 4096")
    for k in range(8):
        p(f"buffer_load_dword {v(B+64+k)}, v4, {WSD}, s21 offen")
        p(f"s_add_u32 s21, s21, {8192*(13 if k == 3 else 1)}")
    p("s_lshr_b32 s22, s17, 2")
    p("s_and_b32 s23, s17, 3")
    p("s_mul_i32 s22, s22, 9")
    p("s_mul_i32 s24, s23, 5")
    p("s_lshr_b32 s24, s24, 1")
    p("s_add_u32 s24, s24, s22")
    p("s_lshl_b32 s24, s24, 10")
    p("s_add_u32 s25, s22, 4")
    p("s_lshl_b32 s25, s25, 10")
    p("s_and_b32 s26, s23, 2")
    p("s_lshl_b32 s26, s26, 2")
    p("s_add_u32 s25, s25, s26")
    p(f"s_mul_i32 s26, s16, {XT}")
    p("s_add_u32 s24, s24, s26")
    p("s_add_u32 s25, s25, s26")
    p(f"s_add_u32 s26, s24, {hex(WS['XP'])}")
    p(f"s_add_u32 s27, s25, {hex(WS['XP'])}")
    p(f"s_add_u32 s24, s24, {hex(WS['X2'])}")
    p(f"s_add_u32 s25, s25, {hex(WS['X2'])}")
    for k in range(2): p(f"buffer_load_dwordx4 {v(RS+4*k,4)}, v1, {WSD}, s26 offen offset:{1024*k}")
    p(f"buffer_load_dwordx2 {v(RS+8,2)}, v1, {WSD}, s27 offen")
    p("v_add_u32 v5, 0x8000, v1")
    p("s_add_u32 s28, s23, 1")
    p("s_and_b32 s28, s28, 2")
    p("s_lshl_b32 s29, s17, 14")
    p("s_lshl_b32 s30, s16, 7")
    p("s_add_u32 s29, s29, s30")
    p(f"s_add_u32 s29, s29, {hex(WS['ST'])}")
    p("v_lshlrev_b32 v6, 3, v2")
    stamp(p, 1)
    p("WAITVM w")
    p("s_barrier")
    stamp(p, 2)
    def wr(ks):
        b, o = (1, 5120 * ks) if ks < 10 else (5, 5120 * ks - 0x8000)
        return [f"ds_read_b128 {v(W+20*(ks%2)+4*t,4)}, {v(b)} offset:{o+1024*t}" for t in range(5)]
    p.add(wr(0))
    for ks in range(KS):
        mf = [f"{M16} {v(ACC+4*t,4)}, {v(W+20*(ks%2)+4*t,4)}, {v(B+4*ks,4)}, {'0' if ks == 0 else v(ACC+4*t,4)}" for t in range(5)]
        p.add(weave(mf, [(wr(ks + 1), 0, 5)] if ks + 1 < KS else [], None))
    T = 176
    def fin(u0, n):
        for u in range(u0, u0 + n, 2): p.add(unpack(T + u, RS + u // 2))
        for u in range(u0, u0 + n): p(f"v_add_f32 {v(T+u)}, {v(T+u)}, {v(ACC+u)}")
        for u in range(u0, u0 + n, 2): p(f"v_cvt_pk_bf16_f32 {v(200+u//2)}, {v(T+u)}, {v(T+u+1)}")
    def stat(u0, n):
        for u in range(u0, u0 + n):
            p(f"v_add_f32 v8, v8, {v(T+u)}")
            p(f"v_fmac_f32 v9, {v(T+u)}, {v(T+u)}")
    stamp(p, 3)
    p("v_mov_b32 v8, 0")
    p("v_mov_b32 v9, 0")
    fin(0, 16)
    for k in range(2): p(f"buffer_store_dwordx4 {v(200+4*k,4)}, v1, {WSD}, s24 offen offset:{1024*k}")
    p("s_cmp_eq_u32 s28, 0")
    p("s_cbranch_scc1 oproj_nohalf", take="both")
    fin(16, 4)
    p(f"buffer_store_dwordx2 v[208:209], v1, {WSD}, s25 offen")
    stat(16, 4)
    p("oproj_nohalf:")
    stat(0, 16)
    xsum(p, [8, 9], 10, [4, 5])
    p("s_mov_b64 exec, 0xffff")
    p(f"buffer_store_dwordx2 v[8:9], v6, {WSD}, s29 offen")
    leave(p, "oproj")
    return [p]

def k_up():
    p = Prog("up")
    entry(p, "up", 256)
    W, ACC, C1, IR2, T, HO = 16, 48, 176, 180, 184, 200
    p("s_and_b32 s16, s2, 7")
    p("s_lshr_b32 s17, s2, 3")
    p("s_and_b32 s18, s16, 1")
    p("s_lshr_b32 s16, s16, 1")
    p("s_lshl_b32 s18, s18, 2")
    p("s_and_b32 s19, s17, 3")
    p("s_add_u32 s18, s18, s19")
    p("s_lshr_b32 s17, s17, 2")
    p("s_lshl_b32 s16, s16, 3")
    p("s_add_u32 s17, s17, s16")
    p("s_lshl_b32 s18, s18, 2")
    p("s_add_u32 s18, s18, s3")
    p("v_lshlrev_b32 v1, 4, v0")
    p("v_lshlrev_b32 v2, 3, v0")
    p(f"s_mul_i32 s20, s17, {CH13}")
    p("s_mul_i32 s19, s3, 6144")
    p("s_add_u32 s20, s20, s19")
    p(f"s_add_u32 s20, s20, {hex(WS['W13'])}")
    p(f"s_mul_i32 s21, s18, {4*XT}")
    p(f"s_add_u32 s24, s21, {hex(WS['X2'])}")
    for t in range(1, 4): p(f"s_add_u32 {s(24+t)}, {s(23+t)}, {XT}")
    def dma(stage):
        tag = f"w{stage % 6}"
        L = []
        for h in range(2):
            L.append(f"s_add_u32 m0, s19, {24576*(stage%6)+3072*h}")
            L += [(f"buffer_load_dwordx4 v1, {WSD}, s20 offen offset:{1024*k} lds", tag) for k in range(3)]
            L.append(f"s_add_u32 s20, s20, {3072 if h == 0 else 24576-3072}")
        return L
    def xl(ks):
        L = [f"buffer_load_dwordx4 {R(xreg(4*ks+t),4)}, v1, {WSD}, {s(24+t)} offen offset:{1024*(ks%4)}" for t in range(4)]
        if ks % 4 == 3: L += [f"s_add_u32 {s(24+t)}, {s(24+t)}, 4096" for t in range(4)]
        return L
    p.add(dma(0))
    LA = 5
    for ks in range(LA): p.add(xl(ks))
    p("s_lshl_b32 s22, s18, 9")
    p(f"s_add_u32 s22, s22, {hex(WS['ST'])}")
    for k in range(8):
        p(f"buffer_load_dwordx2 {v(ACC+64+2*k,2)}, v2, {WSD}, s22 offen")
        p("s_add_u32 s22, s22, 16384")
    p.add(dma(1))
    p("v_add_u32 v3, 49152, v1")
    p("v_add_u32 v4, 98304, v1")
    p("s_lshr_b32 s22, s17, 1")
    p("s_and_b32 s23, s17, 1")
    p("s_mul_i32 s22, s22, 9216")
    p(f"s_mul_i32 s28, s18, {4*HT}")
    p("s_add_u32 s22, s22, s28")
    p(f"s_add_u32 s22, s22, {hex(WS['HP'])}")
    p("s_mul_i32 s28, s23, 5120")
    p("s_add_u32 s28, s28, s22")
    p("s_lshl_b32 s23, s23, 3")
    p("s_add_u32 s32, s22, s23")
    p("s_add_u32 s32, s32, 4096")
    for t in range(1, 4):
        p(f"s_add_u32 {s(28+t)}, {s(27+t)}, {HT}")
        p(f"s_add_u32 {s(32+t)}, {s(31+t)}, {HT}")
    p("v_and_b32 v5, 15, v0")
    p("v_lshlrev_b32 v5, 2, v5")
    z = ACC + 64
    stats = []
    for k in range(1, 8):
        stats += [f"v_add_f32 {v(z)}, {v(z)}, {v(z+2*k)}", f"v_add_f32 {v(z+1)}, {v(z+1)}, {v(z+2*k+1)}"]
    stats += [f"v_mul_f32 {v(z)}, {fl(1/D)}, {v(z)}", f"v_mul_f32 {v(z+1)}, {fl(1/D)}, {v(z+1)}",
              f"v_fma_f32 {v(z+1)}, -{v(z)}, {v(z)}, {v(z+1)}", f"v_max_f32 {v(z+1)}, 0, {v(z+1)}",
              f"v_add_f32 {v(z+1)}, {fl(1e-5)}, {v(z+1)}", f"v_rsq_f32 {v(z)}, {v(z+1)}", "s_nop 0",
              f"v_mul_f32 {v(z)}, {fl(-LOG2E)}, {v(z)}"]
    for t in range(4):
        stats += [f"ds_bpermute_b32 {v(C1+t)}, v5, {v(z)} offset:{64*t}", f"ds_bpermute_b32 {v(IR2+t)}, v5, {v(z+1)} offset:{64*t}"]

    def rd(off, dst):
        b, o = (1, off) if off < 49152 else ((3, off - 49152) if off < 98304 else (4, off - 98304))
        return f"ds_read_b128 {v(dst,4)}, {v(b)} offset:{o}"
    def wr(pas, ks):
        if pas < 4:
            return [rd(73728 * (pas % 2) + 4096 * ks + 1024 * t, W + 16 * (ks % 2) + 4 * t) for t in range(4)]
        return [rd(2048 * ks + 1024 * t, W + 16 * (ks % 2) + 4 * t) for t in range(2)]
    def epi(acc, nb, sreg):
        L = []
        for tt in range(4):
            for b in range(nb):
                g = acc + 16 * tt + 8 * b
                u = g + 4
                t = T + 4 * ((2 * tt + b) % 2)
                L += [f"v_mul_f32 {v(t+i)}, {v(g+i)}, {v(C1+tt)}" for i in range(4)]
                L += [f"v_exp_f32 {v(t+i)}, {v(t+i)}" for i in range(4)]
                L += [f"v_mul_f32 {v(g+i)}, {v(g+i)}, {v(u+i)}" for i in range(2)]
                L += [f"v_fma_f32 {v(t+i)}, {v(t+i)}, {v(IR2+tt)}, {v(IR2+tt)}" for i in range(4)]
                L += [f"v_rcp_f32 {v(t+i)}, {v(t+i)}" for i in range(4)]
                L += [f"v_mul_f32 {v(g+i)}, {v(g+i)}, {v(u+i)}" for i in range(2, 4)]
                L += [f"v_mul_f32 {v(g+i)}, {v(g+i)}, {v(t+i)}" for i in range(4)]
                o = HO + 4 * (tt % 2) + 2 * b
                L += [f"v_cvt_pk_bf16_f32 {v(o+i)}, {v(g+2*i)}, {v(g+2*i+1)}" for i in range(2)]
            if nb == 2:
                L += [f"buffer_store_dwordx4 {v(HO+4*(tt%2),4)}, v1, {WSD}, {s(sreg+tt)} offen", f"s_add_u32 {s(sreg+tt)}, {s(sreg+tt)}, 1024"]
            else:
                L += [f"buffer_store_dwordx2 {v(HO+4*(tt%2),2)}, v1, {WSD}, {s(sreg+tt)} offen"]
        return L
    def sync(stage):
        return [f"WAITVM w{stage % 6}", "s_barrier"]
    def gpass(pas, nxt, extra, dmas):
        nt = 4 if pas < 4 else 2
        acc = ACC + 64 * (pas % 2)
        main, st = [], []
        per = 4 * nt
        for ks in range(KS):
            pre = []
            if pas < 4 and ks % 6 == 5 and (ks < 17 or nxt is not None): pre = sync(3 * pas + ks // 6 + 1)
            if pas == 4 and ks == 11: pre = sync(13)
            for t in range(nt):
                for tt in range(4):
                    d = v(acc + 16 * tt + 4 * t, 4)
                    m = f"{M16} {d}, {v(W+16*(ks%2)+4*t,4)}, {R(xreg(4*ks+tt),4)}, {'0' if ks == 0 else d}"
                    main.append([m] + pre if pre else m)
                    pre = []
            rs = wr(pas, ks + 1) if ks + 1 < KS else (wr(nxt, 0) if nxt is not None else [])
            st.append((rs, per * ks, per * ks + per // 2))
            if ks in dmas: st.append((dma(dmas[ks]), per * ks, per * (ks + 3)))
        return weave(main, st + extra, None)
    stamp(p, 1)
    p.add(sync(0))
    stamp(p, 2)
    p.add(wr(0, 0))
    xs = [(xl(ks + LA), 16 * ks + 4, 16 * ks + 16) for ks in range(KS - LA)]
    p.add(gpass(0, 1, xs + [(stats, 16 * 13, 16 * 17)], {3: 2, 9: 3, 12: 4, 15: 5}))
    stamp(p, 3)
    p("s_mov_b32 s36, 0")
    p(".p2align 3")
    p("up_loop:")
    body = gpass(1, 2, [(epi(ACC, 2, 28), 8, 280)], {0: 6, 6: 7, 12: 8})
    p.add(body)
    p("s_cmp_lg_u32 s36, 0")
    p("s_cbranch_scc1 up_last", take=[False, True])
    p.add(gpass(2, 1, [(epi(ACC + 64, 2, 28), 8, 280)], {0: 9, 6: 10, 12: 11}))
    p("s_mov_b32 s36, 1")
    p("s_branch up_loop")
    p("up_last:")
    stamp(p, 4)
    p.add(gpass(4, None, [(epi(ACC + 64, 2, 28), 4, 144)], {}))
    stamp(p, 5)
    p.add(epi(ACC, 1, 32))
    leave(p, "up")
    return [p]

def k_down():
    p = Prog("down")
    entry(p, "down", 256)
    W, ACC, T = 16, 96, 176
    HB = lambda k, tt: 256 + 8 * (k % 12) + 4 * tt
    p("s_and_b32 s16, s2, 7")
    p("s_lshr_b32 s17, s2, 3")
    p("s_and_b32 s18, s16, 1")
    p("s_lshr_b32 s16, s16, 1")
    p("s_lshl_b32 s18, s18, 3")
    p("s_and_b32 s19, s17, 7")
    p("s_add_u32 s18, s18, s19")
    p("s_lshr_b32 s17, s17, 3")
    p("s_lshl_b32 s18, s18, 2")
    p("s_add_u32 s18, s18, s3")
    p("v_lshlrev_b32 v1, 4, v0")
    p("s_lshl_b32 s20, s16, 2")
    p("s_add_u32 s20, s20, s17")
    p(f"s_mul_i32 s20, s20, {36*9216}")
    p("s_mul_i32 s19, s3, 9216")
    p("s_add_u32 s20, s20, s19")
    p(f"s_add_u32 s20, s20, {hex(WS['W2'])}")
    p(f"s_mul_i32 s24, s18, {2*HT}")
    p("s_mul_i32 s21, s16, 36864")
    p("s_add_u32 s24, s24, s21")
    p(f"s_add_u32 s24, s24, {hex(WS['HP'])}")
    p(f"s_add_u32 s25, s24, {HT}")
    def dma(stage):
        tag = f"w{stage % 3}"
        L = []
        for h in range(3):
            L.append(f"s_add_u32 m0, s19, {36864*(stage%3)+3072*h}")
            L += [(f"buffer_load_dwordx4 v1, {WSD}, s20 offen offset:{1024*k} lds", tag) for k in range(3)]
            L.append(f"s_add_u32 s20, s20, {3072 if h < 2 else 36864-6144}")
        return L
    def hl(k):
        L = [f"buffer_load_dwordx4 {R(HB(k,tt),4)}, v1, {WSD}, {s(24+tt)} offen offset:{1024*(k%4)}" for tt in range(2)]
        if k % 4 == 3: L += [f"s_add_u32 {s(24+tt)}, {s(24+tt)}, 4096" for tt in range(2)]
        return L
    p.add(dma(0))
    for k in range(4): p.add(hl(k))
    p.add(dma(1))
    for k in range(4, 11): p.add(hl(k))
    p("v_add_u32 v3, 55296, v1")
    for u in range(72): p(f"v_mov_b32 {v(ACC+u)}, 0")
    p("s_lshr_b32 s22, s17, 1")
    p("s_and_b32 s23, s17, 1")
    p("s_mul_i32 s22, s22, 9216")
    p(f"s_mul_i32 s28, s18, {2*XT}")
    p("s_add_u32 s22, s22, s28")
    p(f"s_mul_i32 s28, s16, {XSZ}")
    p("s_add_u32 s22, s22, s28")
    p(f"s_add_u32 s22, s22, {hex(WS['PART'])}")
    p("s_mul_i32 s28, s23, 5120")
    p("s_add_u32 s28, s28, s22")
    p("s_lshl_b32 s23, s23, 3")
    p("s_add_u32 s30, s22, s23")
    p("s_add_u32 s30, s30, 4096")
    p(f"s_add_u32 s29, s28, {XT}")
    p(f"s_add_u32 s31, s30, {XT}")
    def wr(k):
        off = 9216 * (k % 12)
        b, o = (1, off) if off < 55296 else (3, off - 55296)
        return [f"ds_read_b128 {v(W+36*(k%2)+4*t,4)}, {v(b)} offset:{o+1024*t}" for t in range(9)]
    stamp(p, 1)
    p("WAITVM w0")
    p("s_barrier")
    stamp(p, 2)
    p.add(wr(0))
    p.add(dma(2))
    p("s_mov_b32 s36, 3")
    p(".p2align 3")
    p("down_loop:")
    main, st = [], []
    for k in range(12):
        pre = ["s_waitcnt lgkmcnt(0)", f"WAITVM w{(k//4+1) % 3}", "s_barrier"] if k % 4 == 3 else []
        for t in range(9):
            for tt in range(2):
                d = v(ACC + 36 * tt + 4 * t, 4)
                m = f"{M16} {d}, {v(W+36*(k%2)+4*t,4)}, {R(HB(k,tt),4)}, {d}"
                main.append(pre + [m] if pre else m)
                pre = []
        st.append((wr(k + 1), 18 * k, 18 * k + 14))
        st.append((hl(k + 11), 18 * k + 1, 18 * k + 9))
        if k % 4 == 3: st.append((dma(k // 4), 18 * k + 1, 18 * k + 18))
    st.append((["s_sub_u32 s36, s36, 1"], 18 * 10, 18 * 10 + 1))
    p.add(weave(main, st, None))
    p("s_cmp_lg_u32 s36, 0")
    p("s_cbranch_scc1 down_loop")
    stamp(p, 3)
    for tt in range(2):
        for k in range(4):
            o = T + 20 * tt + 4 * k
            for u in range(4): p(f"v_cvt_pk_bf16_f32 {v(o+u)}, {v(ACC+36*tt+8*k+2*u)}, {v(ACC+36*tt+8*k+2*u+1)}")
            p(f"buffer_store_dwordx4 {v(o,4)}, v1, {WSD}, {s(28+tt)} offen offset:{1024*k}")
        o = T + 20 * tt + 16
        for u in range(2): p(f"v_cvt_pk_bf16_f32 {v(o+u)}, {v(ACC+36*tt+32+2*u)}, {v(ACC+36*tt+33+2*u)}")
        p(f"buffer_store_dwordx2 {v(o,2)}, v1, {WSD}, {s(30+tt)} offen")
    leave(p, "down")
    return [p]

def k_red(mode):
    nm = "red" + mode
    p = Prog(nm)
    entry(p, nm, 256)
    lnp(p, mode, nm + "_ln")
    leave(p, nm)
    return [p]

def kd(name, nv, acc):
    return f""".p2align 6
.amdhsa_kernel {name}_kernel
  .amdhsa_next_free_vgpr {nv}
  .amdhsa_next_free_sgpr 96
  .amdhsa_accum_offset {acc}
  .amdhsa_group_segment_fixed_size 0
  .amdhsa_kernarg_size 80
  .amdhsa_user_sgpr_count 2
  .amdhsa_user_sgpr_kernarg_segment_ptr 1
  .amdhsa_system_sgpr_workgroup_id_x 1
.end_amdhsa_kernel
"""

def build(extra_nops=0):
    K = {"prep": (k_prep(), 457, 256, 256, 256), "qkv": (k_qkv(), 256, 73728 + 4 * REC + 1024, 512, 256),
         "att": (k_att(), 256, 20480, 512, 256), "oproj": (k_oproj(), 256, 98304, 256, 256),
         "up": (k_up(), 256, 147456, 512, 256), "down": (k_down(), 256, 110592, 512, 256),
         "redmid": (k_red("mid"), 256, 256, 128, 128), "redout": (k_red("out"), 256, 0, 128, 128)}
    order = ["prep"] + ["qkv", "att", "oproj", "up", "down", "redmid"] + ["qkv", "att", "oproj", "up", "down", "redout"]
    order += ["redout"] * extra_nops
    head = [l for l in open(f"cdna_kernels/{NAME}.s.ref").read().split("\n") if l.startswith(";") and "@launch" not in l and "Override" not in l and "grid=ceil" not in l]
    out = "\n".join(head) + "\n"
    for n in order: out += f"; @launch kernel={n}_kernel grid=({K[n][1]},1,1) block=(256,1,1) lds={K[n][2]}\n"
    out += '.amdgcn_target "amdgcn-amd-amdhsa--gfx950"\n.text\n'
    for n, (progs, *_r) in K.items():
        for q in progs: out += q.finalize(verbose=True).text()
    out += '.section .rodata,"a"\n'
    for n, (progs, g, lds, nv, acc) in K.items(): out += kd(n, nv, acc)
    return out

if __name__ == "__main__":
    if "diag" in sys.argv:
        DIAG = True
        sys.argv.remove("diag")
    dst = sys.argv[1] if len(sys.argv) > 1 else f"cdna_kernels/{NAME}.s"
    open(dst, "w").write(build(int(sys.argv[2]) if len(sys.argv) > 2 else 0))
```

```python
from layout import S, D, H, DH, F, KS, XT, XSZ, CH13, HT
VS = 592
KVB = 4992
REC = KVB + 2560
BLK = 16384
def _alloc(items):
    off, m = 0, {}
    for name, size in items:
        m[name] = off
        off = (off + size + 0xFFFF) & ~0xFFFF
    m["END"] = off
    return m
WS = _alloc([("DIAG", 1 << 20), ("WQKV", 32 * 72 * 1024), ("WO", 8 * 90 * 1024 + 8192), ("W13", 32 * CH13), ("W2", 16 * 36 * 9216)])
FS = 128
AC = _alloc([("FLAG", 4608 * FS), ("XP", XSZ), ("XN", XSZ), ("KV", 32 * 16 * BLK), ("OP", 128 * 16384), ("OL", 32 * 8192),
             ("X2", XSZ), ("ST", 8 * 2048 * 8), ("HP", 128 * HT), ("PART", 4 * XSZ)])
ACT0 = WS["END"]
LSZ = AC["END"]
FQ, FA, FU, FD, FO, FR = (AC["FLAG"] + k * FS for k in (0, 1024, 2048, 3072, 4096, 4352))
TOTAL = ACT0 + 2 * LSZ
def hpos(fsl):
    e, rem = divmod(fsl, 9)
    return 8 * rem + 2 * e if rem < 4 else (32 + e if rem == 4 else 8 * (rem - 5) + 2 * e + 1)
if __name__ == "__main__":
    print(WS, AC, hex(ACT0), hex(LSZ), hex(TOTAL))
```

```python
import math, struct, sys
import gen as G
from gen import fl, M16, M32, M32K8, srd, unpack, xsum, LOG2E, NAME, kd, xreg
from asmb import Prog, v, a, s, R, I
from asmb import sched as pack
from layout2 import *

WSD = s(4, 4)
ACD = s(48, 4)
DIAG = False
OPT = dict(sig_slot=2, poll_slot=7, chk_slot=10, la_q=6, la_u=6, drd=11, g7=1, one_a=1, fsa=128, fso=128, fsd=128, fsr=128)
SPIN = 200000

NAMES = []
def stamp_items(name):
    if not DIAG: return []
    if name not in NAMES: NAMES.append(name)
    i = NAMES.index(name)
    return [["s_memtime s[62:63]", "s_waitcnt lgkmcnt(0)", f"v_writelane_b32 v223, s62, {i}", f"v_writelane_b32 v221, s14, {i}"]]
SN = "start,go,wbar,qkvmain,attpro,attloop,attepi,sigA,pollA,opmain,opepi,sigO,pollO,up0,up123,down,dnepi,sigD,pollD,red,end".split(",")
def stamp(p, i):
    p.add(flat(stamp_items(SN[i] if isinstance(i, int) else i)))

SG = 219
def signal(off_sgpr, val, tmp):
    return [f"v_mov_b32 {v(tmp)}, {val}", f"buffer_store_dword {v(tmp)}, {v(SG)}, {ACD}, {off_sgpr} offen sc1"]

def flat(L):
    out = []
    for x in L: out += x if isinstance(x, list) else [x]
    return out

class Spins:
    def __init__(self): self.code = Prog("spin"); self.n = 0
    def check(self, voff, off_sgpr, val, tmp):
        k = self.n; self.n += 1
        q = self.code
        q(f"spin{k}:")
        q("s_sub_u32 s14, s14, 1")
        q(f"s_cbranch_scc1 spin{k}_out")
        q(f"buffer_load_dword {v(tmp)}, {v(voff)}, {ACD}, {off_sgpr} offen sc1")
        q("s_waitcnt vmcnt(0)")
        q(f"v_cmp_gt_u32 vcc, {val}, {v(tmp)}")
        q(f"s_cbranch_vccnz spin{k}", take=False)
        q(f"s_branch back{k}", take=[False])
        q(f"spin{k}_out:")
        q("s_mov_b32 s14, 0")
        q(f"s_branch back{k}", take=[False])
        self.last = [f"s_cbranch_vccnz spin{k}", f"back{k}:"]
        return [f"v_cmp_gt_u32 vcc, {val}, {v(tmp)}", self.last]
    def load(self, voff, off_sgpr, tmp):
        return [f"buffer_load_dword {v(tmp)}, {v(voff)}, {ACD}, {off_sgpr} offen sc1"]

QW = 36864
RB = 110592
SCR = 143360
WOL = 49152
LNS = 147456

def mega():
    p = Prog("mega")
    FSA, FSO, FSD, FSR = OPT["fsa"], OPT["fso"], OPT["fsd"], OPT["fsr"]
    sp = Spins()
    nm = "main"
    p(f".globl {nm}_kernel\n.p2align 8\n.type {nm}_kernel,@function\n{nm}_kernel:")
    p("s_cmp_ge_u32 s2, 256")
    p(f"s_cbranch_scc1 {nm}_end")
    if DIAG:
        p("s_memrealtime s[58:59]")
        p("v_mov_b32 v223, 0")
        p("v_mov_b32 v221, 0")
    srd(p, 4, "ws", TOTAL)
    p("v_lshrrev_b32 v1, 6, v0")
    p("v_and_b32 v0, 63, v0")
    p("v_readfirstlane_b32 s3, v1")
    p("v_lshlrev_b32 v1, 4, v0")
    p("v_lshlrev_b32 v2, 3, v0")
    p(f"v_min_u32 {v(SG)}, 1, v0")
    p(f"v_lshlrev_b32 {v(SG)}, 30, {v(SG)}")
    p("s_and_b32 s16, s2, 7")
    p("s_lshr_b32 s17, s2, 3")
    p("s_and_b32 s8, s16, 1")
    p("s_lshl_b32 s8, s8, 2")
    p("s_and_b32 s18, s17, 3")
    p("s_add_u32 s8, s8, s18")
    p("s_lshr_b32 s9, s16, 1")
    p("s_lshl_b32 s9, s9, 3")
    p("s_lshr_b32 s17, s17, 2")
    p("s_add_u32 s9, s9, s17")
    p("s_lshl_b32 s10, s8, 2")
    p("s_add_u32 s10, s10, s3")
    p("s_mov_b32 s13, 0")
    p(f"s_mov_b32 s14, {SPIN}")
    p("s_mul_i32 s11, s9, 73728")
    p(f"s_add_u32 s11, s11, {hex(WS['WQKV'])}")
    p(f"s_add_u32 s48, s4, {hex(ACT0)}")
    p("s_addc_u32 s49, s5, 0")
    p(f"s_mov_b32 s50, {hex(2*LSZ)}")
    p("s_mov_b32 s51, 0x00020000")
    stamp(p, 0)
    p("s_mul_i32 s19, s3, 18432")
    p("s_add_u32 s20, s19, s11")
    for g in range(6):
        p(f"s_add_u32 m0, s19, {QW+3072*g}")
        for k in range(3): p(f"buffer_load_dwordx4 v1, {WSD}, s20 offen offset:{1024*k} lds", tag="wq")
        p("s_add_u32 s20, s20, 3072")
    p("s_branch qkv_go")

    p("layer:")
    p("v_and_b32 v3, 7, v0")
    p(f"v_mul_u32_u24 v3, {FSR}, v3")
    p(f"s_mul_i32 s16, s10, {8*FSR}")
    p(f"s_add_u32 s16, s16, {FR}")
    p.add(sp.load(3, "s16", 4))
    p.add(flat(sp.check(3, "s16", 1, 4)))
    p("qkv_go:")
    stamp(p, 1)
    p(f"s_mul_i32 s24, s10, {4*XT}")
    p(f"s_add_u32 s24, s24, {hex(AC['XN'])}")
    for t in range(1, 4): p(f"s_add_u32 {s(24+t)}, {s(23+t)}, {XT}")
    xq = lambda ks, t: 256 + 16 * (ks % 9) + 4 * t
    def xlq(ks):
        L = [(f"buffer_load_dwordx4 {R(xq(ks,t),4)}, v1, {ACD}, {s(24+t)} offen offset:{1024*(ks%4)} sc1", f"x{ks}") for t in range(4)]
        if ks % 4 == 3: L += [f"s_add_u32 {s(24+t)}, {s(24+t)}, 4096" for t in range(4)]
        return L
    LA = OPT["la_q"]
    for ks in range(LA): p.add(xlq(ks))
    p(f"v_add_u32 v14, {QW}, v1")
    p(f"v_add_u32 v15, {QW+0x8000}, v1")
    KK = lambda b: 256 + 152 + 10 * b
    VV = lambda b: 256 + 192 + 16 * b
    setup = f"""v_and_b32 v4, 15, v0
v_lshrrev_b32 v3, 4, v0
s_mul_i32 s22, s3, {REC}
s_add_u32 s22, s22, {RB}
v_lshrrev_b32 v6, 3, v4
v_and_b32 v5, 7, v4
v_lshl_add_u32 v11, v6, 4, v5
v_and_b32 v5, 1, v3
v_lshl_add_u32 v11, v5, 5, v11
v_cmp_gt_u32 vcc, 2, v3
v_mov_b32 v5, {KVB}
s_add_u32 s23, s22, 512
v_cndmask_b32 v6, 0, v5, vcc
v_cndmask_b32 v7, v5, 0, vcc
v_lshl_add_u32 v6, v11, 4, v6
v_lshl_add_u32 v7, v11, 3, v7
v_add_u32 v6, s23, v6
v_add_u32 v7, s22, v7
s_add_u32 s23, s22, 2560
v_mul_u32_u24 v8, 288, v3
v_lshrrev_b32 v9, 1, v3
v_add_u32 v9, v9, v4
v_lshl_add_u32 v8, v9, 4, v8
v_add_u32 v8, s23, v8
v_and_b32 v9, 3, v0
v_mul_u32_u24 v9, {VS}, v9
v_add_u32 v218, s23, v9
v_lshrrev_b32 v9, 2, v4
v_mul_u32_u24 v9, 288, v9
v_lshrrev_b32 v10, 3, v4
v_add_u32 v10, v10, v3
v_lshl_add_u32 v9, v10, 4, v9
v_and_b32 v10, 3, v4
v_lshl_add_u32 v9, v10, 1, v9
s_add_u32 s23, s23, 256
v_add_u32 v9, s23, v9
v_mov_b32 v5, {fl(LOG2E / math.sqrt(DH))}
v_cndmask_b32 v10, 1.0, v5, vcc
v_cndmask_b32 v11, v5, 1.0, vcc
v_cndmask_b32 v12, 0, 1.0, vcc
v_add_u32 v13, s22, v1
v_and_b32 v4, 31, v0
v_lshrrev_b32 v5, 5, v0
v_cmp_eq_u32 vcc, 20, v4
s_lshr_b32 s16, s3, 1
s_lshl_b32 s18, s9, 1
s_add_u32 s16, s16, s18
v_cndmask_b32 v3, v4, 17, vcc
v_lshlrev_b32 v3, 4, v3
v_mul_u32_u24 v208, 288, v5
v_add_u32 v3, v3, v208
v_and_b32 v208, 27, v4
v_cmp_eq_u32 vcc, 17, v208
v_mov_b32 v209, 576
s_lshl_b32 s16, s16, 3
s_add_u32 s16, s16, s8
v_cndmask_b32 v3, v3, v209, vcc
v_add_u32 v3, 2560, v3
v_lshlrev_b32 v208, v4, 1
v_and_b32 v208, 0x0033ffff, v208
v_cmp_eq_u32 vcc, 0, v208
s_mul_i32 s23, s16, {BLK}
s_and_b32 s16, s3, 1
s_mul_i32 s19, s16, {KVB}
s_add_u32 s23, s23, s19
s_add_u32 s23, s23, {hex(AC['KV'])}
s_add_u32 s16, s16, s18
s_mul_i32 s16, s16, {8*BLK}
s_add_u32 s16, s16, {hex(AC['KV'])}
@s_add_u32 s52, s48, s16|s_addc_u32 s53, s49, 0
s_mov_b32 s54, {8*BLK}
s_mov_b32 s55, 0x00020000
s_add_u32 s21, s23, 4096
s_xor_b32 s16, s3, 1
s_mul_i32 s16, s16, {REC}
s_add_u32 s16, s16, {RB}
s_and_b32 s17, s3, 1
s_mul_i32 s19, s17, {2*REC}
s_add_u32 s19, s19, {RB}
v_add_u32 v210, s22, v2
v_add_u32 v211, s16, v1
v_add_u32 v212, s16, v2
v_add_u32 v213, s19, v1
v_add_u32 v214, s19, v2
v_add_u32 v215, s19, v3
v_add_u32 v216, {RB}, v1
v_add_u32 v217, {RB}, v2
v_mov_b32 v209, 0x100000
v_cndmask_b32 v3, v3, v209, vcc
v_add_u32 v172, {KVB}, v1
v_add_u32 v173, {KVB}, v2
v_add_u32 v174, {KVB}, v3
s_mov_b32 s30, 0x0033ffff
s_mov_b32 s31, 0x0033ffff
v_mov_b32 v196, 0x3f803f80
v_mov_b32 v197, 0x3f803f80
v_mov_b32 v198, 0x3f803f80
v_mov_b32 v199, 0x3f803f80
ds_write_b128 v218, v[196:199] offset:576""".split("\n")
    setup = [x[1:].split("|") if x[0] == "@" else x for x in setup]
    setup += f"""s_lshl_b32 s16, s9, 5
s_add_u32 s40, s16, s10
s_mul_i32 s40, s40, {FS}
s_add_u32 s40, s40, {FQ}
s_lshl_b32 s19, s17, 1
s_add_u32 s41, s16, s19
s_mul_i32 s41, s41, {FS}
s_add_u32 s41, s41, {FQ}
v_and_b32 v175, 14, v0
v_and_b32 v208, 1, v0
v_lshl_add_u32 v175, v175, 1, v208
v_mul_u32_u24 v175, {FS}, v175
s_lshl_b32 s34, s3, 12
s_and_b32 s36, s9, 7
s_mul_i32 s35, s36, 92160
s_add_u32 s35, s35, s34
s_add_u32 s35, s35, {hex(WS['WO'])}
s_mul_i32 s37, s9, {CH13}
s_add_u32 s37, s37, {hex(WS['W13'])}
s_add_u32 s38, s37, s34
s_add_u32 m0, s34, {WOL}
s_mov_b32 s33, 4
s_mov_b32 s29, 0x07060100
s_mul_i32 s28, s8, {BLK}
s_add_u32 s16, s3, 1
s_and_b32 s16, s16, 3
s_mul_i32 s16, s16, 5120
s_xor_b32 s19, s3, 1
s_add_u32 s19, s19, 1
s_and_b32 s19, s19, 3
s_mul_i32 s19, s19, 5120
s_add_u32 s16, s16, {SCR}
s_add_u32 s19, s19, {SCR}
v_add_u32 v224, s16, v1
v_add_u32 v225, s16, v2
v_add_u32 v226, s19, v1
v_add_u32 v227, s19, v2
v_and_b32 v208, 7, v4
v_lshrrev_b32 v209, 4, v4
v_lshl_add_u32 v208, v209, 3, v208
v_bfe_u32 v209, v4, 3, 1
v_lshlrev_b32 v228, 4, v208
v_lshl_add_u32 v228, v5, 8, v228
v_lshl_add_u32 v228, v209, 14, v228
v_lshl_add_u32 v229, v209, 4, v208
v_lshl_add_u32 v229, v5, 5, v229
v_lshlrev_b32 v229, 2, v229
s_lshl_b32 s66, s10, 16
s_lshl_b32 s16, s9, 9
s_add_u32 s66, s66, s16
s_add_u32 s66, s66, {hex(AC['OP'])}
s_add_u32 s67, s66, 0x8000
s_lshl_b32 s68, s9, 13
s_lshl_b32 s16, s10, 8
s_add_u32 s68, s68, s16
s_add_u32 s68, s68, {hex(AC['OL'])}
s_lshl_b32 s69, s10, 5
s_add_u32 s69, s69, s9
s_mul_i32 s69, s69, {FSA}
s_add_u32 s69, s69, {FA}
s_lshr_b32 s64, s9, 3
s_lshl_b32 s16, s8, 2
s_add_u32 s64, s64, s16
s_lshl_b32 s65, s64, 2
s_add_u32 s65, s65, s3
s_lshr_b32 s16, s36, 2
s_and_b32 s19, s36, 3
s_mul_i32 s16, s16, 9
s_mul_i32 s72, s19, 5
s_lshr_b32 s72, s72, 1
s_add_u32 s72, s72, s16
s_lshl_b32 s72, s72, 10
s_add_u32 s73, s16, 4
s_lshl_b32 s73, s73, 10
s_and_b32 s16, s19, 2
s_lshl_b32 s16, s16, 8
s_add_u32 s73, s73, s16
s_mul_i32 s16, s65, {XT}
s_add_u32 s72, s72, s16
s_add_u32 s73, s73, s16
s_add_u32 s70, s72, {hex(AC['XP'])}
s_add_u32 s71, s73, {hex(AC['XP'])}
s_add_u32 s72, s72, {hex(AC['X2'])}
s_add_u32 s73, s73, {hex(AC['X2'])}
s_add_u32 s77, s19, 1
s_and_b32 s77, s77, 2
v_and_b32 v208, 15, v0
v_lshlrev_b32 v236, 3, v208
v_lshlrev_b32 v230, 4, v208
v_lshl_add_u32 v230, v5, 8, v230
v_bfe_u32 v209, v0, 4, 1
v_lshl_add_u32 v231, v209, 3, v230
v_mul_u32_u24 v232, {FSA}, v4
v_lshrrev_b32 v209, 4, v0
v_lshlrev_b32 v233, 15, v209
v_lshl_add_u32 v233, v208, 2, v233
v_add_u32 v234, {WOL}, v1
v_add_u32 v235, {WOL+0x8000}, v1
s_mul_i32 s74, s64, {32*FSA}
s_add_u32 s74, s74, {FA}
s_lshl_b32 s75, s65, 14
s_add_u32 s75, s75, {hex(AC['OP'])}
s_lshl_b32 s76, s65, 6
s_add_u32 s76, s76, {hex(AC['OL'])}
s_lshl_b32 s78, s36, 14
s_lshl_b32 s16, s65, 7
s_add_u32 s78, s78, s16
s_add_u32 s78, s78, {hex(AC['ST'])}
s_lshl_b32 s79, s64, 3
s_add_u32 s79, s79, s36
s_mul_i32 s79, s79, {FSO}
s_add_u32 s79, s79, {FO}
s_mul_i32 s80, s10, {8*FSO}
s_add_u32 s80, s80, {FO}""".split("\n")
    setup += [f"v_accvgpr_write_b32 {R(VV(0)+u)}, 0" for u in range(32)]
    p("WAITVM wq")
    p("s_barrier")
    stamp(p, 2)
    W, ACC = 16, 48
    def wrq(ks):
        b, o = (14, 4096 * ks) if ks < 12 else (15, 4096 * ks - 0x8000)
        return [f"ds_read_b128 {v(W+16*(ks%2)+4*t,4)}, {v(b)} offset:{o+1024*t}" for t in range(4)]
    p.add(wrq(0))
    p("s_waitcnt lgkmcnt(0)")
    main, st = [], []
    for ks in range(KS):
        for t in range(4):
            for tt in range(4):
                d = v(ACC + 16 * tt + 4 * t, 4)
                w, x = v(W + 16 * (ks % 2) + 4 * t, 4), R(xq(ks, tt), 4)
                A, B = (x, w) if t == 2 else (w, x)
                main.append(f"{M16} {d}, {A}, {B}, {'0' if ks == 0 else d}")
        if ks + 1 < KS:
            st.append((["s_waitcnt lgkmcnt(0)"], 16 * ks + 15, 16 * ks + 16))
            st.append(([f"WAITVM x{ks+1}"], 16 * ks + 14, 16 * ks + 15))
            st.append((wrq(ks + 1), 16 * ks + 1, 16 * ks + 9))
        if ks + LA < KS: st.append((xlq(ks + LA), 16 * ks, 16 * ks + 14))
    st.append((setup, 2, 286))
    p.add(pack(main, st, report="qkv"))
    stamp(p, 3)
    T = 112
    for tt in range(4):
        A0 = ACC + 16 * tt
        kt2, ab = tt >> 1, tt & 1
        for u in range(8): p(f"v_mul_f32 {v(A0+u)}, {v(A0+u)}, v10")
        for u in range(4): p(f"v_cvt_pk_bf16_f32 {v(T+4*tt+u)}, {v(A0+2*u)}, {v(A0+2*u+1)}")
        p(f"ds_write_b128 v6, {v(T+4*tt,4)} offset:{kt2*1024+ab*128}")
        for u in range(2): p(f"v_cvt_pk_bf16_f32 {v(T+16+4*kt2+2*ab+u)}, {v(A0+8+2*u)}, {v(A0+9+2*u)}")
        if ab: p(f"ds_write_b128 v8, {v(T+16+4*kt2,4)} offset:{kt2*2*VS}")
        p(f"v_mul_f32 {v(A0+12)}, {v(A0+12)}, v11")
        p(f"v_cvt_pk_bf16_f32 {v(A0+13)}, {v(A0+13)}, {v(A0+13)}")
        p(f"v_cvt_pk_bf16_f32 {v(A0+12)}, {v(A0+12)}, v12")
        p(f"ds_write_b32 v7, {v(A0+12)} offset:{ab*64+kt2*4}")
    p("s_mov_b64 exec, 0xffffffff")
    for tt in range(4): p(f"ds_write_b16 v9, {v(ACC+16*tt+13)} offset:{(tt>>1)*2*VS+(tt&1)*8}")
    p("s_mov_b64 exec, -1")
    for k in range(5): p(f"ds_read_b128 {v(176+4*k,4)}, v13 offset:{1024*k}")
    p("s_waitcnt lgkmcnt(5)")
    p("s_barrier")

    O, SS, P, Q1, Q2 = 16, 80, 112, 128, 144
    p(f"ds_read_b64 v[160:161], v210 offset:{KVB}")
    p(f"ds_read_b64 v[162:163], v212 offset:{KVB}")
    p("ds_read_b64 v[164:165], v217")
    p("ds_read_b128 v[168:171], v216 offset:512")
    for u in range(2):
        for k in range(2): p(f"ds_read_b128 {v(Q1+8*u+4*k,4)}, {v(211 if u else 13)} offset:{KVB+512+1024*k}")
    for k in range(5):
        if k == 4: p("s_mov_b32 exec_hi, 0xffffff")
        p(f"buffer_store_dwordx4 {v(176+4*k,4)}, v1, {ACD}, {s(23 if k < 4 else 21)} offen offset:{1024*(k%4)} sc1", tag="kv")
    p("s_mov_b64 exec, -1")
    for i in range(4):
        p(f"v_mov_b32 {v(Q2+4*i)}, {v(160+i)}")
        p(f"v_mov_b32 {v(Q2+4*i+1)}, 0")
        p(f"v_mov_b32 {v(Q2+4*i+2)}, 0")
    for b in range(2):
        p(f"ds_read_b64 {R(KK(b)+8,2)}, v214 offset:{REC*b}")
        for j in range(2): p(f"ds_read_b128 {R(KK(b)+4*j,4)}, v213 offset:{REC*b+512+1024*j}")
    for i in range(4):
        p(f"{M32} {v(O+16*i,16)}, v[168:171], {v(Q1+4*i,4)}, 0")
        p(f"{M32K8} {v(O+16*i,16)}, v[164:165], {v(Q2+4*i,2)}, {v(O+16*i,16)}")
    p("s_mov_b64 exec, s[30:31]")
    for b in range(2):
        for j in range(4): p(f"ds_read_b128 {R(VV(b)+4*j,4)}, v215 offset:{REC*b+VS*j}")
    p("s_mov_b64 exec, -1")
    p("v_cmp_gt_u32 vcc, 32, v0")
    for i in range(4):
        t = O + 16 * i
        p(f"v_max3_f32 {v(t)}, {v(t)}, {v(t+1)}, {v(t+2)}")
        for u in range(3, 15, 2): p(f"v_max3_f32 {v(t)}, {v(t)}, {v(t+u)}, {v(t+u+1)}")
        p(f"v_max_f32 {v(t)}, {v(t)}, {v(t+15)}")
        p(f"v_cndmask_b32 {v(t)}, 0, -{v(t)}, vcc")
        p(f"v_perm_b32 {v(Q2+4*i)}, {v(t)}, {v(160+i)}, s29")
        p(f"v_perm_b32 {v(Q2+4*i+3)}, {v(t)}, {v(160+i)}, s29")
        if i == 0:
            p(f"{M32} {v(SS,16)}, {R(KK(0),4)}, {v(Q1,4)}, 0")
        if i == 1:
            p(f"{M32K8} {v(SS,16)}, {R(KK(0)+8,2)}, {v(Q2,2)}, {v(SS,16)}")
    p("s_waitcnt lgkmcnt(0)")
    p("s_barrier")
    stamp(p, 4)
    KVD = s(52, 4)
    def unit_loads(b):
        tg = f"u{b}"
        o16, o8, ov = (172, 173, 174) if b & 1 else (1, 2, 3)
        L = [] if b & 1 else [f"s_add_u32 s28, s28, {BLK}", f"s_and_b32 s28, s28, {8*BLK-1}"]
        L += [(f"buffer_load_dwordx2 {R(KK(b)+8,2)}, {v(o8)}, {KVD}, s28 offen sc1", tg)]
        L += [(f"buffer_load_dwordx4 {R(KK(b)+4*j,4)}, {v(o16)}, {KVD}, s28 offen offset:{512+1024*j} sc1", tg) for j in range(2)]
        L += [(f"buffer_load_dwordx4 {R(VV(b)+4*j,4)}, {v(ov)}, {KVD}, s28 offen offset:{VS*j} sc1", tg) for j in range(4)]
        return L
    def qk(n):
        b, kt2, i = (n >> 3) & 3, (n >> 2) & 1, n & 3
        d = v(SS + 16 * (n & 1), 16)
        return [f"{M32} {d}, {R(KK(b)+4*kt2,4)}, {v(Q1+4*i,4)}, 0",
                f"{M32K8} {d}, {R(KK(b)+8,2)}, {v(Q2+4*i+2*kt2,2)}, {d}"]
    def pv(n, init=False):
        b, kt2, i = (n >> 3) & 3, (n >> 2) & 1, n & 3
        d = v(O + 16 * i, 16)
        return [f"{M32} {d}, {R(VV(b)+8*kt2+4*t,4)}, {v(P+8*(n&1)+4*t,4)}, {'0' if init and t == 0 else d}" for t in range(2)]
    def slot(n, peeled=False, extra=(), pre=()):
        sb, pb = SS + 16 * (n & 1), P + 8 * (n & 1)
        mf = qk(n + 1) + ([] if peeled and n == 0 else pv(n - 1, peeled and n <= 4))
        E = [f"v_exp_f32 {v(sb+u)}, {v(sb+u)}" for u in range(16)]
        C = [f"v_cvt_pk_bf16_f32 {v(pb+u)}, {v(sb+2*u)}, {v(sb+2*u+1)}" for u in range(8)]
        out = []
        extra = list(extra)
        per = -(-len(extra) // 3)
        parts = [extra[:per], [], extra[per:2 * per], extra[2 * per:]]
        for g in range(4):
            if g < len(mf): out.append(mf[g])
            out += flat(parts[g]) + E[4 * g:4 * g + 3]
            if g: out.append(C[2 * g - 1])
            out += [E[4 * g + 3], C[2 * g]]
        out.append(C[7])
        return out
    ex = {n: [] for n in range(16)}
    ex[OPT["sig_slot"]] += ["WAITVM kv"] + signal("s40", 1, 7)
    ex[OPT["poll_slot"]] += sp.load(175, "s41", 8)
    c0 = OPT["chk_slot"]
    ex[c0 - 1] += unit_loads(2)[:2] + sp.check(175, "s41", 1, 8)[:1]
    ex[c0] += [sp.last, unit_loads(2)[2:], unit_loads(3)]
    ex[c0 + 1] += unit_loads(0)[:2] + [unit_loads(0)[2:]]
    ex[14] += [[], [], "WAITVM u2"]
    ex[c0 - 2] += stamp_items("att_a")
    ex[c0 + 2] += stamp_items("att_b")
    for n in range(16): p.add(slot(n, True, ex[n]))
    stamp(p, "att_c")
    p("s_branch att_l2")
    p(".p2align 6")
    p("att_l0:")
    def pre_dma():
        L = [(f"buffer_load_dwordx4 v1, {WSD}, s35 offen offset:{1024*k} lds", "pf") for k in range(4)]
        return [L, "s_add_u32 s35, s35, 16384", "s_add_u32 m0, m0, 16384"]
    for n in range(32):
        if n == 16: p("att_l2:")
        e = []
        L = unit_loads(((n >> 3) + 3) & 3)
        if n & 7 == 1: e = L[:-7] + [L[-7:]] if OPT["g7"] else (L[:-7] + [L[-7:-4]])
        if n & 7 == 2 and not OPT["g7"]: e = [L[-4:]]
        if n in (3, 5, 11): e = pre_dma()
        if n == 8: e = ["s_cmp_eq_u32 s33, 1", "s_cmov_b32 s54, 0"]
        if n == 29: e = ["s_cmp_eq_u32 s33, 2", "s_cmov_b32 s35, s38", "s_cmov_b32 m0, s34"]
        if n == 31: e = ["s_sub_u32 s33, s33, 1", "s_cmp_lg_u32 s33, 0"]
        if n & 7 == 6: e = [[], [], f"WAITVM u{((n+2)>>3)&3}"]
        p.add(slot(n + 32, False, e))
    p("s_cbranch_scc1 att_l0", take=[True, True, True, False])
    p.add(pv(127))
    stamp(p, 5)
    RS = 160
    for k in range(2): p(f"buffer_load_dwordx4 {v(RS+4*k,4)}, v1, {ACD}, s70 offen offset:{1024*k} sc1")
    p(f"buffer_load_dwordx2 {v(RS+8,2)}, v231, {ACD}, s71 offen sc1")
    p("WAITVM pf")
    for k in range(2):
        o = O + 32 + 16 * k
        p(f"ds_write_b128 v224, {v(o,4)} offset:{2560*k}")
        p(f"ds_write_b128 v224, {v(o+4,4)} offset:{2560*k+1024}")
        p(f"ds_write_b64 v225, {v(o+8,2)} offset:{2560*k+2048}")
    p("s_waitcnt lgkmcnt(0)")
    p("s_barrier")
    T = 176
    for k in range(2):
        t = T + 16 * k
        p(f"ds_read_b64 {v(t+8,2)}, v227 offset:{2560*k+2048}")
        p(f"ds_read_b128 {v(t,4)}, v226 offset:{2560*k}")
        p(f"ds_read_b128 {v(t+4,4)}, v226 offset:{2560*k+1024}")
    for k in range(2):
        o, t = O + 16 * k, T + 16 * k
        p(f"v_add_f32 {v(o+9)}, {v(o+9)}, {v(t+9)}")
        p(f"v_rcp_f32 {v(o+10)}, {v(o+9)}")
        for u in (8, 0, 1, 2, 3, 4, 5, 6, 7): p(f"v_add_f32 {v(o+u)}, {v(o+u)}, {v(t+u)}")
        for u in range(9): p(f"v_mul_f32 {v(o+u)}, {v(o+u)}, {v(o+10)}")
        for u in range(4): p(f"v_cvt_pk_bf16_f32 {v(t+u)}, {v(o+2*u)}, {v(o+2*u+1)}")
        p(f"buffer_store_dwordx4 {v(t,4)}, v228, {ACD}, {s(66+k)} offen sc1")
    p(f"v_permlane32_swap_b32 {v(O+8)}, {v(O+24)}")
    p(f"v_cvt_pk_bf16_f32 v14, {v(O+8)}, {v(O+24)}")
    p(f"buffer_store_dword v14, v229, {ACD}, s68 offen sc1")
    stamp(p, 6)

    B, W, ACC = 16, 96, 136
    def wro(ks):
        b, o = (234, 5120 * ks) if ks < 10 else (235, 5120 * ks - 0x8000)
        return [f"ds_read_b128 {v(W+20*(ks%2)+4*t,4)}, {v(b)} offset:{o+1024*t}" for t in range(5)]
    p.add(wro(0))
    p("s_waitcnt vmcnt(0)")
    p.add(signal("s69", 1, 8))
    stamp(p, 7)
    for u in range(0, 20, 2): p.add(unpack(T + u, RS + u // 2))
    if OPT["one_a"]:
        p("s_cmp_lg_u32 s3, 0")
        p("s_cbranch_scc1 opoll_skip", take="both")
    p.add(sp.load(232, "s74", 9))
    p.add(flat(sp.check(232, "s74", 1, 9)))
    if OPT["one_a"]:
        p("opoll_skip:")
        p("s_barrier")
    stamp(p, 8)
    for ks in range(16):
        p(f"buffer_load_dwordx4 {v(B+4*ks,4)}, v1, {ACD}, s75 offen offset:{1024*(ks%4)} sc1")
        if ks % 4 == 3: p("s_add_u32 s75, s75, 4096")
    for k in range(8):
        p(f"buffer_load_dword {v(B+64+k)}, v233, {ACD}, s76 offen sc1")
        if k < 7: p(f"s_add_u32 s76, s76, {8192*(13 if k == 3 else 1)}")
    main, st = [], []
    for ks in range(KS):
        main += [f"{M16} {v(ACC+4*t,4)}, {v(W+20*(ks%2)+4*t,4)}, {v(B+4*ks,4)}, {v((T if ks == 0 else ACC)+4*t,4)}" for t in range(5)]
        if ks + 1 < KS: st.append((wro(ks + 1), 5 * ks, 5 * ks + 5))
    p.add(pack(main, st))
    stamp(p, 9)
    p("v_mov_b32 v8, 0")
    p("v_mov_b32 v9, 0")
    def stat(u0, n):
        for u in range(u0, u0 + n):
            p(f"v_add_f32 v8, v8, {v(ACC+u)}")
            p(f"v_fmac_f32 v9, {v(ACC+u)}, {v(ACC+u)}")
    for k in range(2):
        for u in range(4): p(f"v_cvt_pk_bf16_f32 {v(200+4*k+u)}, {v(ACC+8*k+2*u)}, {v(ACC+8*k+2*u+1)}")
        p(f"buffer_store_dwordx4 {v(200+4*k,4)}, v1, {ACD}, s72 offen offset:{1024*k} sc1")
    p("s_cmp_eq_u32 s77, 0")
    p("s_cbranch_scc1 oproj_nohalf", take="both")
    for u in range(4): p(f"v_cvt_pk_bf16_f32 {v(208+u)}, {v(ACC+16+2*(u&1))}, {v(ACC+17+2*(u&1))}")
    stat(16, 1)
    for u in range(2): p(f"v_permlane16_swap_b32 {v(208+u)}, {v(210+u)}")
    p("s_mov_b32 exec_lo, 0xffff")
    p("s_mov_b32 exec_hi, 0xffff")
    p(f"buffer_store_dwordx4 v[208:211], v230, {ACD}, s73 offen sc1")
    p("s_mov_b64 exec, -1")
    stat(17, 3)
    p("oproj_nohalf:")
    stat(0, 16)
    xsum(p, [8, 9], 10, [4, 5])
    p("s_mov_b64 exec, 0xffff")
    p(f"buffer_store_dwordx2 v[8:9], v236, {ACD}, s78 offen sc1")
    p("s_mov_b64 exec, -1")

    W, ACC, C1, IR2, T, HO = 16, 48, 176, 180, 184, 200
    p(f"""s_mul_i32 s19, s3, 6144
s_add_u32 s20, s37, s19
s_add_u32 s20, s20, 49152
s_mul_i32 s24, s10, {4*XT}
s_add_u32 s24, s24, {hex(AC['X2'])}
s_add_u32 s25, s24, {XT}
s_add_u32 s26, s25, {XT}
s_add_u32 s27, s26, {XT}
s_lshl_b32 s22, s10, 9
s_add_u32 s22, s22, {hex(AC['ST'])}
v_and_b32 v7, 7, v0
v_mul_u32_u24 v6, {FSO}, v7
v_mul_u32_u24 v7, {FS}, v7
v_add_u32 v3, 49152, v1
v_add_u32 v4, 98304, v1
v_and_b32 v5, 15, v0
v_lshlrev_b32 v5, 2, v5
s_mov_b32 s42, {24576-3072}
s_mov_b32 s43, {24576-3072}""")
    stamp(p, 10)
    p("s_waitcnt vmcnt(0)")
    p("s_barrier")
    p("s_cmp_lg_u32 s3, 0")
    p("s_cbranch_scc1 up_nosig", take="both")
    p.add(signal("s79", 1, 8))
    p("up_nosig:")
    stamp(p, 11)
    def dma(stage):
        tag = f"w{stage % 6}"
        L = []
        for h in range(2):
            L.append(f"s_add_u32 m0, s19, {24576*(stage%6)+3072*h}")
            L += [(f"buffer_load_dwordx4 v1, {WSD}, s20 offen offset:{1024*k} lds", tag) for k in range(3)]
            inc = 3072 if h == 0 else {6: "s42", 7: "s43"}.get(stage, 24576 - 3072)
            L.append(f"s_add_u32 s20, s20, {inc}")
        return L
    def xl(ks):
        L = [(f"buffer_load_dwordx4 {R(xreg(4*ks+t),4)}, v1, {ACD}, {s(24+t)} offen offset:{1024*(ks%4)} sc1", f"x{ks}") for t in range(4)]
        if ks % 4 == 3: L += [f"s_add_u32 {s(24+t)}, {s(24+t)}, 4096" for t in range(4)]
        return L
    def rd(off, dst):
        b, o = (1, off) if off < 49152 else ((3, off - 49152) if off < 98304 else (4, off - 98304))
        return f"ds_read_b128 {R(dst,4)}, {v(b)} offset:{o}"
    def wr(pas, ks):
        if pas < 4:
            return [rd(73728 * (pas % 2) + 4096 * ks + 1024 * t, W + 16 * (ks % 2) + 4 * t) for t in range(4)]
        return [rd(2048 * ks + 1024 * t, W + 16 * (ks % 2) + 4 * t) for t in range(2)]
    p.add(dma(2) + dma(3) + wr(0, 0))
    p.add(sp.load(6, "s80", 9))
    p.add(flat(sp.check(6, "s80", 1, 9)))
    stamp(p, 12)
    LA = OPT["la_u"]
    for ks in range(LA): p.add(xl(ks))
    z = ACC + 64
    stl = []
    for k in range(8):
        stl += [f"buffer_load_dwordx2 {v(z+2*k,2)}, v2, {ACD}, s22 offen sc1", "s_add_u32 s22, s22, 16384"]
    addr = f"""s_lshr_b32 s44, s9, 3
s_and_b32 s45, s9, 7
s_mul_i32 s28, s10, {4*HT}
s_mul_i32 s23, s44, 36864
s_add_u32 s23, s23, {hex(AC['HP'])}
s_add_u32 s32, s28, s23
s_lshl_b32 s28, s45, 10
s_add_u32 s28, s28, s32
s_and_b32 s46, s45, 1
s_lshr_b32 s45, s45, 1
s_lshl_b32 s29, s45, 10
s_add_u32 s32, s32, s29
s_lshl_b32 s29, s46, 9
s_add_u32 s32, s32, s29
s_add_u32 s32, s32, 32768
s_add_u32 s29, s28, {HT}
s_add_u32 s30, s29, {HT}
s_add_u32 s31, s30, {HT}
s_add_u32 s33, s32, {2*HT}
v_lshrrev_b32 v10, 5, v0
v_lshlrev_b32 v10, 8, v10
v_lshl_add_u32 v10, v5, 2, v10
v_bfe_u32 v11, v0, 4, 1
v_mul_u32_u24 v6, {HT}, v11
v_add_u32 v10, v10, v6
s_lshl_b32 s16, s8, 1
s_add_u32 s46, s46, s16
s_lshl_b32 s46, s46, 2
s_add_u32 s46, s46, s3
s_mul_i32 s38, s46, {2*HT}
s_add_u32 s38, s38, s23
s_add_u32 s39, s38, {HT}
s_lshl_b32 s47, s44, 2
s_add_u32 s47, s47, s45
s_mul_i32 s40, s47, {36*9216}
s_add_u32 s40, s40, {hex(WS['W2'])}
s_lshl_b32 s16, s10, 5
s_add_u32 s16, s16, s9
s_mul_i32 s16, s16, {FS}
s_add_u32 s16, s16, {FU}
s_lshr_b32 s17, s46, 1
s_lshl_b32 s17, s17, 2
s_add_u32 s17, s17, s44
s_mul_i32 s17, s17, {8*FS}
s_add_u32 s17, s17, {FU}
s_mov_b32 s36, 0""".split("\n")
    stats = []
    for k in range(1, 8):
        stats += [f"v_add_f32 {v(z)}, {v(z)}, {v(z+2*k)}", f"v_add_f32 {v(z+1)}, {v(z+1)}, {v(z+2*k+1)}"]
    stats += [f"v_mul_f32 {v(z)}, {fl(1/D)}, {v(z)}", f"v_mul_f32 {v(z+1)}, {fl(1/D)}, {v(z+1)}",
              f"v_fma_f32 {v(z+1)}, -{v(z)}, {v(z)}, {v(z+1)}", f"v_max_f32 {v(z+1)}, 0, {v(z+1)}",
              f"v_add_f32 {v(z+1)}, {fl(1e-5)}, {v(z+1)}", f"v_rsq_f32 {v(z)}, {v(z+1)}",
              f"v_mul_f32 {v(z)}, {fl(-LOG2E)}, {v(z)}"]
    for t in range(4):
        stats += [f"ds_bpermute_b32 {v(C1+t)}, v5, {v(z)} offset:{64*t}", f"ds_bpermute_b32 {v(IR2+t)}, v5, {v(z+1)} offset:{64*t}"]
    def epi(acc, nb, sreg, tag):
        L = []
        for tt in range(4):
            for b in range(nb):
                g = acc + 16 * tt + 8 * b
                u = g + 4
                t = T + 4 * ((nb * tt + b) % 4)
                L += [f"v_mul_f32 {v(t+i)}, {v(g+i)}, {v(C1+tt)}" for i in range(4)]
                L += [f"v_exp_f32 {v(t+i)}, {v(t+i)}" for i in range(4)]
                L += [f"v_mul_f32 {v(g+i)}, {v(g+i)}, {v(u+i)}" for i in range(2)]
                L += [f"v_fma_f32 {v(t+i)}, {v(t+i)}, {v(IR2+tt)}, {v(IR2+tt)}" for i in range(4)]
                L += [f"v_rcp_f32 {v(t+i)}, {v(t+i)}" for i in range(4)]
                L += [f"v_mul_f32 {v(g+i)}, {v(g+i)}, {v(u+i)}" for i in range(2, 4)]
                L += [f"v_mul_f32 {v(g+i)}, {v(g+i)}, {v(t+i)}" for i in range(4)]
                o = HO + 4 * (tt % 2) + 2 * b if nb == 2 else HO + 2 * tt
                L += [f"v_cvt_pk_bf16_f32 {v(o+i)}, {v(g+2*i)}, {v(g+2*i+1)}" for i in range(2)]
            if nb == 2:
                L += [(f"buffer_store_dwordx4 {v(HO+4*(tt%2),4)}, v1, {ACD}, {s(sreg+tt)} offen sc1", tag), f"s_add_u32 {s(sreg+tt)}, {s(sreg+tt)}, 8192"]
            elif tt & 1:
                o = HO + 2 * tt - 2
                L += [f"v_permlane16_swap_b32 {v(o+i)}, {v(o+2+i)}" for i in range(2)]
                L += [(f"buffer_store_dwordx4 {v(o,4)}, v10, {ACD}, {s(sreg+tt//2)} offen sc1", tag)]
        return L
    def gpass(pas, nxt, dmas):
        nt = 4 if pas < 4 else 2
        acc = ACC + 64 * (pas % 2)
        main, st, lo = [], [], []
        per = 4 * nt
        for ks in range(KS):
            for t in range(nt):
                for tt in range(4):
                    d = v(acc + 16 * tt + 4 * t, 4)
                    main.append(f"{M16} {d}, {v(W+16*(ks%2)+4*t,4)}, {R(xreg(4*ks+tt),4)}, {'0' if ks == 0 else d}")
            o = 0
            if pas < 4 and ks % 6 == 5 and not (pas == 0 and ks == 5):
                st.append(([[f"WAITVM w{(3*pas+ks//6+1) % 6}", "s_barrier"]], per * ks, per * ks + 1)); o = 1
            if pas == 4 and ks == 11:
                st.append(([["WAITVM w1, w2", "s_barrier"]], per * ks, per * ks + 1)); o = 1
            rs = wr(pas, ks + 1) if ks + 1 < KS else nxt
            if len(rs) > 4: st.append((rs, per * (ks - 2), per * ks + 4))
            else: st.append((rs, per * ks + o, per * ks + o + len(rs) * (2 if nt == 4 else 1)))
            st.append((["s_waitcnt lgkmcnt(0)"], per * ks + per - 1, per * ks + per))
            if pas == 0 and ks + 1 < KS: st.append(([f"WAITVM x{ks+1}"], per * ks + per - 2, per * ks + per - 1))
            if ks in dmas: lo.append((dma(dmas[ks]), per * ks, per * (ks + 2)))
        return main, st + lo
    p("s_waitcnt lgkmcnt(0)")
    main, st = gpass(0, wr(1, 0), {13: 4, 15: 5})
    xs = [(xl(ks + LA), 16 * ks, 16 * ks + 14) for ks in range(KS - LA)]
    p.add(pack(main, st + xs + [(stl, 16 * 9, 16 * 12), (addr, 20, 16 * 9), (stats, 16 * 15, 16 * 18 - 6)], report="up0"))
    stamp(p, 13)
    p(".p2align 3")
    p("up_loop:")
    main, st = gpass(1, wr(2, 0), {0: 6, 6: 7, 12: 8})
    sig1 = ["WAITVM hB"] + signal("s16", "s36", 8)
    p.add(pack(main, st + [(sig1, 16 * 4, 16 * 4 + 8), (epi(ACC, 2, 28, "hA"), 6, 288, "asap")], report="up1"))
    p("s_cmp_lg_u32 s36, 0")
    p("s_cbranch_scc1 up_last", take=[False, True])
    main, st = gpass(2, wr(1, 0), {0: 9, 6: 10, 12: 11})
    jump = f"""s_sub_u32 s21, s40, s37
s_sub_u32 s21, s21, {CH13-(24576-3072)}
s_cmp_ge_u32 s3, 2
s_cselect_b32 s42, s21, s42
s_cselect_b32 s43, s43, s21
s_mov_b32 s36, 1""".split("\n")
    jump = jump[:2] + [jump[2:5]] + jump[5:]
    p.add(pack(main, st + [(jump, 16 * 3, 16 * 5), (epi(ACC + 64, 2, 28, "hB"), 6, 288, "asap")], report="up2"))
    p("s_branch up_loop")
    p("up_last:")
    stamp(p, 14)

    DW = lambda k, t: 256 + 96 + 36 * (k % 2) + 4 * t
    HB = lambda k, tt: 256 + 8 * (k % 12) + 4 * tt
    DQ = [16 + 4 * i for i in range(8)] + [208 + 4 * i for i in range(2)] + [224 + 4 * i for i in range(8)]
    DA = lambda t, tt: DQ[9 * tt + t] if t < 8 else DQ[8 + tt]
    DA = lambda t, tt: (16 if tt == 0 else 224) + 4 * t if t < 8 else 208 + 4 * tt
    def ddma(stage):
        tag = f"d{stage % 3}"
        L = []
        if stage == 9: L.append("s_add_u32 s20, s11, s18")
        for h in range(3):
            L.append(f"s_add_u32 m0, s18, {36864*(stage%3+1)+3072*h}")
            L += [(f"buffer_load_dwordx4 v1, {WSD}, s20 offen offset:{1024*k} lds", tag) for k in range(3)]
            L.append(f"s_add_u32 s20, s20, {3072 if h < 2 else 36864-6144}")
        return L
    def hl(k):
        L = [(f"buffer_load_dwordx4 {R(HB(k,tt),4)}, v1, {ACD}, {s(38+tt)} offen offset:{1024*(k%4)} sc1", f"h{k}") for tt in range(2)]
        if k % 4 == 3: L += [f"s_add_u32 {s(38+tt)}, {s(38+tt)}, 4096" for tt in range(2)]
        return L
    def wrd(k):
        return [rd(36864 + 9216 * (k % 12) + 1024 * t, DW(k, t)) for t in range(9)]
    main, st = gpass(4, wrd(0), {})
    H0 = len(main)
    lo = []
    for k in range(36):
        g0 = H0 + 18 * k
        for t in range(9):
            for tt in range(2):
                d = v(DA(t, tt), 4)
                main.append(f"{M16} {d}, {R(DW(k,t),4)}, {R(HB(k,tt),4)}, {'0' if k == 0 else d}")
        o = 0
        if k % 4 == 3:
            sg = k // 4
            if k < 35: st.append(([[f"WAITVM d{(sg+1) % 3}", "s_barrier"]], g0, g0 + 1)); o = 1
            if sg + 3 <= 10: lo.append((ddma(sg + 3), g0 + 1, g0 + 54))
        if k < 35:
            st.append((wrd(k + 1), g0 + o, g0 + o + OPT["drd"]))
            st.append((["s_waitcnt lgkmcnt(0)"], g0 + 17, g0 + 18))
            st.append(([f"WAITVM h{k+1}"], g0 + 16, g0 + 17))
        if k + 11 < 36: lo.insert(0, (hl(k + 11), g0 + 2, g0 + 9))
    dpre = ["s_mul_i32 s18, s3, 9216", "s_add_u32 s20, s40, s18", "s_add_u32 s20, s20, 36864"] + ddma(1) + ddma(2)
    def level(val, load_at, chk_at):
        return [(sp.load(7, "s17", 9), load_at, load_at + 3), (sp.check(7, "s17", val, 9), chk_at - 3, chk_at + 1)]
    def sig(val, tag, at):
        return [([f"WAITVM {tag}"] + signal("s16", val, 8), at, at + 6)]
    fl_ = level(1, 2, 8 * 6) + sig(2, "hA", 8 * 6 + 2)
    fl_ += level(2, H0 + 18 * 1, H0 + 18 * 5) + sig(3, "hB", H0 + 18 * 6)
    fl_ += level(3, H0 + 18 * 10, H0 + 18 * 13) + sig(4, "hH", H0 + 18 * 14)
    fl_ += level(4, H0 + 18 * 18, H0 + 18 * 21)
    h0 = [x for k in range(11) for x in hl(k)]
    paddr = f"""s_lshr_b32 s22, s45, 1
s_and_b32 s23, s45, 1
s_mul_i32 s22, s22, 9216
s_mul_i32 s28, s46, {2*XT}
s_add_u32 s22, s22, s28
s_mul_i32 s28, s44, {XSZ}
s_add_u32 s22, s22, s28
s_add_u32 s22, s22, {hex(AC['PART'])}
s_mul_i32 s28, s23, 5120
s_add_u32 s28, s28, s22
s_lshl_b32 s23, s23, 9
s_add_u32 s30, s22, s23
s_add_u32 s30, s30, 4096
s_add_u32 s29, s28, {XT}
v_mul_u32_u24 v5, {HT-XT}, v11
v_sub_u32 v5, v10, v5
s_lshl_b32 s22, s46, 4
s_add_u32 s22, s22, s47
s_mul_i32 s22, s22, {FSD}
s_add_u32 s22, s22, {FD}
s_lshl_b32 s26, s8, 5
s_add_u32 s26, s26, s9
s_lshr_b32 s23, s26, 1
s_mul_i32 s23, s23, {XT}
s_and_b32 s24, s26, 1
s_lshl_b32 s24, s24, 7
s_add_u32 s23, s23, s24
s_mul_i32 s24, s26, 9216
s_lshr_b32 s25, s26, 2
s_mul_i32 s25, s25, {16*FSD}
s_add_u32 s25, s25, {FD}
s_min_u32 s27, s3, 2
s_lshl_b32 s27, s27, 3
v_and_b32 v10, 7, v0
v_lshrrev_b32 v11, 3, v0
v_add_u32 v11, s27, v11
v_mul_u32_u24 v12, 768, v11
v_lshl_add_u32 v12, v10, 4, v12
v_mul_u32_u24 v13, 48, v11
v_mul_u32_u24 v14, 1152, v10
v_add_u32 v13, v13, v14
v_and_b32 v14, 15, v0
v_mul_u32_u24 v14, {FSD}, v14
v_lshlrev_b32 v15, 5, v10
v_add_u32 v15, {LNS}, v15
v_add_u32 v6, s27, v15
s_add_u32 s27, s23, {hex(AC['X2'])}""".split("\n")
    X, TT, L0 = 48, 72, 96
    paddr += [f"buffer_load_dwordx4 {v(L0+4*i,4)}, v12, {ACD}, s27 offen offset:{256*i} sc1" for i in range(3)]
    streams = st + fl_ + [(dpre, 4, 8 * 6), (h0, 8 * 7, 8 * 17)] + lo
    streams += [(epi(ACC + 64, 2, 28, "hB"), 4, H0 + 18 * 4, "asap"), (epi(ACC, 1, 32, "hH"), H0 + 18 * 4, H0 + 18 * 12, "asap"), (paddr, H0 + 18 * 24, H0 + 18 * 33)]
    for nm_, at in [("hp6", 49), ("half", H0 - 1)] + [(f"d{k}", H0 + 18 * k + 17) for k in (2, 5, 9, 13, 17, 21, 25, 29)]:
        streams.append((stamp_items(nm_), at, at + 1))
    p.add(pack(main, streams, report="down"))
    stamp(p, 15)
    for tt in range(2):
        for k in range(4):
            o = 160 + 20 * tt + 4 * k
            for u in range(4): p(f"v_cvt_pk_bf16_f32 {v(o+u)}, {v(DA(2*k,tt)+2*u)}, {v(DA(2*k,tt)+2*u+1)}")
            p(f"buffer_store_dwordx4 {v(o,4)}, v1, {ACD}, {s(28+tt)} offen offset:{1024*k} sc1")
    for tt in range(2):
        for u in range(2): p(f"v_cvt_pk_bf16_f32 {v(176+2*tt+u)}, {v(DA(8,tt)+2*u)}, {v(DA(8,tt)+2*u+1)}")
    for u in range(2): p(f"v_permlane16_swap_b32 {v(176+u)}, {v(178+u)}")
    p(f"buffer_store_dwordx4 v[176:179], v5, {ACD}, s30 offen sc1")
    for u in range(12): p.add(unpack(X + 2 * u, L0 + u))
    srd(p, 52, "out", S * D * 2)
    stamp(p, 16)
    p("s_waitcnt vmcnt(0)")
    p.add(flat(signal("s22", 1, 8)))
    stamp(p, 17)

    p("s_cmp_eq_u32 s3, 3")
    p("s_cbranch_scc1 red_idle")
    p.add(sp.load(14, "s25", 9))
    p.add(flat(sp.check(14, "s25", 1, 9)))
    stamp(p, 18)
    for k in range(4):
        p(f"s_add_u32 s27, s23, {hex(AC['PART'] + k*XSZ)}")
        for i in range(3): p(f"buffer_load_dwordx4 {v(L0+12*k+4*i,4)}, v12, {ACD}, s27 offen offset:{256*i} sc1")
    for k in range(4):
        for u in range(12):
            t = TT + 2 * (u % 4)
            p.add(unpack(t, L0 + 12 * k + u))
            p(f"v_add_f32 {v(X+2*u)}, {v(X+2*u)}, {v(t)}")
            p(f"v_add_f32 {v(X+2*u+1)}, {v(X+2*u+1)}, {v(t+1)}")
    p("s_cmp_lg_u32 s13, 0")
    p("s_cbranch_scc1 red_out", take=[False, True])
    p(f"v_add_f32 v8, {v(X)}, {v(X+1)}")
    p(f"v_mul_f32 v9, {v(X)}, {v(X)}")
    p(f"v_fmac_f32 v9, {v(X+1)}, {v(X+1)}")
    for u in range(2, 24):
        p(f"v_add_f32 v8, v8, {v(X+u)}")
        p(f"v_fmac_f32 v9, {v(X+u)}, {v(X+u)}")
    xsum(p, [8, 9], 10, [3, 4, 5])
    p("ds_write_b64 v6, v[8:9]")
    for u in range(12): p(f"v_cvt_pk_bf16_f32 {v(L0+u)}, {v(X+2*u)}, {v(X+2*u+1)}")
    p(f"s_add_u32 s27, s23, {hex(LSZ + AC['XP'])}")
    p("s_waitcnt lgkmcnt(0)")
    p("s_barrier")
    p("ds_read_b128 v[8:11], v15")
    p("ds_read_b64 v[6:7], v15 offset:16")
    for i in range(3): p(f"buffer_store_dwordx4 {v(L0+4*i,4)}, v12, {ACD}, s27 offen offset:{256*i} sc1")
    p(f"""v_add_f32 v8, v8, v10
v_add_f32 v9, v9, v11
v_add_f32 v8, v8, v6
v_add_f32 v9, v9, v7
v_mul_f32 v8, {fl(1/D)}, v8
v_mul_f32 v9, {fl(1/D)}, v9
v_fma_f32 v9, -v8, v8, v9
v_max_f32 v9, 0, v9
v_add_f32 v9, {fl(1e-5)}, v9
v_rsq_f32 v9, v9
s_add_u32 s27, s23, {hex(LSZ + AC['XN'])}
v_mul_f32 v8, v8, v9""")
    for i in range(3):
        for u in range(8): p(f"v_fma_f32 {v(X+8*i+u)}, {v(X+8*i+u)}, v9, -v8")
        for u in range(4): p(f"v_cvt_pk_bf16_f32 {v(TT+4*i+u)}, {v(X+8*i+2*u)}, {v(X+8*i+2*u+1)}")
        p(f"buffer_store_dwordx4 {v(TT+4*i,4)}, v12, {ACD}, s27 offen offset:{256*i} sc1")
    stamp(p, 19)
    p("red_join:")
    p(f"s_mul_i32 s16, s26, {FSR}")
    p(f"s_add_u32 s16, s16, {FR}")
    p(f"s_add_u32 s48, s48, {hex(LSZ)}")
    p("s_addc_u32 s49, s49, 0")
    p(f"s_mov_b32 s50, {hex(LSZ)}")
    p("s_mov_b32 s13, 1")
    p("s_waitcnt vmcnt(0)")
    p("s_barrier")
    if DIAG:
        p("v_mov_b32 v222, v223")
        p("v_mov_b32 v220, v221")
    p("s_cmp_lg_u32 s3, 0")
    p("s_cbranch_scc1 layer", take=False)
    p.add(flat(signal("s16", 1, 8)))
    p("s_branch layer")
    p("red_out:")
    for i in range(3):
        for u in range(4): p(f"v_cvt_pk_bf16_f32 {v(TT+4*i+u)}, {v(X+8*i+2*u)}, {v(X+8*i+2*u+1)}")
        p(f"buffer_store_dwordx4 {v(TT+4*i,4)}, v13, s[52:55], s24 offen offset:{16*i}")
    p("fin:")
    if DIAG:
        stamp(p, 19)
        p("s_waitcnt vmcnt(0)")
        stamp(p, 20)
        p("s_memrealtime s[62:63]")
        p("s_waitcnt lgkmcnt(0)")
        p("v_writelane_b32 v223, s58, 62")
        p("v_writelane_b32 v223, s62, 63")
        p("s_lshl_b32 s60, s2, 2")
        p("s_add_u32 s60, s60, s3")
        p("s_lshl_b32 s60, s60, 10")
        p(f"buffer_store_dwordx4 v[220:223], v1, {WSD}, s60 offen")
    p(f"{nm}_end:")
    p("s_endpgm")
    q = Prog("idle")
    q("red_idle:")
    q("s_waitcnt lgkmcnt(0)")
    q("s_cmp_lg_u32 s13, 0")
    q("s_cbranch_scc1 fin")
    q("s_barrier")
    q("s_branch red_join")
    return [p, q, sp.code]

def k_prep():
    G.WS = dict(WS, XP=ACT0 + AC["XP"], XN=ACT0 + AC["XN"], END=TOTAL)
    progs = G.k_prep()
    z = [I(x) for x in f"""s_mul_i32 s16, s2, {18*FS}
s_add_u32 s16, s16, {hex(ACT0 + AC['FLAG'])}
s_add_u32 s17, s16, {hex(LSZ)}
v_lshlrev_b32 v2, 4, v0
v_mov_b32 v4, 0
v_mov_b32 v5, 0
v_mov_b32 v6, 0
v_mov_b32 v7, 0
s_waitcnt lgkmcnt(0)
buffer_store_dwordx4 v[4:7], v2, {WSD}, s16 offen
buffer_store_dwordx4 v[4:7], v2, {WSD}, s16 offen offset:1024
buffer_store_dwordx4 v[4:7], v2, {WSD}, s17 offen
buffer_store_dwordx4 v[4:7], v2, {WSD}, s17 offen offset:1024
s_mov_b64 exec, 0xffff
buffer_store_dwordx4 v[4:7], v2, {WSD}, s16 offen offset:2048
buffer_store_dwordx4 v[4:7], v2, {WSD}, s17 offen offset:2048""".split("\n")]
    p = progs[0]
    k = [i for i, x in enumerate(p.ins) if x.label == "prep_ln_skip"][0]
    p.ins[k + 1:k + 1] = z
    b = progs[3]
    k = [i for i, x in enumerate(b.ins) if x.text == "s_mul_i32 s25, s24, 108"][0]
    b.ins[k:k + 2] = [I(x) for x in """s_mul_i32 s25, s24, 36
s_sub_u32 s25, s22, s25
s_mul_i32 s28, s25, 7282
s_lshr_b32 s28, s28, 16
s_mul_i32 s29, s28, 9
s_sub_u32 s29, s25, s29
s_lshl_b32 s25, s29, 3
s_lshl_b32 s30, s28, 1
s_add_u32 s25, s25, s30
s_sub_u32 s30, s25, 39
s_add_u32 s31, s28, 32
s_cmp_gt_u32 s29, 4
s_cmov_b32 s25, s30
s_cmp_eq_u32 s29, 4
s_cmov_b32 s25, s31
s_mul_i32 s24, s24, 144
s_add_u32 s25, s25, s24""".split("\n")]
    return progs

def build():
    K = {"prep": (k_prep(), 457, 256, 256, 256), "main": (mega(), 256, 163840, 512, 256)}
    head = [l for l in open(f"cdna_kernels/{NAME}.s.ref").read().split("\n") if l.startswith(";") and "@launch" not in l and "Override" not in l and "grid=ceil" not in l]
    out = "\n".join(head) + "\n"
    for n in K: out += f"; @launch kernel={n}_kernel grid=({K[n][1]},1,1) block=(256,1,1) lds={K[n][2]}\n"
    out += '.amdgcn_target "amdgcn-amd-amdhsa--gfx950"\n.text\n'
    for n, (progs, *_r) in K.items():
        for q in progs: out += q.finalize(verbose=True).text()
    out += '.section .rodata,"a"\n'
    for n, (progs, g, lds, nv, acc) in K.items(): out += kd(n, nv, acc)
    return out

if __name__ == "__main__":
    args = sys.argv[1:]
    if "diag" in args:
        DIAG = True
        args.remove("diag")
    for x in [x for x in args if "=" in x]:
        k, val = x.split("="); OPT[k] = int(val); args.remove(x)
    txt = build()
    if DIAG: txt = "; stamps " + ",".join(NAMES) + "\n" + txt
    open(args[0] if args else f"cdna_kernels/{NAME}.s", "w").write(txt)
```

```python
import re

TRANS = ("v_exp_", "v_log_", "v_rcp_", "v_rsq_", "v_sqrt_", "v_sin_", "v_cos_")
REG = re.compile(r"^-?(?:abs\()?\|?([vas])(\d+)\)?\|?$")
RNG = re.compile(r"^-?([vas])\[(\d+):(\d+)\]$")


def v(i, n=1):
    return f"v{i}" if n == 1 else f"v[{i}:{i+n-1}]"
def a(i, n=1):
    return f"a{i}" if n == 1 else f"a[{i}:{i+n-1}]"
def s(i, n=1):
    return f"s{i}" if n == 1 else f"s[{i}:{i+n-1}]"
def R(i, n=1):
    assert (i < 256) == (i + n - 1 < 256), (i, n)
    return v(i, n) if i < 256 else a(i - 256, n)


def regs_of(op):
    op = op.strip()
    m = REG.match(op)
    if m:
        return [(m.group(1), int(m.group(2)))]
    m = RNG.match(op)
    if m:
        return [(m.group(1), i) for i in range(int(m.group(2)), int(m.group(3)) + 1)]
    if op == "vcc":
        return [("s", 106), ("s", 107)]
    if op == "vcc_lo": return [("s", 106)]
    if op == "vcc_hi": return [("s", 107)]
    if op == "exec":
        return [("s", 126), ("s", 127)]
    if op == "exec_lo": return [("s", 126)]
    if op == "exec_hi": return [("s", 127)]
    if op == "m0":
        return [("s", 124)]
    return []


class I:
    __slots__ = ("text", "op", "ops", "mods", "dst", "src", "kind", "tag", "take", "passes", "mA", "mC", "slots", "label", "target")

    def __init__(self, text, tag=None, take=None):
        self.text = text
        self.tag = tag
        self.take = take
        self.label = None
        self.target = None
        self.dst, self.src = [], []
        self.passes = 0
        self.mA, self.mC = [], []
        self.slots = 1
        t = text.split(";")[0].strip()
        if t.endswith(":"):
            self.kind, self.label, self.op, self.slots = "label", t[:-1], "", 0
            return
        if t.startswith(".") or not t:
            self.kind, self.op, self.slots = "dir", "", 0
            return
        parts = t.split(None, 1)
        op = self.op = parts[0]
        rest = parts[1] if len(parts) > 1 else ""
        raw = [x.strip() for x in re.split(r",(?![^\[]*\])", rest)] if rest else []
        mods = ""
        if raw:
            last = raw[-1].split(None, 1)
            raw[-1] = last[0] if last else ""
            mods = last[1] if len(last) > 1 else ""
        self.ops, self.mods = raw, mods
        rr = [regs_of(x) for x in raw]
        flat = lambda L: [r for x in L for r in x]
        if op == "WAITVM":
            self.kind = "waitvm"
        elif op == "DRAINED":
            self.kind = "drained"
        elif op.startswith("v_mfma"):
            self.kind = "mfma"
            self.dst, self.mA, self.mC = rr[0], rr[1] + rr[2], rr[3]
            self.src = self.mA + self.mC
            self.passes = 4 if "16x16" in op else 8
        elif op.startswith("v_"):
            self.kind = "valu"
            if op.startswith("v_nop"):
                pass
            elif op.startswith("v_permlane") and "swap" in op or op.startswith("v_swap"):
                self.dst = self.src = rr[0] + rr[1]
            elif "_co_" in op:
                self.dst, self.src = rr[0] + rr[1], flat(rr[2:])
            else:
                self.dst, self.src = rr[0], flat(rr[1:])
                if op.startswith(("v_fmac", "v_dot2c", "v_pk_fmac", "v_writelane")) or "dpp" in op or "row_" in mods or "quad_perm" in mods or "UNUSED_PRESERVE" in mods:
                    self.src = self.src + rr[0]
        elif op.startswith(("buffer_", "global_")):
            self.kind = "vmem"
            lds = " lds" in " " + mods or "_lds_" in op
            if lds:
                self.src = flat(rr) + [("s", 124)]
            elif "_load_" in op:
                self.dst, self.src = rr[0], flat(rr[1:])
                if "d16" in op:
                    self.src = self.src + rr[0]
            elif "atomic" in op and "sc0" in mods:
                self.dst, self.src = rr[0], flat(rr)
            elif op in ("buffer_wbl2", "buffer_inv"):
                pass
            else:
                self.src = flat(rr)
        elif op.startswith("ds_"):
            self.kind = "ds"
            if op.startswith(("ds_read", "ds_bpermute", "ds_permute", "ds_swizzle")) or "_rtn" in op:
                self.dst, self.src = rr[0], flat(rr[1:])
            else:
                self.src = flat(rr)
        elif op.startswith(("s_load", "s_memtime", "s_memrealtime")):
            self.kind = "smem"
            self.dst, self.src = rr[0], flat(rr[1:])
        elif op == "s_waitcnt":
            self.kind = "wait"
        elif op == "s_nop":
            self.kind = "nop"
            self.slots = int(raw[0], 0) + 1
        elif op.startswith(("s_branch", "s_cbranch")):
            self.kind = "branch"
            self.target = raw[0]
            if "vcc" in op: self.src = regs_of("vcc")
        elif op in ("s_barrier", "s_endpgm", "s_sleep", "s_setprio"):
            self.kind = "misc"
        elif op.startswith(("s_cmp", "s_bitcmp")):
            self.kind = "salu"
            self.src = flat(rr)
        elif op.startswith("s_"):
            self.kind = "salu"
            self.dst, self.src = rr[0], flat(rr[1:])
            if op.startswith(("s_addk", "s_mulk", "s_cmov", "s_bitset")):
                self.src = self.src + rr[0]
            if "saveexec" in op:
                self.dst = self.dst + regs_of("exec")
        else:
            raise ValueError("unknown instruction: " + text)

    def store_data(self):
        if self.kind == "vmem" and re.search(r"store_dwordx[34]", self.op):
            k = 0 if self.op.startswith("buffer") else 1
            return regs_of(self.ops[k])
        return []


def need(p, c):
    n = 0
    pd = set(p.dst)
    if p.kind == "valu":
        pv = {r for r in pd if r[0] != "s"}
        ps = {r for r in pd if r[0] == "s"}
        if pv:
            if c.kind == "mfma" and pv & set(c.src): n = max(n, 2)
            if p.op.startswith("v_dot") and pv & set(c.src + c.dst):
                if not (c.op == p.op and not pv & set(regs_of(c.ops[1]) + regs_of(c.ops[2]))): n = max(n, 3)
            if c.kind == "valu" and pv & set(c.src):
                if c.op.startswith("v_permlane") or "dpp" in c.op or "row_" in c.mods or "quad_perm" in c.mods: n = max(n, 2)
                if c.op.startswith(("v_readlane", "v_readfirstlane")): n = max(n, 1)
                if p.op.startswith(TRANS) and not c.op.startswith(TRANS): n = max(n, 1)
            if c.kind == "valu" and ("dst_sel" in p.mods or ("op_sel" in p.mods and not p.op.startswith("v_pk"))) and pv & set(c.src + c.dst): n = max(n, 1)
            if p.op.startswith(TRANS) and c.kind in ("vmem", "ds") and pv & set(c.src): n = max(n, 1)
        if ps and ps & set(c.src):
            if c.kind == "valu": n = max(n, 4 if c.op.startswith(("v_readlane", "v_writelane")) else 2)
            if c.kind == "vmem": n = max(n, 5)
            if c.kind in ("salu", "branch"): n = max(n, 1)
    elif p.kind == "mfma":
        big = p.passes == 8
        if c.kind == "mfma":
            if pd & set(c.mA): n = max(n, 12 if big else 8)
            same = c.mC == p.dst and c.passes == p.passes
            if pd & set(c.mC) and not same: n = max(n, 10 if big else 6)
            if pd & set(c.dst) and not (c.dst == p.dst and c.passes == p.passes): n = max(n, 10 if big else 6)
        elif c.kind in ("valu", "vmem", "ds"):
            if pd & set(c.src + c.dst): n = max(n, 12 if big else 8)
            if c.kind == "valu" and set(p.mC) & set(c.dst): n = max(n, 7 if big else 3)
    elif p.kind == "salu":
        if ("s", 124) in pd and c.kind == "vmem" and ("s", 124) in c.src: n = max(n, 1)
    elif p.kind == "vmem":
        sd = set(p.store_data())
        if sd and sd & set(c.dst): n = max(n, 2)
    return n


class Prog:
    def __init__(self, name=""):
        self.ins = []
        self.name = name
        self.nops = []

    def __call__(self, text, tag=None, take=None):
        for line in text.split("\n"):
            line = line.strip()
            if line:
                self.ins.append(I(line, tag, take))
        return self

    def add(self, items):
        for it in items:
            if isinstance(it, I): self.ins.append(it)
            elif isinstance(it, tuple): self(it[0], tag=it[1])
            else: self(it)
        return self

    def traces(self, wrap=2):
        lab = {x.label: i for i, x in enumerate(self.ins) if x.kind == "label"}
        opt = [i for i, x in enumerate(self.ins) if x.kind == "branch" and x.take == "both"]
        out = []
        for forced in [None] + opt:
            seq, cnt, i = [], {}, 0
            while i < len(self.ins):
                x = self.ins[i]
                seq.append(i)
                if x.op == "s_endpgm": break
                if x.kind == "branch" and x.target in lab:
                    t = lab[x.target]
                    k = cnt.get(i, 0); cnt[i] = k + 1
                    if isinstance(x.take, (list, tuple)):
                        go = x.take[k % len(x.take)]
                    elif x.op == "s_branch": go = True
                    elif i == forced: go = True
                    elif t < i and x.take is None: go = k < wrap
                    else: go = x.take is True
                    if go:
                        i = t
                        continue
                i += 1
                assert len(seq) < 2000000, "trace does not end"
            out.append(seq)
        return out

    def _waits(self):
        req = {}
        changed = True
        while changed:
            changed = False
            for seq in self.traces():
                vm, lg = [], []
                for i in seq:
                    x = self.ins[i]
                    if x.kind == "drained":
                        vm = []
                        continue
                    if x.kind == "wait":
                        m = re.search(r"vmcnt\((\d+)\)", x.text)
                        if m: vm = vm[max(0, len(vm) - int(m.group(1))):] if int(m.group(1)) else []
                        m = re.search(r"lgkmcnt\((\d+)\)", x.text)
                        if m:
                            n = int(m.group(1))
                            assert n == 0 or not any(e[1] == "smem" for e in lg), x.text
                            lg = lg[max(0, len(lg) - n):] if n else []
                        continue
                    nv = nl = None
                    touched = set(x.src) | set(x.dst)
                    if x.kind == "waitvm":
                        tags = x.ops
                        ks = [k for k, e in enumerate(vm) if e[1] in tags]
                        nv = len(vm) - 1 - max(ks) if ks else None
                    elif touched:
                        tv = set(x.src) if x.kind == "vmem" else touched
                        ks = [k for k, e in enumerate(vm) if e[0] & tv]
                        if ks: nv = len(vm) - 1 - max(ks)
                        tl = set(x.src) if x.kind == "ds" else touched
                        ks = [k for k, e in enumerate(lg) if e[0] & tl]
                        if ks:
                            nl = 0 if any(e[1] == "smem" for e in lg) else len(lg) - 1 - max(ks)
                    cur = req.get(i, [None, None])
                    new = list(cur)
                    if nv is not None: new[0] = min(63, nv) if cur[0] is None else min(cur[0], nv)
                    if nl is not None: new[1] = min(15, nl) if cur[1] is None else min(cur[1], nl)
                    if new != cur:
                        req[i] = new
                        changed = True
                    if new[0] is not None: vm = vm[len(vm) - new[0]:] if 0 < new[0] < len(vm) else ([] if new[0] == 0 else vm)
                    if new[1] is not None: lg = lg[len(lg) - new[1]:] if 0 < new[1] < len(lg) else ([] if new[1] == 0 else lg)
                    if x.kind == "vmem": vm.append((set(x.dst), x.tag))
                    elif x.kind == "ds": lg.append((set(x.dst), "ds"))
                    elif x.kind == "smem": lg.append((set(x.dst), "smem"))
        return req

    def finalize(self, verbose=False):
        seen = set(i for seq in self.traces() for i in seq)
        miss = [x.text for i, x in enumerate(self.ins) if i not in seen and x.slots]
        assert not miss, (self.name, "not traced", miss[:5])
        req = self._waits()
        out = []
        for i, x in enumerate(self.ins):
            r = req.get(i)
            if r and (r[0] is not None or r[1] is not None):
                w = "s_waitcnt" + (f" vmcnt({r[0]})" if r[0] is not None else "") + (f" lgkmcnt({r[1]})" if r[1] is not None else "")
                out.append(I(w))
            if x.kind not in ("waitvm", "drained"):
                out.append(x)
        self.ins = out
        while True:
            pad = {}
            for seq in self.traces():
                hist = []
                for i in seq:
                    x = self.ins[i]
                    if x.slots == 0: continue
                    extra = pad.get(i, 0)
                    dist = 0
                    for (p, sl) in reversed(hist):
                        n = need(p, x)
                        if n > dist + extra:
                            extra = n - dist
                        dist += sl
                        if dist >= 21: break
                    if extra:
                        pad[i] = extra
                        hist.append((I("s_nop 0"), extra))
                    hist.append((x, x.slots))
                    if len(hist) > 40: hist = hist[-24:]
            if not pad: break
            out = []
            for i, x in enumerate(self.ins):
                if i in pad:
                    self.nops.append((pad[i], x.text))
                    n = pad[i]
                    while n > 0:
                        k = min(n, 16)
                        out.append(I(f"s_nop {k-1}"))
                        n -= k
                out.append(x)
            self.ins = out
        if verbose:
            print(f"[{self.name}] {sum(1 for x in self.ins if x.slots)} instrs, pads: {sum(n for n, _ in self.nops)} states at {len(self.nops)} sites")
        return self

    def text(self):
        return "\n".join(("" if x.kind in ("label", "dir") else "    ") + x.text for x in self.ins) + "\n"


def cost(t):
    t = t[0] if isinstance(t, tuple) else t
    return 8 if t.startswith(TRANS) else 4


def weave(main, streams, budget):
    slots = [[] for _ in main]
    for items, st, en in streams:
        n = len(items)
        if not n: continue
        tot = sum(cost(x) for x in items)
        acc = 0
        for it in items:
            pos = st + int((en - st) * acc / tot)
            slots[min(pos, en - 1)].append(it)
            acc += cost(it)
    out = []
    for m, f in zip(main, slots):
        out += m if isinstance(m, list) else [m]
        out += f
    return out


def pack(main, streams, cap=8, report=None):
    n = len(main)
    slots = [[] for _ in range(n)]
    used = [0] * n
    def c(it): return sum(cost(x) for x in it) if isinstance(it, list) else cost(it)
    for items, st, en in streams:
        en = min(en, n)
        tot = sum(c(x) for x in items)
        acc, cur = 0, st
        for it in items:
            pos = max(cur, st + int((en - st) * acc / max(tot, 1)))
            k = c(it)
            while pos < en - 1 and used[pos] and used[pos] + k > cap: pos += 1
            pos = min(pos, en - 1)
            slots[pos] += it if isinstance(it, list) else [it]
            used[pos] += k
            cur = pos
            acc += k
    if report is not None:
        over = sum(max(0, u - cap) for u in used)
        print(f"  pack {report}: {n} gaps, filler {sum(used)} cyc, overflow {over} cyc")
    out = []
    for m, f in zip(main, slots):
        out += m if isinstance(m, list) else [m]
        out += f
    return out


RANK = {"salu": 0, "wait": 0, "waitvm": 0, "nop": 0, "misc": 0, "branch": 0, "smem": 0, "vmem": 1, "ds": 2, "valu": 3}
NOSCC = ("s_mov", "s_cmov", "s_mul_i32", "s_cselect", "s_movk")

class Item:
    def __init__(self, it):
        self.raw = it if isinstance(it, list) else [it]
        self.ins = [I(x[0] if isinstance(x, tuple) else x) for x in self.raw]
        real = [x for x in self.ins if x.slots]
        self.group = len(real) > 1
        self.rank = RANK[real[0].kind]
        self.cost = sum(8 if x.op.startswith(TRANS) else 4 for x in real)
        self.dst, self.src = set(), set()
        for x in real:
            self.dst |= set(x.dst); self.src |= set(x.src)
        self.fence = any(x.kind in ("wait", "waitvm", "misc", "branch", "smem") for x in real)
        self.mem = any(x.kind == "vmem" for x in real)
        self.trans = any(x.op.startswith(TRANS) for x in real)
        self.pos = None

def sched(main, streams, cap=8, report=None, look=24):
    n = len(main)
    gaps = [[] for _ in range(n)]
    used = [0] * n
    def price(g, it):
        if it.group:
            return None if gaps[g] else it.cost - (4 if it.rank == 0 else 0)
        if any(x.group for x in gaps[g]): return None
        if it.rank == 0: return 4 if any(x.rank == 0 for x in gaps[g]) else 0
        if it.rank in (1, 2) and any(x.rank == it.rank for x in gaps[g]): return None
        return it.cost
    def put(g, it, c):
        it.pos = g; gaps[g].append(it); used[g] += c
    forced = 0
    for st in streams:
        items, a0, b0, r0, d0 = [], st[1], min(st[2], n), 0, None
        for x in st[0]:
            if isinstance(x, tuple) and x[0] == "@":
                r0, d0 = x[1], x[2]
            else:
                items.append(Item(x)); items[-1].rel, items[-1].dl = r0, d0
        mode = st[3] if len(st) > 3 else "even"
        deps = []
        for k, it in enumerate(items):
            if mode == "even": d = [k - 1] if k else []
            else: d = [j for j in range(k) if items[j].fence or it.fence or (it.mem and items[j].mem)
                       or (items[j].dst & (it.src | it.dst)) or (items[j].src & it.dst)]
            deps.append(d)
        tot = sum(x.cost for x in items); acc = 0; rel = []
        for it in items:
            rel.append(a0 + int((b0 - a0) * acc / max(tot, 1)) if mode == "even" else max(a0, it.rel)); acc += it.cost
        todo = list(range(len(items)))
        def ready(k, g):
            for j in deps[k]:
                q = items[j]
                if q.pos is None: return False
                if q.pos == g and (q.rank > items[k].rank or q.trans or (("s", 124) in q.dst and items[k].mem)): return False
            return True
        for g in range(a0, b0):
            again = True
            while again and todo:
                again = False
                cand = [k for k in todo[:look] if rel[k] <= g and ready(k, g)]
                if used[g] == 0: cand.sort(key=lambda k: (not items[k].trans, k))
                for k in cand:
                    c = price(g, items[k])
                    if c is not None and (used[g] + c <= cap or (items[k].group and not gaps[g])):
                        put(g, items[k], c); todo.remove(k); again = True
                        break
        for k in todo:
            items[k].rank = 9
            put(b0 - 1, items[k], items[k].cost); forced += 1
        ends = {}
        for it in items:
            if it.dl is not None:
                ends[(it.rel, it.dl)] = max(ends.get((it.rel, it.dl), 0), it.pos)
                assert it.pos < it.dl, ("deadline missed", it.raw, it.pos, it.dl)
        if ends and report: print("    (release, deadline) -> last:", ends)
    if report is not None:
        over = sum(max(0, u - cap) for u in used)
        print(f"  sched {report}: {n} gaps, filler {sum(used)} cyc, overflow {over} cyc, forced {forced}")
    out = []
    for m, f in zip(main, gaps):
        out.append(m)
        for it in sorted(f, key=lambda x: x.rank): out += it.raw
    return out
```

```python
import math, struct, sys
from asmb import Prog, v, a, s, R, weave, I
from layout import *

NAME = "interleave_layers__mha_block__glu_gated_swiglu__prompt"
LOG2E = 1.4426950408889634
def fl(x): return hex(struct.unpack("<I", struct.pack("<f", x))[0])
M16 = "v_mfma_f32_16x16x32_bf16"
M32 = "v_mfma_f32_32x32x16_bf16"
M32K8 = "v_mfma_f32_32x32x8_bf16"
WSD = s(4, 4)
ARG = dict(x=0, wqkv=8, wo=16, w1=32, w3=40, w2=48, out=56, dbg=64, ws=72)

def srd(p, reg, arg, size):
    p(f"s_load_dwordx2 {s(reg,2)}, s[0:1], {ARG[arg]}")
    p(f"s_mov_b32 {s(reg+2)}, {hex(size)}")
    p(f"s_mov_b32 {s(reg+3)}, 0x00020000")

def entry(p, name, nwg):
    p(f".globl {name}_kernel\n.p2align 8\n.type {name}_kernel,@function\n{name}_kernel:")
    p(f"s_cmp_ge_u32 s2, {nwg}")
    p(f"s_cbranch_scc1 {name}_end")
    if DIAG:
        for i in range(1, 6): p(f"s_mov_b32 {s(64+2*i)}, 0")
        p("s_memrealtime s[80:81]")
        stamp(p, 0)
    srd(p, 4, "ws", WS["END"])
    p("v_lshrrev_b32 v1, 6, v0")
    p("v_and_b32 v0, 63, v0")
    p("v_readfirstlane_b32 s3, v1")

DIAG = False
KIDX = {"prep": 0, "qkv": 1, "att": 2, "oproj": 3, "up": 4, "down": 5, "redmid": 6, "redout": 7}
def stamp(p, i):
    if DIAG: p(f"s_memtime {s(64+2*i,2)}")

def leave(p, name):
    if DIAG and name != "prep":
        p("s_mov_b64 exec, -1")
        stamp(p, 6)
        p("s_waitcnt vmcnt(0)")
        stamp(p, 7)
        p("s_memrealtime s[82:83]")
        p("s_waitcnt lgkmcnt(0)")
        for i in range(10): p(f"v_mov_b32 {v(16+i)}, {s(64+2*i)}")
        p("s_lshl_b32 s60, s2, 2")
        p("s_add_u32 s60, s60, s3")
        p("s_lshl_b32 s60, s60, 6")
        p(f"s_add_u32 s60, s60, {KIDX[name] << 16}")
        p("v_mov_b32 v1, 0")
        p("s_mov_b64 exec, 1")
        for i in range(3): p(f"buffer_store_dwordx4 {v(16+4*i,4)}, v1, {WSD}, s60 offen offset:{16*i}")
    p(f"{name}_end:\ns_endpgm")

def unpack(dst, src):
    return [f"v_lshlrev_b32 {v(dst)}, 16, {v(src)}", f"v_and_b32 {v(dst+1)}, 0xffff0000, {v(src)}"]

def xsum(p, regs, tmp, bits):
    for b in bits:
        if b == 3:
            for r in regs: p(f"v_add_f32_dpp {v(r)}, {v(r)}, {v(r)} row_ror:8 row_mask:0xf bank_mask:0xf")
        else:
            op = "v_permlane16_swap_b32" if b == 4 else "v_permlane32_swap_b32"
            for k, r in enumerate(regs): p(f"v_mov_b32 {v(tmp+k)}, {v(r)}")
            for k, r in enumerate(regs): p(f"{op} {v(r)}, {v(tmp+k)}")
            for k, r in enumerate(regs): p(f"v_add_f32 {v(r)}, {v(r)}, {v(tmp+k)}")

def lnp(p, mode, lab):
    if mode == "in": srd(p, 8, "x", S * D * 2)
    if mode == "out": srd(p, 8, "out", S * D * 2)
    p(f"s_cmp_eq_u32 s3, 3")
    p(f"s_cbranch_scc1 {lab}_skip")
    p("v_and_b32 v2, 7, v0")
    p("v_lshrrev_b32 v3, 3, v0")
    p("s_lshl_b32 s16, s3, 3")
    p("v_add_u32 v3, s16, v3")
    p("v_mul_u32_u24 v4, 768, v3")
    p("v_lshl_add_u32 v4, v2, 4, v4")
    p("v_mul_u32_u24 v5, 48, v3")
    p("v_mul_u32_u24 v6, 1152, v2")
    p("v_add_u32 v5, v5, v6")
    p("s_lshr_b32 s16, s2, 1")
    p(f"s_mul_i32 s16, s16, {XT}")
    p("s_and_b32 s17, s2, 1")
    p("s_lshl_b32 s17, s17, 7")
    p("s_add_u32 s16, s16, s17")
    p("s_mul_i32 s17, s2, 9216")
    X = 16; T = 40; L = 64
    if mode == "in":
        for i in range(3): p(f"buffer_load_dwordx4 {v(L+4*i,4)}, v5, s[8:11], s17 offen offset:{16*i}")
        nsrc = 1
    else:
        for k in range(5):
            base = WS["X2"] if k == 0 else WS["PART"] + (k - 1) * XSZ
            p(f"s_add_u32 s18, s16, {hex(base)}")
            for i in range(3): p(f"buffer_load_dwordx4 {v(L+12*k+4*i,4)}, v4, {WSD}, s18 offen offset:{256*i}")
        nsrc = 5
    for k in range(nsrc):
        for u in range(12):
            if k == 0:
                p.add(unpack(X + 2 * u, L + u))
            else:
                t = T + 2 * (u % 4)
                p.add(unpack(t, L + 12 * k + u))
                p(f"v_add_f32 {v(X+2*u)}, {v(X+2*u)}, {v(t)}")
                p(f"v_add_f32 {v(X+2*u+1)}, {v(X+2*u+1)}, {v(t+1)}")
    if mode != "in":
        for u in range(12): p(f"v_cvt_pk_bf16_f32 {v(L+u)}, {v(X+2*u)}, {v(X+2*u+1)}")
    if mode == "out":
        for i in range(3): p(f"buffer_store_dwordx4 {v(L+4*i,4)}, v5, s[8:11], s17 offen offset:{16*i}")
        p(f"{lab}_skip:")
        return
    p(f"s_add_u32 s18, s16, {hex(WS['XP'])}")
    for i in range(3): p(f"buffer_store_dwordx4 {v(L+4*i,4)}, v4, {WSD}, s18 offen offset:{256*i}")
    p(f"v_add_f32 v8, {v(X)}, {v(X+1)}")
    p(f"v_mul_f32 v9, {v(X)}, {v(X)}")
    p(f"v_fmac_f32 v9, {v(X+1)}, {v(X+1)}")
    for u in range(2, 24):
        p(f"v_add_f32 v8, v8, {v(X+u)}")
        p(f"v_fmac_f32 v9, {v(X+u)}, {v(X+u)}")
    xsum(p, [8, 9], 10, [3, 4, 5])
    p("v_lshlrev_b32 v6, 5, v2")
    p("s_lshl_b32 s18, s3, 3")
    p("v_add_u32 v7, s18, v6")
    p("ds_write_b64 v7, v[8:9]")
    p("s_waitcnt lgkmcnt(0)")
    p("s_barrier")
    p("ds_read_b128 v[8:11], v6")
    p("ds_read_b64 v[12:13], v6 offset:16")
    p("v_add_f32 v8, v8, v10")
    p("v_add_f32 v9, v9, v11")
    p("v_add_f32 v8, v8, v12")
    p("v_add_f32 v9, v9, v13")
    p(f"v_mul_f32 v8, {fl(1/D)}, v8")
    p(f"v_mul_f32 v9, {fl(1/D)}, v9")
    p("v_fma_f32 v9, -v8, v8, v9")
    p("v_max_f32 v9, 0, v9")
    p(f"v_add_f32 v9, {fl(1e-5)}, v9")
    p("v_rsq_f32 v9, v9")
    p("v_mul_f32 v8, v8, v9")
    for u in range(24): p(f"v_fma_f32 {v(X+u)}, {v(X+u)}, v9, -v8")
    for u in range(12): p(f"v_cvt_pk_bf16_f32 {v(T+u)}, {v(X+2*u)}, {v(X+2*u+1)}")
    p(f"s_add_u32 s18, s16, {hex(WS['XN'])}")
    for i in range(3): p(f"buffer_store_dwordx4 {v(T+4*i,4)}, v4, {WSD}, s18 offen offset:{256*i}")
    p(f"s_branch {lab}_done")
    p(f"{lab}_skip:")
    p("s_barrier")
    p(f"{lab}_done:")

def selmat(p, dst, src):
    p(f"v_sub_u32 v12, {v(src)}, v3")
    p("v_and_b32 v13, 1, v12")
    p("v_lshlrev_b32 v13, 4, v13")
    p("v_lshlrev_b32 v13, v13, v11")
    p("v_lshrrev_b32 v12, 1, v12")
    for u in range(4):
        p(f"v_cmp_eq_u32 vcc, {u}, v12")
        p(f"v_cndmask_b32 {v(dst+u)}, 0, v13, vcc")

def prep_common(p):
    p("v_and_b32 v2, 15, v0")
    p("v_lshrrev_b32 v4, 4, v0")
    p("v_lshlrev_b32 v3, 3, v4")
    p("v_mov_b32 v11, 0x3f80")
    p("v_and_b32 v5, 12, v2")
    p("v_and_b32 v6, 3, v2")
    p("v_lshl_add_u32 v5, v5, 1, v6")
    p("v_lshlrev_b32 v1, 4, v0")

def pair_sels(p, S0):
    selmat(p, S0, 5)
    p("v_add_u32 v7, 4, v5")
    selmat(p, S0 + 4, 7)
    selmat(p, S0 + 8, 2)
    p("v_add_u32 v7, 16, v2")
    selmat(p, S0 + 12, 7)

def tr_block(p, A0, A1, sel, C, D, out):
    p(f"{M16} {v(D,4)}, {v(A0,4)}, {v(sel,4)}, {C}")
    p(f"{M16} {v(D+4,4)}, {v(A1,4)}, {v(sel,4)}, {C}")
    return [f"v_cvt_pk_bf16_f32 {v(out+u)}, {v(D+2*u)}, {v(D+2*u+1)}" for u in range(4)]

def prep13(p):
    srd(p, 8, "w1", D * F * 2)
    srd(p, 12, "w3", D * F * 2)
    prep_common(p)
    p("s_and_b32 s21, s20, 1")
    p("s_lshr_b32 s22, s20, 1")
    p("s_mul_i32 s24, s22, 7282")
    p("s_lshr_b32 s24, s24, 16")
    p("s_mul_i32 s25, s24, 9")
    p("s_sub_u32 s25, s22, s25")
    p("s_cmp_eq_u32 s25, 4")
    p("s_cselect_b64 vcc, -1, 0")
    p("s_cselect_b32 s26, 16, 4")
    p("v_cndmask_b32 v8, v5, v2, vcc")
    p("v_add_u32 v9, s26, v8")
    selmat(p, 16, 8)
    selmat(p, 20, 9)
    p("s_waitcnt lgkmcnt(0)")
    p("s_cmp_eq_u32 s21, 1")
    p("s_cselect_b32 s8, s12, s8")
    p("s_cselect_b32 s9, s13, s9")
    p("s_mov_b32 s23, 9216")
    p("v_mul_lo_u32 v7, v5, s23")
    p("v_lshl_add_u32 v7, v4, 4, v7")
    p("s_lshl_b32 s23, s22, 6")
    L = 96
    for k in range(36):
        p(f"buffer_load_dwordx4 {v(L+4*k,4)}, v7, s[8:11], s23 offen")
        p(f"s_add_u32 s23, s23, {9216*(4 if k % 2 == 0 else 28)}")
    p(f"s_mul_i32 s26, s24, {2*CH13}")
    p("s_lshl_b32 s27, s21, 10")
    p("s_add_u32 s26, s26, s27")
    p(f"s_add_u32 s26, s26, {hex(WS['W13'])}")
    p("s_mul_i32 s27, s25, 73728")
    p("s_add_u32 s26, s26, s27")
    p("s_cmp_gt_u32 s25, 4")
    p(f"s_cselect_b32 s27, {5*73728-CH13}, 0")
    p("s_sub_u32 s26, s26, s27")
    p("s_cmp_eq_u32 s25, 4")
    p("s_mov_b32 s27, 2048")
    p("s_mov_b32 s28, 4096")
    p(f"s_cmov_b32 s27, {CH13}")
    p("s_cmov_b32 s28, 2048")
    p("s_add_u32 s27, s26, s27")
    for k in range(36):
        for b in range(2):
            p(f"{M16} {v(24+4*b,4)}, {v(L+4*k,4)}, {v(16+4*b,4)}, {'0' if k == 0 else v(24+4*b,4)}")
    for b in range(2):
        p(f"v_add_f32 {v(24+4*b)}, {v(24+4*b)}, {v(25+4*b)}")
        p(f"v_add_f32 {v(26+4*b)}, {v(26+4*b)}, {v(27+4*b)}")
        p(f"v_add_f32 {v(24+4*b)}, {v(24+4*b)}, {v(26+4*b)}")
    xsum(p, [24, 28], 8, [4, 5])
    for b in range(2):
        for u in (3, 2, 1, 0): p(f"v_mul_f32 {v(24+4*b+u)}, {fl(-1/D)}, {v(24+4*b)}")
    pend = []
    for ks in range(KS):
        for b in range(2):
            n = 2 * ks + b
            Dr, o = 32 + 8 * (n % 4), 64 + 4 * (n % 4)
            cv = tr_block(p, L + 8 * ks, L + 8 * ks + 4, 16 + 4 * b, v(24 + 4 * b, 4), Dr, o)
            cv += [f"buffer_store_dwordx4 {v(o,4)}, v1, {WSD}, {s(26+b)} offen", f"s_add_u32 {s(26+b)}, {s(26+b)}, s28"]
            pend.append(cv)
            if len(pend) > 2: p.add(pend.pop(0))
    for c in pend: p.add(c)

def prep_rows9(p, place):
    L = 96
    for rem in range(9):
        p(f"buffer_load_dwordx4 {v(L+8*rem,4)}, v7, s[8:11], s23 offen offset:{64*rem}")
        p(f"buffer_load_dwordx4 {v(L+8*rem+4,4)}, v8, s[8:11], s23 offen offset:{64*rem}")
    pend = []
    for rem in range(9):
        for b in range(2):
            n = 2 * rem + b
            Dr, o = 32 + 8 * (n % 4), 64 + 4 * (n % 4)
            cv = tr_block(p, L + 8 * rem, L + 8 * rem + 4, (24 if rem == 4 else 16) + 4 * b, "0", Dr, o)
            cv += [f"s_add_u32 s27, s26, {place(rem, b)}", f"buffer_store_dwordx4 {v(o,4)}, v1, {WSD}, s27 offen"]
            pend.append(cv)
            if len(pend) > 2: p.add(pend.pop(0))
    for c in pend: p.add(c)

def prep2(p):
    srd(p, 8, "w2", D * F * 2)
    prep_common(p)
    pair_sels(p, 16)
    p("s_and_b32 s21, s20, 1")
    p("s_lshr_b32 s22, s20, 1")
    p("v_mul_u32_u24 v7, 1152, v5")
    p("v_lshl_add_u32 v7, v4, 4, v7")
    p("v_add_u32 v8, 4608, v7")
    p(f"s_mul_i32 s23, s22, {32*1152}")
    p("s_mul_i32 s24, s21, 576")
    p("s_add_u32 s23, s23, s24")
    p("s_mul_i32 s24, s22, 1821")
    p("s_lshr_b32 s24, s24, 16")
    p("s_mul_i32 s25, s24, 108")
    p("s_add_u32 s25, s25, s22")
    p("s_mul_i32 s24, s21, 72")
    p("s_add_u32 s25, s25, s24")
    p("s_mul_i32 s26, s25, 9216")
    p(f"s_add_u32 s26, s26, {hex(WS['W2'])}")
    def place(rem, b):
        dcs, t = (0, 2 * rem + b) if rem < 4 else ((b, 8) if rem == 4 else (1, 2 * (rem - 5) + b))
        return dcs * 36 * 9216 + t * 1024
    prep_rows9(p, place)

def prepo(p):
    srd(p, 8, "wo", D * D * 2)
    prep_common(p)
    pair_sels(p, 16)
    p("s_and_b32 s21, s20, 1")
    p("s_lshr_b32 s22, s20, 1")
    p("v_lshrrev_b32 v7, 3, v2")
    p("v_mul_u32_u24 v7, 18, v7")
    p("v_and_b32 v8, 7, v2")
    p("v_add_u32 v7, v7, v8")
    p("v_lshrrev_b32 v8, 1, v2")
    p("v_and_b32 v9, 1, v8")
    p("v_lshrrev_b32 v8, 1, v8")
    p("v_lshl_add_u32 v8, v8, 2, v9")
    p("v_mul_u32_u24 v8, 18, v8")
    p("v_and_b32 v9, 1, v2")
    p("v_add3_u32 v8, v8, v9, 16")
    p("s_cmp_lt_u32 s22, 16")
    p("s_cselect_b64 vcc, -1, 0")
    p(f"s_mov_b32 s24, {36*1152}")
    p(f"s_cmov_b32 s24, {8*1152}")
    p("v_cndmask_b32 v7, v8, v7, vcc")
    p("v_mul_u32_u24 v7, 1152, v7")
    p("v_lshl_add_u32 v7, v4, 4, v7")
    p("v_add_u32 v8, s24, v7")
    p(f"s_mul_i32 s23, s22, {36*1152}")
    p("s_sub_u32 s25, s22, 16")
    p(f"s_mul_i32 s25, s25, {288*1152}")
    p("s_cmp_lt_u32 s22, 16")
    p("s_cselect_b32 s23, s23, s25")
    p("s_mul_i32 s24, s21, 576")
    p("s_add_u32 s23, s23, s24")
    p(f"s_mul_i32 s26, s21, {4*92160}")
    p("s_mul_i32 s24, s22, 5120")
    p("s_add_u32 s26, s26, s24")
    p(f"s_add_u32 s26, s26, {hex(WS['WO'])}")
    def place(rem, b):
        if rem == 4: dcs, t = 1 + b, 4
        else:
            dcs = (0, 0, 1, 1, None, 2, 2, 3, 3)[rem]
            t = 2 * (rem - (0, 2, 5, 7)[dcs]) + b
        return dcs * 92160 + t * 1024
    prep_rows9(p, place)

def prepq(p):
    srd(p, 8, "wqkv", D * 3 * D * 2)
    prep_common(p)
    SQ, SK, SV, LQ, LK, LV = 16, 24, 32, 36, 40, 44
    p("v_mov_b32 v10, 99")
    for b in range(2):
        p(f"v_add_u32 v7, {4*b}, v5")
        p("v_cmp_gt_u32 vcc, 8, v2")
        p("v_cndmask_b32 v8, v10, v7, vcc")
        p("v_subrev_u32 v7, 16, v7")
        p("v_cndmask_b32 v9, v7, v10, vcc")
        selmat(p, SQ + 4 * b, 8)
        selmat(p, SK + 4 * b, 9)
    selmat(p, SV, 2)
    for dst, c0 in ((LK, 0), (LQ, 8), (LV, 1)):
        p(f"v_cmp_eq_u32 vcc, {c0}, v2")
        p("v_cndmask_b32 v7, v10, 16, vcc")
        p(f"v_cmp_eq_u32 vcc, {c0+4}, v2")
        p("v_cndmask_b32 v7, v7, 17, vcc")
        selmat(p, dst, 7)
    p("s_and_b32 s21, s20, 31")
    p("s_lshr_b32 s22, s20, 5")
    p("v_mul_u32_u24 v7, 3456, v5")
    p("v_lshl_add_u32 v7, v4, 4, v7")
    p(f"s_mul_i32 s23, s22, {96*3456}")
    p("s_mul_i32 s24, s21, 36")
    p("s_add_u32 s23, s23, s24")
    p("s_mul_i32 s26, s21, 73728")
    p("s_mul_i32 s24, s22, 12288")
    p("s_add_u32 s26, s26, s24")
    p(f"s_add_u32 s26, s26, {hex(WS['WQKV'])}")
    L = 128
    for k in range(6):
        for m in range(3): p(f"buffer_load_dwordx4 {v(L+12*k+4*m,4)}, v7, s[8:11], s23 offen offset:{1152*m}")
        p(f"s_add_u32 s23, s23, {3456*(4 if k % 2 == 0 else 28)}")
    for ks in range(3):
        for blk in range(2):
            A = L + 12 * (2 * ks + blk)
            terms = [[(0, SQ), (1, SK)], [(0, SQ + 4), (1, SK + 4)], [(2, SV)], [(0, LQ), (1, LK), (2, LV)]]
            for t, tl in enumerate(terms):
                Dr = 48 + 8 * t + 4 * blk
                for n, (m, sel) in enumerate(tl):
                    p(f"{M16} {v(Dr,4)}, {v(A+4*m,4)}, {v(sel,4)}, {'0' if n == 0 else v(Dr,4)}")
        for t in range(4):
            o = 80 + 16 * (ks % 2) + 4 * t
            for u in range(4): p(f"v_cvt_pk_bf16_f32 {v(o+u)}, {v(48+8*t+2*u)}, {v(48+8*t+2*u+1)}")
            p(f"buffer_store_dwordx4 {v(o,4)}, v1, {WSD}, s26 offen offset:{1024*t}")
        p("s_add_u32 s26, s26, 4096")

def k_prep(small=False):
    p = Prog("prep")
    entry(p, "prep", 256 + (57 if small else 201))
    p("s_cmp_lt_u32 s2, 256")
    p("s_cbranch_scc0 prep_w", take="both")
    lnp(p, "in", "prep_ln")
    p("s_endpgm")
    p("prep_w:")
    p("s_sub_u32 s20, s2, 256")
    p("s_lshl_b32 s20, s20, 2")
    p("s_add_u32 s20, s20, s3")
    progs = [p]
    secs = [("q", 192, prepq), ("a", 288, prep13), ("b", 288, prep2), ("o", 36, prepo)]
    if small: secs = [secs[0], secs[3]]
    for nm, n, fn in secs[:-1]:
        p(f"s_cmp_lt_u32 s20, {n}")
        p(f"s_cbranch_scc1 prep_{nm}")
        p(f"s_sub_u32 s20, s20, {n}")
    p("s_branch prep_o")
    leave(p, "prep")
    for nm, n, fn in secs:
        q = Prog("prep_" + nm)
        q(f"prep_{nm}:")
        q("s_waitcnt lgkmcnt(0)")
        fn(q)
        q("s_endpgm")
        progs.append(q)
    return progs

def xreg(n):
    return 256 + 4 * n if n < 64 else 224 + 4 * (n - 64)

def k_qkv():
    p = Prog("qkv")
    entry(p, "qkv", 256)
    p("s_and_b32 s16, s2, 7")
    p("s_lshr_b32 s17, s2, 3")
    p("v_lshlrev_b32 v1, 4, v0")
    p("s_mul_i32 s18, s17, 73728")
    p("s_lshl_b32 s19, s3, 10")
    p("s_add_u32 s18, s18, s19")
    p(f"s_add_u32 s18, s18, {hex(WS['WQKV'])}")
    p("s_lshl_b32 s20, s16, 2")
    p("s_add_u32 s20, s20, s3")
    p(f"s_mul_i32 s21, s20, {4*XT}")
    p(f"s_add_u32 s24, s21, {hex(WS['XN'])}")
    for t in range(1, 4): p(f"s_add_u32 {s(24+t)}, {s(23+t)}, {XT}")
    for ks in range(KS):
        p(f"s_add_u32 m0, s19, {4096*ks}")
        p(f"buffer_load_dwordx4 v1, {WSD}, s18 offen lds", tag="w")
        p("s_add_u32 s18, s18, 4096")
    def xl(ks):
        L = [f"buffer_load_dwordx4 {R(xreg(4*ks+t),4)}, v1, {WSD}, {s(24+t)} offen offset:{1024*(ks%4)}" for t in range(4)]
        if ks % 4 == 3: L += [f"s_add_u32 {s(24+t)}, {s(24+t)}, 4096" for t in range(4)]
        return L
    LA = 5
    for ks in range(LA): p.add(xl(ks))
    KB = 73728
    p("v_and_b32 v2, 15, v0")
    p("v_lshrrev_b32 v3, 4, v0")
    p(f"s_mul_i32 s22, s3, {REC}")
    p(f"s_add_u32 s22, s22, {KB}")
    p("v_lshrrev_b32 v4, 3, v2")
    p("v_and_b32 v5, 7, v2")
    p("v_lshl_add_u32 v4, v4, 4, v5")
    p("v_and_b32 v5, 1, v3")
    p("v_lshl_add_u32 v4, v5, 5, v4")
    p("v_cmp_gt_u32 vcc, 2, v3")
    p(f"v_mov_b32 v5, {KVB}")
    p("v_cndmask_b32 v6, 0, v5, vcc")
    p("v_cndmask_b32 v7, v5, 0, vcc")
    p("v_lshl_add_u32 v6, v4, 4, v6")
    p("v_lshl_add_u32 v7, v4, 3, v7")
    p("s_add_u32 s23, s22, 512")
    p("v_add_u32 v6, s23, v6")
    p("v_add_u32 v7, s22, v7")
    p("s_add_u32 s23, s22, 2560")
    p("v_mul_u32_u24 v8, 288, v3")
    p("v_lshl_add_u32 v8, v2, 4, v8")
    p("v_add_u32 v8, s23, v8")
    p("v_lshrrev_b32 v9, 2, v2")
    p("v_mul_u32_u24 v9, 288, v9")
    p("v_lshl_add_u32 v9, v3, 4, v9")
    p("v_and_b32 v10, 3, v2")
    p("v_lshl_add_u32 v9, v10, 1, v9")
    p("s_add_u32 s23, s23, 256")
    p("v_add_u32 v9, s23, v9")
    p(f"v_mov_b32 v5, {fl(LOG2E / math.sqrt(DH))}")
    p("v_cndmask_b32 v10, 1.0, v5, vcc")
    p("v_cndmask_b32 v11, v5, 1.0, vcc")
    p("v_cndmask_b32 v12, 0, 1.0, vcc")
    p("v_add_u32 v13, s22, v1")
    p("v_add_u32 v14, 0x8000, v1")
    stamp(p, 1)
    p("WAITVM w")
    p("s_barrier")
    stamp(p, 2)
    W, ACC = 16, 48
    def wr(ks):
        b, o = (1, 4096 * ks) if ks < 12 else (14, 4096 * ks - 0x8000)
        return [f"ds_read_b128 {v(W+16*(ks%2)+4*t,4)}, {v(b)} offset:{o+1024*t}" for t in range(4)]
    p.add(wr(0))
    for ks in range(KS):
        mf = []
        for t in range(4):
            for tt in range(4):
                d = v(ACC + 16 * tt + 4 * t, 4)
                w, x = v(W + 16 * (ks % 2) + 4 * t, 4), R(xreg(4 * ks + tt), 4)
                A, B = (x, w) if t == 2 else (w, x)
                mf.append(f"{M16} {d}, {A}, {B}, {'0' if ks == 0 else d}")
        st = []
        if ks + 1 < KS: st.append((wr(ks + 1), 0, 8))
        if ks + LA < KS: st.append((xl(ks + LA), 4, 16))
        p.add(weave(mf, st, None))
    T = 112
    stamp(p, 3)
    for tt in range(4):
        A0 = ACC + 16 * tt
        kt2, ab = tt >> 1, tt & 1
        for u in range(8): p(f"v_mul_f32 {v(A0+u)}, {v(A0+u)}, v10")
        p(f"v_mul_f32 {v(A0+12)}, {v(A0+12)}, v11")
        for u in range(4): p(f"v_cvt_pk_bf16_f32 {v(T+4*tt+u)}, {v(A0+2*u)}, {v(A0+2*u+1)}")
        p(f"ds_write_b128 v6, {v(T+4*tt,4)} offset:{kt2*1024+ab*128}")
        p(f"v_cvt_pk_bf16_f32 {v(A0+12)}, {v(A0+12)}, v12")
        p(f"ds_write_b32 v7, {v(A0+12)} offset:{ab*64+kt2*4}")
        p(f"v_cvt_pk_bf16_f32 {v(A0+13)}, {v(A0+13)}, {v(A0+13)}")
        for u in range(2): p(f"v_cvt_pk_bf16_f32 {v(T+16+4*kt2+2*ab+u)}, {v(A0+8+2*u)}, {v(A0+9+2*u)}")
        if ab: p(f"ds_write_b128 v8, {v(T+16+4*kt2,4)} offset:{kt2*1152}")
    p("s_mov_b64 exec, 0xffffffff")
    for tt in range(4): p(f"ds_write_b16 v9, {v(ACC+16*tt+13)} offset:{(tt>>1)*1152+(tt&1)*8}")
    p("s_mov_b64 exec, -1")
    p("s_lshl_b32 s23, s17, 5")
    p("s_add_u32 s23, s23, s20")
    p(f"s_mul_i32 s23, s23, {REC}")
    p(f"s_add_u32 s23, s23, {hex(WS['QKV'])}")
    p("s_add_u32 s28, s23, 4096")
    p("s_waitcnt lgkmcnt(0)")
    for k in range(8): p(f"ds_read_b128 {v(144+4*k,4)}, v13 offset:{1024*k}")
    for k in range(8):
        if k == 7: p("s_mov_b64 exec, 0xffff")
        p(f"buffer_store_dwordx4 {v(144+4*k,4)}, v1, {WSD}, {s(23 if k < 4 else 28)} offen offset:{1024*(k%4)}")
    leave(p, "qkv")
    return [p]

def k_att():
    p = Prog("att")
    entry(p, "att", 256)
    O, SS, P, Q1, Q2 = 16, 80, 112, 128, 144
    KV = lambda b: 256 + 28 * b
    p("s_and_b32 s16, s2, 7")
    p("s_lshr_b32 s17, s2, 3")
    p("v_lshlrev_b32 v1, 4, v0")
    p("v_lshlrev_b32 v2, 3, v0")
    p("v_and_b32 v4, 31, v0")
    p("v_lshrrev_b32 v5, 5, v0")
    p("v_cmp_eq_u32 vcc, 20, v4")
    p("v_cndmask_b32 v3, v4, 17, vcc")
    p("v_lshlrev_b32 v3, 4, v3")
    p("v_mul_u32_u24 v6, 288, v5")
    p("v_add_u32 v3, v3, v6")
    p("v_add_u32 v3, 2560, v3")
    p(f"s_mul_i32 s18, s17, {32*REC}")
    p(f"s_add_u32 s18, s18, {hex(WS['QKV'])}")
    p("s_lshl_b32 s19, s16, 2")
    p("s_add_u32 s20, s19, s3")
    p("s_xor_b32 s21, s20, 1")
    p(f"s_mul_i32 s22, s20, {REC}")
    p(f"s_mul_i32 s23, s21, {REC}")
    p(f"s_mul_i32 s24, s19, {REC}")
    p(f"s_add_u32 s25, s18, {KVB}")
    p("s_add_u32 s22, s22, s25")
    p("s_add_u32 s23, s23, s25")
    p("s_add_u32 s24, s24, s18")
    p("s_mov_b32 s30, 0x0011ffff")
    p("s_mov_b32 s31, 0x0011ffff")
    for u in range(2):
        p(f"buffer_load_dwordx2 {v(160+2*u,2)}, v2, {WSD}, {s(22+u)} offen")
        for k in range(2): p(f"buffer_load_dwordx4 {v(Q1+8*u+4*k,4)}, v1, {WSD}, {s(22+u)} offen offset:{512+1024*k}")
    p(f"buffer_load_dwordx2 v[164:165], v2, {WSD}, s24 offen")
    p(f"buffer_load_dwordx4 v[168:171], v1, {WSD}, s24 offen offset:512")
    p("v_and_b32 v6, 27, v4")
    p("v_cmp_eq_u32 vcc, 17, v6")
    p("v_mov_b32 v7, 0x3f803f80")
    p("v_cndmask_b32 v7, 0, v7, vcc")
    for b in range(4):
        for u in range(16): p(f"v_accvgpr_write_b32 {R(KV(b)+8+u)}, v7")
    p("s_and_b32 s26, s3, 1")
    p(f"s_mul_i32 s26, s26, {2*REC}")
    p("s_add_u32 s26, s26, s18")
    p("s_mov_b32 s27, s16")
    def unit_addr(par):
        if par == 0:
            return [f"s_mul_i32 s28, s27, {4*REC}", "s_add_u32 s28, s28, s26", "s_add_u32 s27, s27, 1", "s_and_b32 s27, s27, 7"]
        return [f"s_add_u32 s28, s28, {REC}"]
    def unit_loads(b):
        k = KV(b)
        L = [f"buffer_load_dwordx2 {R(k+24,2)}, v2, {WSD}, s28 offen"]
        L += [f"buffer_load_dwordx4 {R(k+4*j,4)}, v1, {WSD}, s28 offen offset:{512+1024*j}" for j in range(2)]
        V = ["s_mov_b64 exec, s[30:31]"]
        V += [f"buffer_load_dwordx4 {R(k+8+4*j,4)}, v3, {WSD}, s28 offen offset:{576*j}" for j in range(4)]
        V += ["s_mov_b64 exec, -1"]
        return L, V
    for b in range(3):
        L, V = unit_loads(b)
        p.add(unit_addr(b & 1) + L + V)
    for u in range(64): p(f"v_mov_b32 {v(O+u)}, 0")
    for i in range(4):
        p(f"v_mov_b32 {v(Q2+4*i)}, {v(160+i)}")
        p(f"v_mov_b32 {v(Q2+4*i+1)}, 0")
        p(f"v_mov_b32 {v(Q2+4*i+2)}, 0")
    T = 176
    stamp(p, 1)
    for i in range(4):
        p(f"{M32} {v(T+16*i,16)}, v[168:171], {v(Q1+4*i,4)}, 0")
        p(f"{M32K8} {v(T+16*i,16)}, v[164:165], {v(Q2+4*i,2)}, {v(T+16*i,16)}")
    p("v_cmp_gt_u32 vcc, 32, v0")
    p("s_mov_b32 s29, 0x07060100")
    for i in range(4):
        t = T + 16 * i
        p(f"v_max3_f32 {v(t)}, {v(t)}, {v(t+1)}, {v(t+2)}")
        for u in range(3, 15, 2): p(f"v_max3_f32 {v(t)}, {v(t)}, {v(t+u)}, {v(t+u+1)}")
        p(f"v_max_f32 {v(t)}, {v(t)}, {v(t+15)}")
        p(f"v_cndmask_b32 {v(t)}, 0, -{v(t)}, vcc")
        p(f"v_perm_b32 {v(Q2+4*i)}, {v(t)}, {v(160+i)}, s29")
        p(f"v_perm_b32 {v(Q2+4*i+3)}, {v(t)}, {v(160+i)}, s29")
    def qk(n):
        b, kt2, i = (n >> 3) & 3, (n >> 2) & 1, n & 3
        d = v(SS + 16 * (n & 1), 16)
        return [f"{M32} {d}, {R(KV(b)+4*kt2,4)}, {v(Q1+4*i,4)}, 0",
                f"{M32K8} {d}, {R(KV(b)+24,2)}, {v(Q2+4*i+2*kt2,2)}, {d}"]
    def pv(n):
        b, kt2, i = (n >> 3) & 3, (n >> 2) & 1, n & 3
        d = v(O + 16 * i, 16)
        return [f"{M32} {d}, {R(KV(b)+8+8*kt2+4*t,4)}, {v(P+8*(n&1)+4*t,4)}, {d}" for t in range(2)]
    def slot(n, first=False, extra=()):
        sb, pb = SS + 16 * (n & 1), P + 8 * (n & 1)
        mf = qk(n + 1) + ([] if first else pv(n - 1))
        E = [f"v_exp_f32 {v(sb+u)}, {v(sb+u)}" for u in range(16)]
        C = [f"v_cvt_pk_bf16_f32 {v(pb+u)}, {v(sb+2*u)}, {v(sb+2*u+1)}" for u in range(8)]
        out = []
        for g in range(4):
            if g < len(mf): out.append(mf[g])
            out += E[4 * g:4 * g + 3]
            if g: out.append(C[2 * g - 1])
            out += [E[4 * g + 3], C[2 * g]]
            if g == 1: out += list(extra)
        out.append(C[7])
        return out
    stamp(p, 2)
    p.add(qk(0))
    p("s_mov_b32 s33, 4")
    p.add(slot(0, first=True))
    p("s_branch att_l1")
    p(".p2align 6")
    p("att_l0:")
    p.add(slot(32))
    p("att_l1:")
    for n in range(1, 32):
        ex = []
        b = ((n >> 3) + 3) & 3
        L, V = unit_loads(b)
        if n & 7 == 1: ex = unit_addr(b & 1) + L
        if n & 7 == 2: ex = V
        if n == 31: ex = ["s_sub_u32 s33, s33, 1", "s_cmp_lg_u32 s33, 0"]
        p.add(slot(n, extra=ex))
    p("s_cbranch_scc1 att_l0")
    p.add(pv(127))
    p("att_red:")
    stamp(p, 3)
    p("s_mul_i32 s28, s3, 5120")
    p("s_xor_b32 s29, s3, 1")
    p("s_mul_i32 s29, s29, 5120")
    p("v_add_u32 v6, s28, v1")
    p("v_add_u32 v7, s28, v2")
    p("v_add_u32 v8, s29, v1")
    p("v_add_u32 v9, s29, v2")
    for k in range(2):
        o = O + 32 + 16 * k
        p(f"ds_write_b128 v6, {v(o,4)} offset:{2560*k}")
        p(f"ds_write_b128 v6, {v(o+4,4)} offset:{2560*k+1024}")
        p(f"ds_write_b64 v7, {v(o+8,2)} offset:{2560*k+2048}")
    p("v_and_b32 v10, 7, v4")
    p("v_lshrrev_b32 v11, 4, v4")
    p("v_lshl_add_u32 v10, v11, 3, v10")
    p("v_bfe_u32 v11, v4, 3, 1")
    p("v_lshlrev_b32 v12, 4, v10")
    p("v_lshl_add_u32 v12, v5, 8, v12")
    p("v_lshl_add_u32 v12, v11, 14, v12")
    p("v_lshl_add_u32 v13, v11, 4, v10")
    p("v_lshl_add_u32 v13, v5, 5, v13")
    p("v_lshlrev_b32 v13, 2, v13")
    p("s_lshl_b32 s34, s20, 16")
    p("s_lshl_b32 s35, s17, 9")
    p("s_add_u32 s34, s34, s35")
    p(f"s_add_u32 s34, s34, {hex(WS['OP'])}")
    p("s_add_u32 s35, s34, 0x8000")
    p("s_lshl_b32 s36, s17, 13")
    p("s_lshl_b32 s37, s20, 8")
    p("s_add_u32 s36, s36, s37")
    p(f"s_add_u32 s36, s36, {hex(WS['OL'])}")
    p("s_waitcnt lgkmcnt(0)")
    p("s_barrier")
    for k in range(2):
        t = T + 16 * k
        p(f"ds_read_b64 {v(t+8,2)}, v9 offset:{2560*k+2048}")
        p(f"ds_read_b128 {v(t,4)}, v8 offset:{2560*k}")
        p(f"ds_read_b128 {v(t+4,4)}, v8 offset:{2560*k+1024}")
    for k in range(2):
        o, t = O + 16 * k, T + 16 * k
        p(f"v_add_f32 {v(o+9)}, {v(o+9)}, {v(t+9)}")
        p(f"v_rcp_f32 {v(o+10)}, {v(o+9)}")
        for u in (8, 0, 1, 2, 3, 4, 5, 6, 7): p(f"v_add_f32 {v(o+u)}, {v(o+u)}, {v(t+u)}")
        for u in range(9): p(f"v_mul_f32 {v(o+u)}, {v(o+u)}, {v(o+10)}")
        for u in range(4): p(f"v_cvt_pk_bf16_f32 {v(t+u)}, {v(o+2*u)}, {v(o+2*u+1)}")
        p(f"buffer_store_dwordx4 {v(t,4)}, v12, {WSD}, {s(34+k)} offen")
    p(f"v_permlane32_swap_b32 {v(O+8)}, {v(O+24)}")
    p(f"v_cvt_pk_bf16_f32 v14, {v(O+8)}, {v(O+24)}")
    p(f"buffer_store_dword v14, v13, {WSD}, s36 offen")
    leave(p, "att")
    return [p]

def k_oproj():
    p = Prog("oproj")
    entry(p, "oproj", 256)
    B, W, ACC, RS = 16, 96, 136, 160
    p("s_and_b32 s16, s2, 7")
    p("s_lshr_b32 s17, s2, 3")
    p("s_and_b32 s18, s17, 3")
    p("s_lshr_b32 s17, s17, 2")
    p("s_lshl_b32 s16, s16, 4")
    p("s_lshl_b32 s18, s18, 2")
    p("s_add_u32 s16, s16, s18")
    p("s_add_u32 s16, s16, s3")
    p("v_lshlrev_b32 v1, 4, v0")
    p("s_mul_i32 s18, s17, 92160")
    p("s_lshl_b32 s19, s3, 12")
    p("s_add_u32 s18, s18, s19")
    p(f"s_add_u32 s18, s18, {hex(WS['WO'])}")
    p("s_lshl_b32 s20, s16, 14")
    p(f"s_add_u32 s20, s20, {hex(WS['OP'])}")
    p("s_lshl_b32 s21, s16, 6")
    p(f"s_add_u32 s21, s21, {hex(WS['OL'])}")
    p("v_and_b32 v2, 15, v0")
    p("v_lshrrev_b32 v3, 4, v0")
    p("v_lshlrev_b32 v4, 15, v3")
    p("v_lshl_add_u32 v4, v2, 2, v4")
    for g in range(6):
        p(f"s_add_u32 m0, s19, {16384*g}")
        for k in range(4): p(f"buffer_load_dwordx4 v1, {WSD}, s18 offen offset:{1024*k} lds", tag="w")
        p("s_add_u32 s18, s18, 16384")
    for ks in range(16):
        p(f"buffer_load_dwordx4 {v(B+4*ks,4)}, v1, {WSD}, s20 offen offset:{1024*(ks%4)}")
        if ks % 4 == 3: p("s_add_u32 s20, s20, 4096")
    for k in range(8):
        p(f"buffer_load_dword {v(B+64+k)}, v4, {WSD}, s21 offen")
        p(f"s_add_u32 s21, s21, {8192*(13 if k == 3 else 1)}")
    p("s_lshr_b32 s22, s17, 2")
    p("s_and_b32 s23, s17, 3")
    p("s_mul_i32 s22, s22, 9")
    p("s_mul_i32 s24, s23, 5")
    p("s_lshr_b32 s24, s24, 1")
    p("s_add_u32 s24, s24, s22")
    p("s_lshl_b32 s24, s24, 10")
    p("s_add_u32 s25, s22, 4")
    p("s_lshl_b32 s25, s25, 10")
    p("s_and_b32 s26, s23, 2")
    p("s_lshl_b32 s26, s26, 2")
    p("s_add_u32 s25, s25, s26")
    p(f"s_mul_i32 s26, s16, {XT}")
    p("s_add_u32 s24, s24, s26")
    p("s_add_u32 s25, s25, s26")
    p(f"s_add_u32 s26, s24, {hex(WS['XP'])}")
    p(f"s_add_u32 s27, s25, {hex(WS['XP'])}")
    p(f"s_add_u32 s24, s24, {hex(WS['X2'])}")
    p(f"s_add_u32 s25, s25, {hex(WS['X2'])}")
    for k in range(2): p(f"buffer_load_dwordx4 {v(RS+4*k,4)}, v1, {WSD}, s26 offen offset:{1024*k}")
    p(f"buffer_load_dwordx2 {v(RS+8,2)}, v1, {WSD}, s27 offen")
    p("v_add_u32 v5, 0x8000, v1")
    p("s_add_u32 s28, s23, 1")
    p("s_and_b32 s28, s28, 2")
    p("s_lshl_b32 s29, s17, 14")
    p("s_lshl_b32 s30, s16, 7")
    p("s_add_u32 s29, s29, s30")
    p(f"s_add_u32 s29, s29, {hex(WS['ST'])}")
    p("v_lshlrev_b32 v6, 3, v2")
    stamp(p, 1)
    p("WAITVM w")
    p("s_barrier")
    stamp(p, 2)
    def wr(ks):
        b, o = (1, 5120 * ks) if ks < 10 else (5, 5120 * ks - 0x8000)
        return [f"ds_read_b128 {v(W+20*(ks%2)+4*t,4)}, {v(b)} offset:{o+1024*t}" for t in range(5)]
    p.add(wr(0))
    for ks in range(KS):
        mf = [f"{M16} {v(ACC+4*t,4)}, {v(W+20*(ks%2)+4*t,4)}, {v(B+4*ks,4)}, {'0' if ks == 0 else v(ACC+4*t,4)}" for t in range(5)]
        p.add(weave(mf, [(wr(ks + 1), 0, 5)] if ks + 1 < KS else [], None))
    T = 176
    def fin(u0, n):
        for u in range(u0, u0 + n, 2): p.add(unpack(T + u, RS + u // 2))
        for u in range(u0, u0 + n): p(f"v_add_f32 {v(T+u)}, {v(T+u)}, {v(ACC+u)}")
        for u in range(u0, u0 + n, 2): p(f"v_cvt_pk_bf16_f32 {v(200+u//2)}, {v(T+u)}, {v(T+u+1)}")
    def stat(u0, n):
        for u in range(u0, u0 + n):
            p(f"v_add_f32 v8, v8, {v(T+u)}")
            p(f"v_fmac_f32 v9, {v(T+u)}, {v(T+u)}")
    stamp(p, 3)
    p("v_mov_b32 v8, 0")
    p("v_mov_b32 v9, 0")
    fin(0, 16)
    for k in range(2): p(f"buffer_store_dwordx4 {v(200+4*k,4)}, v1, {WSD}, s24 offen offset:{1024*k}")
    p("s_cmp_eq_u32 s28, 0")
    p("s_cbranch_scc1 oproj_nohalf", take="both")
    fin(16, 4)
    p(f"buffer_store_dwordx2 v[208:209], v1, {WSD}, s25 offen")
    stat(16, 4)
    p("oproj_nohalf:")
    stat(0, 16)
    xsum(p, [8, 9], 10, [4, 5])
    p("s_mov_b64 exec, 0xffff")
    p(f"buffer_store_dwordx2 v[8:9], v6, {WSD}, s29 offen")
    leave(p, "oproj")
    return [p]

def k_up():
    p = Prog("up")
    entry(p, "up", 256)
    W, ACC, C1, IR2, T, HO = 16, 48, 176, 180, 184, 200
    p("s_and_b32 s16, s2, 7")
    p("s_lshr_b32 s17, s2, 3")
    p("s_and_b32 s18, s16, 1")
    p("s_lshr_b32 s16, s16, 1")
    p("s_lshl_b32 s18, s18, 2")
    p("s_and_b32 s19, s17, 3")
    p("s_add_u32 s18, s18, s19")
    p("s_lshr_b32 s17, s17, 2")
    p("s_lshl_b32 s16, s16, 3")
    p("s_add_u32 s17, s17, s16")
    p("s_lshl_b32 s18, s18, 2")
    p("s_add_u32 s18, s18, s3")
    p("v_lshlrev_b32 v1, 4, v0")
    p("v_lshlrev_b32 v2, 3, v0")
    p(f"s_mul_i32 s20, s17, {CH13}")
    p("s_mul_i32 s19, s3, 6144")
    p("s_add_u32 s20, s20, s19")
    p(f"s_add_u32 s20, s20, {hex(WS['W13'])}")
    p(f"s_mul_i32 s21, s18, {4*XT}")
    p(f"s_add_u32 s24, s21, {hex(WS['X2'])}")
    for t in range(1, 4): p(f"s_add_u32 {s(24+t)}, {s(23+t)}, {XT}")
    def dma(stage):
        tag = f"w{stage % 6}"
        L = []
        for h in range(2):
            L.append(f"s_add_u32 m0, s19, {24576*(stage%6)+3072*h}")
            L += [(f"buffer_load_dwordx4 v1, {WSD}, s20 offen offset:{1024*k} lds", tag) for k in range(3)]
            L.append(f"s_add_u32 s20, s20, {3072 if h == 0 else 24576-3072}")
        return L
    def xl(ks):
        L = [f"buffer_load_dwordx4 {R(xreg(4*ks+t),4)}, v1, {WSD}, {s(24+t)} offen offset:{1024*(ks%4)}" for t in range(4)]
        if ks % 4 == 3: L += [f"s_add_u32 {s(24+t)}, {s(24+t)}, 4096" for t in range(4)]
        return L
    p.add(dma(0))
    LA = 5
    for ks in range(LA): p.add(xl(ks))
    p("s_lshl_b32 s22, s18, 9")
    p(f"s_add_u32 s22, s22, {hex(WS['ST'])}")
    for k in range(8):
        p(f"buffer_load_dwordx2 {v(ACC+64+2*k,2)}, v2, {WSD}, s22 offen")
        p("s_add_u32 s22, s22, 16384")
    p.add(dma(1))
    p("v_add_u32 v3, 49152, v1")
    p("v_add_u32 v4, 98304, v1")
    p("s_lshr_b32 s22, s17, 1")
    p("s_and_b32 s23, s17, 1")
    p("s_mul_i32 s22, s22, 9216")
    p(f"s_mul_i32 s28, s18, {4*HT}")
    p("s_add_u32 s22, s22, s28")
    p(f"s_add_u32 s22, s22, {hex(WS['HP'])}")
    p("s_mul_i32 s28, s23, 5120")
    p("s_add_u32 s28, s28, s22")
    p("s_lshl_b32 s23, s23, 3")
    p("s_add_u32 s32, s22, s23")
    p("s_add_u32 s32, s32, 4096")
    for t in range(1, 4):
        p(f"s_add_u32 {s(28+t)}, {s(27+t)}, {HT}")
        p(f"s_add_u32 {s(32+t)}, {s(31+t)}, {HT}")
    p("v_and_b32 v5, 15, v0")
    p("v_lshlrev_b32 v5, 2, v5")
    z = ACC + 64
    stats = []
    for k in range(1, 8):
        stats += [f"v_add_f32 {v(z)}, {v(z)}, {v(z+2*k)}", f"v_add_f32 {v(z+1)}, {v(z+1)}, {v(z+2*k+1)}"]
    stats += [f"v_mul_f32 {v(z)}, {fl(1/D)}, {v(z)}", f"v_mul_f32 {v(z+1)}, {fl(1/D)}, {v(z+1)}",
              f"v_fma_f32 {v(z+1)}, -{v(z)}, {v(z)}, {v(z+1)}", f"v_max_f32 {v(z+1)}, 0, {v(z+1)}",
              f"v_add_f32 {v(z+1)}, {fl(1e-5)}, {v(z+1)}", f"v_rsq_f32 {v(z)}, {v(z+1)}", "s_nop 0",
              f"v_mul_f32 {v(z)}, {fl(-LOG2E)}, {v(z)}"]
    for t in range(4):
        stats += [f"ds_bpermute_b32 {v(C1+t)}, v5, {v(z)} offset:{64*t}", f"ds_bpermute_b32 {v(IR2+t)}, v5, {v(z+1)} offset:{64*t}"]

    def rd(off, dst):
        b, o = (1, off) if off < 49152 else ((3, off - 49152) if off < 98304 else (4, off - 98304))
        return f"ds_read_b128 {v(dst,4)}, {v(b)} offset:{o}"
    def wr(pas, ks):
        if pas < 4:
            return [rd(73728 * (pas % 2) + 4096 * ks + 1024 * t, W + 16 * (ks % 2) + 4 * t) for t in range(4)]
        return [rd(2048 * ks + 1024 * t, W + 16 * (ks % 2) + 4 * t) for t in range(2)]
    def epi(acc, nb, sreg):
        L = []
        for tt in range(4):
            for b in range(nb):
                g = acc + 16 * tt + 8 * b
                u = g + 4
                t = T + 4 * ((2 * tt + b) % 2)
                L += [f"v_mul_f32 {v(t+i)}, {v(g+i)}, {v(C1+tt)}" for i in range(4)]
                L += [f"v_exp_f32 {v(t+i)}, {v(t+i)}" for i in range(4)]
                L += [f"v_mul_f32 {v(g+i)}, {v(g+i)}, {v(u+i)}" for i in range(2)]
                L += [f"v_fma_f32 {v(t+i)}, {v(t+i)}, {v(IR2+tt)}, {v(IR2+tt)}" for i in range(4)]
                L += [f"v_rcp_f32 {v(t+i)}, {v(t+i)}" for i in range(4)]
                L += [f"v_mul_f32 {v(g+i)}, {v(g+i)}, {v(u+i)}" for i in range(2, 4)]
                L += [f"v_mul_f32 {v(g+i)}, {v(g+i)}, {v(t+i)}" for i in range(4)]
                o = HO + 4 * (tt % 2) + 2 * b
                L += [f"v_cvt_pk_bf16_f32 {v(o+i)}, {v(g+2*i)}, {v(g+2*i+1)}" for i in range(2)]
            if nb == 2:
                L += [f"buffer_store_dwordx4 {v(HO+4*(tt%2),4)}, v1, {WSD}, {s(sreg+tt)} offen", f"s_add_u32 {s(sreg+tt)}, {s(sreg+tt)}, 1024"]
            else:
                L += [f"buffer_store_dwordx2 {v(HO+4*(tt%2),2)}, v1, {WSD}, {s(sreg+tt)} offen"]
        return L
    def sync(stage):
        return [f"WAITVM w{stage % 6}", "s_barrier"]
    def gpass(pas, nxt, extra, dmas):
        nt = 4 if pas < 4 else 2
        acc = ACC + 64 * (pas % 2)
        main, st = [], []
        per = 4 * nt
        for ks in range(KS):
            pre = []
            if pas < 4 and ks % 6 == 5 and (ks < 17 or nxt is not None): pre = sync(3 * pas + ks // 6 + 1)
            if pas == 4 and ks == 11: pre = sync(13)
            for t in range(nt):
                for tt in range(4):
                    d = v(acc + 16 * tt + 4 * t, 4)
                    m = f"{M16} {d}, {v(W+16*(ks%2)+4*t,4)}, {R(xreg(4*ks+tt),4)}, {'0' if ks == 0 else d}"
                    main.append([m] + pre if pre else m)
                    pre = []
            rs = wr(pas, ks + 1) if ks + 1 < KS else (wr(nxt, 0) if nxt is not None else [])
            st.append((rs, per * ks, per * ks + per // 2))
            if ks in dmas: st.append((dma(dmas[ks]), per * ks, per * (ks + 3)))
        return weave(main, st + extra, None)
    stamp(p, 1)
    p.add(sync(0))
    stamp(p, 2)
    p.add(wr(0, 0))
    xs = [(xl(ks + LA), 16 * ks + 4, 16 * ks + 16) for ks in range(KS - LA)]
    p.add(gpass(0, 1, xs + [(stats, 16 * 13, 16 * 17)], {3: 2, 9: 3, 12: 4, 15: 5}))
    stamp(p, 3)
    p("s_mov_b32 s36, 0")
    p(".p2align 3")
    p("up_loop:")
    body = gpass(1, 2, [(epi(ACC, 2, 28), 8, 280)], {0: 6, 6: 7, 12: 8})
    p.add(body)
    p("s_cmp_lg_u32 s36, 0")
    p("s_cbranch_scc1 up_last", take=[False, True])
    p.add(gpass(2, 1, [(epi(ACC + 64, 2, 28), 8, 280)], {0: 9, 6: 10, 12: 11}))
    p("s_mov_b32 s36, 1")
    p("s_branch up_loop")
    p("up_last:")
    stamp(p, 4)
    p.add(gpass(4, None, [(epi(ACC + 64, 2, 28), 4, 144)], {}))
    stamp(p, 5)
    p.add(epi(ACC, 1, 32))
    leave(p, "up")
    return [p]

def k_down():
    p = Prog("down")
    entry(p, "down", 256)
    W, ACC, T = 16, 96, 176
    HB = lambda k, tt: 256 + 8 * (k % 12) + 4 * tt
    p("s_and_b32 s16, s2, 7")
    p("s_lshr_b32 s17, s2, 3")
    p("s_and_b32 s18, s16, 1")
    p("s_lshr_b32 s16, s16, 1")
    p("s_lshl_b32 s18, s18, 3")
    p("s_and_b32 s19, s17, 7")
    p("s_add_u32 s18, s18, s19")
    p("s_lshr_b32 s17, s17, 3")
    p("s_lshl_b32 s18, s18, 2")
    p("s_add_u32 s18, s18, s3")
    p("v_lshlrev_b32 v1, 4, v0")
    p("s_lshl_b32 s20, s16, 2")
    p("s_add_u32 s20, s20, s17")
    p(f"s_mul_i32 s20, s20, {36*9216}")
    p("s_mul_i32 s19, s3, 9216")
    p("s_add_u32 s20, s20, s19")
    p(f"s_add_u32 s20, s20, {hex(WS['W2'])}")
    p(f"s_mul_i32 s24, s18, {2*HT}")
    p("s_mul_i32 s21, s16, 36864")
    p("s_add_u32 s24, s24, s21")
    p(f"s_add_u32 s24, s24, {hex(WS['HP'])}")
    p(f"s_add_u32 s25, s24, {HT}")
    def dma(stage):
        tag = f"w{stage % 3}"
        L = []
        for h in range(3):
            L.append(f"s_add_u32 m0, s19, {36864*(stage%3)+3072*h}")
            L += [(f"buffer_load_dwordx4 v1, {WSD}, s20 offen offset:{1024*k} lds", tag) for k in range(3)]
            L.append(f"s_add_u32 s20, s20, {3072 if h < 2 else 36864-6144}")
        return L
    def hl(k):
        L = [f"buffer_load_dwordx4 {R(HB(k,tt),4)}, v1, {WSD}, {s(24+tt)} offen offset:{1024*(k%4)}" for tt in range(2)]
        if k % 4 == 3: L += [f"s_add_u32 {s(24+tt)}, {s(24+tt)}, 4096" for tt in range(2)]
        return L
    p.add(dma(0))
    for k in range(4): p.add(hl(k))
    p.add(dma(1))
    for k in range(4, 11): p.add(hl(k))
    p("v_add_u32 v3, 55296, v1")
    for u in range(72): p(f"v_mov_b32 {v(ACC+u)}, 0")
    p("s_lshr_b32 s22, s17, 1")
    p("s_and_b32 s23, s17, 1")
    p("s_mul_i32 s22, s22, 9216")
    p(f"s_mul_i32 s28, s18, {2*XT}")
    p("s_add_u32 s22, s22, s28")
    p(f"s_mul_i32 s28, s16, {XSZ}")
    p("s_add_u32 s22, s22, s28")
    p(f"s_add_u32 s22, s22, {hex(WS['PART'])}")
    p("s_mul_i32 s28, s23, 5120")
    p("s_add_u32 s28, s28, s22")
    p("s_lshl_b32 s23, s23, 3")
    p("s_add_u32 s30, s22, s23")
    p("s_add_u32 s30, s30, 4096")
    p(f"s_add_u32 s29, s28, {XT}")
    p(f"s_add_u32 s31, s30, {XT}")
    def wr(k):
        off = 9216 * (k % 12)
        b, o = (1, off) if off < 55296 else (3, off - 55296)
        return [f"ds_read_b128 {v(W+36*(k%2)+4*t,4)}, {v(b)} offset:{o+1024*t}" for t in range(9)]
    stamp(p, 1)
    p("WAITVM w0")
    p("s_barrier")
    stamp(p, 2)
    p.add(wr(0))
    p.add(dma(2))
    p("s_mov_b32 s36, 3")
    p(".p2align 3")
    p("down_loop:")
    main, st = [], []
    for k in range(12):
        pre = ["s_waitcnt lgkmcnt(0)", f"WAITVM w{(k//4+1) % 3}", "s_barrier"] if k % 4 == 3 else []
        for t in range(9):
            for tt in range(2):
                d = v(ACC + 36 * tt + 4 * t, 4)
                m = f"{M16} {d}, {v(W+36*(k%2)+4*t,4)}, {R(HB(k,tt),4)}, {d}"
                main.append(pre + [m] if pre else m)
                pre = []
        st.append((wr(k + 1), 18 * k, 18 * k + 14))
        st.append((hl(k + 11), 18 * k + 1, 18 * k + 9))
        if k % 4 == 3: st.append((dma(k // 4), 18 * k + 1, 18 * k + 18))
    st.append((["s_sub_u32 s36, s36, 1"], 18 * 10, 18 * 10 + 1))
    p.add(weave(main, st, None))
    p("s_cmp_lg_u32 s36, 0")
    p("s_cbranch_scc1 down_loop")
    stamp(p, 3)
    for tt in range(2):
        for k in range(4):
            o = T + 20 * tt + 4 * k
            for u in range(4): p(f"v_cvt_pk_bf16_f32 {v(o+u)}, {v(ACC+36*tt+8*k+2*u)}, {v(ACC+36*tt+8*k+2*u+1)}")
            p(f"buffer_store_dwordx4 {v(o,4)}, v1, {WSD}, {s(28+tt)} offen offset:{1024*k}")
        o = T + 20 * tt + 16
        for u in range(2): p(f"v_cvt_pk_bf16_f32 {v(o+u)}, {v(ACC+36*tt+32+2*u)}, {v(ACC+36*tt+33+2*u)}")
        p(f"buffer_store_dwordx2 {v(o,2)}, v1, {WSD}, {s(30+tt)} offen")
    leave(p, "down")
    return [p]

def k_red(mode):
    nm = "red" + mode
    p = Prog(nm)
    entry(p, nm, 256)
    lnp(p, mode, nm + "_ln")
    leave(p, nm)
    return [p]

def kd(name, nv, acc):
    return f""".p2align 6
.amdhsa_kernel {name}_kernel
  .amdhsa_next_free_vgpr {nv}
  .amdhsa_next_free_sgpr 102
  .amdhsa_accum_offset {acc}
  .amdhsa_group_segment_fixed_size 0
  .amdhsa_kernarg_size 80
  .amdhsa_user_sgpr_count 2
  .amdhsa_user_sgpr_kernarg_segment_ptr 1
  .amdhsa_system_sgpr_workgroup_id_x 1
.end_amdhsa_kernel
"""

def build(extra_nops=0):
    K = {"prep": (k_prep(), 457, 256, 256, 256), "qkv": (k_qkv(), 256, 73728 + 4 * REC + 1024, 512, 256),
         "att": (k_att(), 256, 20480, 512, 256), "oproj": (k_oproj(), 256, 98304, 256, 256),
         "up": (k_up(), 256, 147456, 512, 256), "down": (k_down(), 256, 110592, 512, 256),
         "redmid": (k_red("mid"), 256, 256, 128, 128), "redout": (k_red("out"), 256, 0, 128, 128)}
    order = ["prep"] + ["qkv", "att", "oproj", "up", "down", "redmid"] + ["qkv", "att", "oproj", "up", "down", "redout"]
    order += ["redout"] * extra_nops
    head = [l for l in open(f"cdna_kernels/{NAME}.s.ref").read().split("\n") if l.startswith(";") and "@launch" not in l and "Override" not in l and "grid=ceil" not in l]
    out = "\n".join(head) + "\n"
    for n in order: out += f"; @launch kernel={n}_kernel grid=({K[n][1]},1,1) block=(256,1,1) lds={K[n][2]}\n"
    out += '.amdgcn_target "amdgcn-amd-amdhsa--gfx950"\n.text\n'
    for n, (progs, *_r) in K.items():
        for q in progs: out += q.finalize(verbose=True).text()
    out += '.section .rodata,"a"\n'
    for n, (progs, g, lds, nv, acc) in K.items(): out += kd(n, nv, acc)
    return out

if __name__ == "__main__":
    if "diag" in sys.argv:
        DIAG = True
        sys.argv.remove("diag")
    dst = sys.argv[1] if len(sys.argv) > 1 else f"cdna_kernels/{NAME}.s"
    open(dst, "w").write(build(int(sys.argv[2]) if len(sys.argv) > 2 else 0))
```

```python
from layout import S, D, H, DH, F, KS, XT, XSZ, CH13, HT
VS = 592
KVB = 4992
REC = KVB + 2560
BLK = 16384
def _alloc(items):
    off, m = 0, {}
    for name, size in items:
        m[name] = off
        off = (off + size + 0xFFFF) & ~0xFFFF
    m["END"] = off
    return m
WS = _alloc([("DIAG", 1 << 20), ("WQKV", 32 * 72 * 1024), ("WO", 8 * 90 * 1024 + 8192), ("W13", 32 * CH13), ("W2", 16 * 36 * 9216)])
FS = 32
AC = _alloc([("FLAG", 6144 * FS), ("XP", XSZ), ("XN", XSZ), ("KV", 32 * 16 * BLK), ("OP", 128 * 16384), ("OL", 32 * 8192),
             ("X2", XSZ), ("ST", 8 * 2048 * 8), ("HP", 128 * HT), ("PART", 4 * XSZ)])
ACT0 = WS["END"]
LSZ = AC["END"]
FQ, FA, FU, FD, FO, FP, FWO, FR, FW = (AC["FLAG"] + k * FS for k in (0, 1024, 2048, 3072, 4096, 4352, 4608, 5120, 5376))
TOTAL = ACT0 + 2 * LSZ
def hpos(fsl):
    e, rem = divmod(fsl, 9)
    if rem == 4: return 8 + e
    return (0, 12, 20, 28)[rem % 5] + 2 * e + (rem > 4)
if __name__ == "__main__":
    print(WS, AC, hex(ACT0), hex(LSZ), hex(TOTAL))
```

```python
import math, struct, sys
import gen as G
from gen import fl, M16, M32, M32K8, srd, unpack, xsum, LOG2E, NAME, kd, xreg
from asmb import Prog, v, a, s, R, I
from asmb import sched as pack
from layout2 import *

WSD = s(4, 4)
ACD = s(48, 4)
DIAG = False
OPT = dict(sig_slot=2, poll_slot=7, chk_slot=10, la_q=6, la_u=6, drd=11, g7=1, one_a=1, fsa=32, fso=32, fsd=32, fsr=32, urd=5, xe=290, s1=-150, s2=-40, s3=130, dr=50, l3=8, x0=14, abl=0, r0=2, abar=1, qnt=1, dly=1, thr=2)
SPIN = 200000

NAMES = []
def stamp_items(name):
    if not DIAG: return []
    if name not in NAMES: NAMES.append(name)
    i = NAMES.index(name)
    return [["s_memtime s[62:63]", "s_memrealtime s[60:61]", "s_waitcnt lgkmcnt(0)", f"v_writelane_b32 v223, s62, {i}", f"v_writelane_b32 v221, s60, {i}"]]
SN = "start,go,wbar,qkvmain,attpro,attloop,attepi,sigA,pollA,opmain,opepi,sigO,pollO,up0,up123,down,dnepi,sigD,pollD,red,end".split(",")
def stamp(p, i):
    p.add(flat(stamp_items(SN[i] if isinstance(i, int) else i)))

SG = 219
def signal(off_sgpr, val, tmp):
    return [f"v_mov_b32 {v(tmp)}, {val}", f"buffer_store_dword {v(tmp)}, {v(SG)}, {ACD}, {off_sgpr} offen sc1"]

def flat(L):
    out = []
    for x in L: out += x if isinstance(x, list) else [x]
    return out

class Spins:
    def __init__(self): self.code = Prog("spin"); self.n = 0
    def check(self, voff, off_sgpr, val, tmp, back=False, srd=ACD):
        k = self.n; self.n += 1
        q = self.code
        q(f"spin{k}:")
        q("s_sub_u32 s14, s14, 1")
        q(f"s_cbranch_scc1 spin{k}_out")
        if back: q("s_sleep 4")
        q(f"buffer_load_dword {v(tmp)}, {v(voff)}, {srd}, {off_sgpr} offen sc1")
        q("s_waitcnt vmcnt(0)")
        q(f"v_cmp_gt_u32 vcc, {val}, {v(tmp)}")
        q(f"s_cbranch_vccnz spin{k}", take=False)
        q(f"s_branch back{k}", take=[False])
        q(f"spin{k}_out:")
        q("s_mov_b32 s14, 0")
        q(f"s_branch back{k}", take=[False])
        self.last = [f"s_cbranch_vccnz spin{k}", f"back{k}:"]
        return [f"v_cmp_gt_u32 vcc, {val}, {v(tmp)}", self.last]
    def load(self, voff, off_sgpr, tmp, srd=ACD):
        return [f"buffer_load_dword {v(tmp)}, {v(voff)}, {srd}, {off_sgpr} offen sc1"]

SL = 36864
QW = 73728
RB = 73728
QS = 576
DUM = 163840
SELB = 151552
OOB = 0x40000000
SCR = 143360
WOL = 49152
LNS = 147456

def frags(q, N, src, sel, C, store, reads, OUT=160):
    for n in range(N + 3):
        Dr = 176 + 8 * (n % 4)
        c = n - 2
        cv = [f"v_cvt_pk_bf16_f32 {v(OUT+4*(c%3)+u)}, {v(176+8*(c%4)+2*u)}, {v(177+8*(c%4)+2*u)}" for u in range(4)] if 0 <= c < N else []
        if n < N: q(f"{M16} {v(Dr,4)}, {R(src(n),4)}, {v(sel(n),4)}, {C}")
        if n >= 3: q.add(store(n - 3, OUT + 4 * ((n - 3) % 3)))
        q.add(cv[:1])
        if n < N: q(f"{M16} {v(Dr+4,4)}, {R(src(n)+4,4)}, {v(sel(n),4)}, {C}")
        if n < len(reads): q(reads[n])
        q.add(cv[1:])

def ln_tail(p, X, TT, L0, delta, cvt_raw):
    p(f"v_pk_add_f32 v[8:9], {v(X,2)}, {v(X+2,2)}")
    p(f"v_pk_mul_f32 v[10:11], {v(X,2)}, {v(X,2)}")
    for u in range(2, 24, 2):
        if u > 2: p(f"v_pk_add_f32 v[8:9], v[8:9], {v(X+u,2)}")
        p(f"v_pk_fma_f32 v[10:11], {v(X+u,2)}, {v(X+u,2)}, v[10:11]")
    p("v_add_f32 v8, v8, v9")
    p("v_add_f32 v9, v10, v11")
    xsum(p, [8, 9], 10, [3, 4, 5])
    p("ds_write_b64 v216, v[8:9]")
    if cvt_raw:
        for u in range(12): p(f"v_cvt_pk_bf16_f32 {v(L0+u)}, {v(X+2*u)}, {v(X+2*u+1)}")
    p(f"s_add_u32 s27, s31, {hex(delta + AC['XP'])}")
    p("s_waitcnt lgkmcnt(0)")
    p("s_barrier")
    p("ds_read_b128 v[8:11], v217")
    p("ds_read_b64 v[6:7], v217 offset:16")
    for i in range(3): p(f"buffer_store_dwordx4 {v(L0+4*i,4)}, v218, {ACD}, s27 offen offset:{256*i} sc1")
    p(f"""v_add_f32 v8, v8, v10
v_add_f32 v9, v9, v11
v_add_f32 v8, v8, v6
v_add_f32 v9, v9, v7
v_mul_f32 v8, {fl(1/D)}, v8
v_mul_f32 v9, {fl(1/D)}, v9
v_fma_f32 v9, -v8, v8, v9
v_max_f32 v9, 0, v9
v_add_f32 v9, {fl(1e-5)}, v9
v_rsq_f32 v9, v9
s_add_u32 s27, s31, {hex(delta + AC['XN'])}
v_mul_f32 v8, -v8, v9""")
    for i in range(3):
        for u in range(0, 8, 2): p(f"v_pk_fma_f32 {v(X+8*i+u,2)}, {v(X+8*i+u,2)}, v[8:9], v[8:9] op_sel:[0,1,0] op_sel_hi:[1,1,0]")
        for u in range(4): p(f"v_cvt_pk_bf16_f32 {v(TT+4*i+u)}, {v(X+8*i+2*u)}, {v(X+8*i+2*u+1)}")
        p(f"buffer_store_dwordx4 {v(TT+4*i,4)}, v218, {ACD}, s27 offen offset:{256*i} sc1")

def ln_addr(idx):
    return f"""s_lshr_b32 s31, {idx}, 1
s_mul_i32 s31, s31, {XT}
s_and_b32 s24, {idx}, 1
s_lshl_b32 s24, s24, 7
s_add_u32 s31, s31, s24
s_mul_i32 s24, {idx}, 9216
s_min_u32 s27, s3, 2
s_lshl_b32 s27, s27, 3
v_and_b32 v10, 7, v0
v_lshrrev_b32 v11, 3, v0
v_add_u32 v11, s27, v11
v_mul_u32_u24 v13, 48, v11
v_mul_u32_u24 v14, 1152, v10
v_add_u32 v13, v13, v14
v_mul_u32_u24 v218, 768, v11
v_lshl_add_u32 v218, v10, 4, v218
v_lshlrev_b32 v217, 5, v10
v_add_u32 v217, {LNS}, v217
v_add_u32 v216, s27, v217""".split("\n")

def pack_block():
    q = Prog("packblk")
    q("pack_blk:")
    stamp(q, "pk_in")
    q("v_add_u32 v6, 0x8000, v244")
    q("s_cmp_ge_u32 s2, 144")
    q("s_cbranch_scc1 pack_w2", take="both")
    q("v_add_u32 v7, s87, v1")
    q("ds_read_b128 v[8:11], v7")
    rd = [f"ds_read_b128 {a(4*k,4)}, {'v244' if k < 24 else 'v6'} offset:{4096*(k//2)+512*(k%2)-(0 if k < 24 else 0x8000)}" for k in range(36)]
    q.add(rd[:6])
    for k in range(36):
        q(f"{M16} v[12:15], {a(4*k,4)}, v[8:11], {'0' if k == 0 else 'v[12:15]'}")
        if k + 6 < 36: q(rd[k + 6])
    stamp(q, "pk_p1")
    q("v_add_f32 v12, v12, v13")
    q("v_add_f32 v14, v14, v15")
    q("v_add_f32 v12, v12, v14")
    xsum(q, [12], 13, [4, 5])
    for u in (3, 2, 1, 0): q(f"v_mul_f32 {v(12+u)}, {fl(-1/D)}, v12")
    frags(q, KS, lambda n: 256 + 8 * n, lambda n: 8, "v[12:15]",
          lambda n, o: (["s_add_u32 s94, s94, s95"] if n else []) + [f"buffer_store_dwordx4 {v(o,4)}, v1, {WSD}, s94 offen sc1"], [])
    q("s_branch pack_ret")
    q("pack_w2:")
    rd = [f"ds_read_b128 {a(4*k,4)}, v244 offset:{64*(k//2)+4608*(k%2)}" for k in range(18)]
    SE = [8, 12, 208, 212]
    q(f"v_add_u32 v7, {SELB}, v1")
    for k in range(4): q(f"ds_read_b128 {v(SE[k],4)}, v7 offset:{1024*k}")
    q.add(rd[:6])
    def st2(n, o):
        rem, b = n >> 1, n & 1
        dcs, tl = (0, n) if rem < 4 else ((b, 8) if rem == 4 else (1, n - 10))
        return [f"s_add_u32 s15, s94, {dcs*36*9216+tl*1024}", f"buffer_store_dwordx4 {v(o,4)}, v1, {WSD}, s15 offen sc1"]
    frags(q, 18, lambda n: 256 + 8 * (n >> 1), lambda n: SE[(2 if n >> 1 == 4 else 0) + (n & 1)], "0", st2, rd[6:])
    q("pack_ret:")
    stamp(q, "pk_out")
    for k in range(3):
        q(f"s_cmp_eq_u32 s85, {k}")
        q(f"s_cbranch_scc1 hook{k}")
    q("s_branch hook3")
    q("pack_bar0:")
    q("s_waitcnt vmcnt(8)")
    q("s_barrier")
    q("s_branch hook5")
    q("pack_bar:")
    q("s_barrier")
    q("s_branch hook4")
    return q

def mega():
    p = Prog("mega")
    FSA, FSO, FSD, FSR = OPT["fsa"], OPT["fso"], OPT["fsd"], OPT["fsr"]
    sp = Spins()
    nm = NAME
    p(f".globl {nm}_kernel\n.p2align 8\n.type {nm}_kernel,@function\n{nm}_kernel:")
    p("s_cmp_ge_u32 s2, 256")
    p(f"s_cbranch_scc1 {nm}_end")
    if DIAG:
        p("s_memrealtime s[96:97]")
        p("v_mov_b32 v223, 0")
        p("v_mov_b32 v221, 0")
    p("s_load_dwordx16 s[64:79], s[0:1], 0")
    p("s_load_dwordx4 s[80:83], s[0:1], 64")
    p("v_lshrrev_b32 v1, 6, v0")
    p("v_and_b32 v0, 63, v0")
    p("v_readfirstlane_b32 s3, v1")
    p("v_lshlrev_b32 v1, 4, v0")
    p("v_lshlrev_b32 v2, 3, v0")
    stamp(p, 0)
    p(f"""s_getpc_b64 s[20:21]
pc_here:
s_sub_u32 s20, s20, pc_here-{nm}_kernel
s_subb_u32 s21, s21, 0
s_lshr_b32 s22, s2, 3
s_lshl_b32 s22, s22, 2
s_add_u32 s22, s22, s3
s_mul_i32 s22, s22, 640
s_min_u32 s22, s22, code_end-{nm}_kernel-1024
v_add_u32 v3, s22, v1
global_load_dwordx4 v[248:251], v3, s[20:21]
v_and_b32 v4, 15, v0
v_lshrrev_b32 v5, 4, v0
v_and_b32 v6, 12, v4
v_and_b32 v7, 3, v4
v_lshl_add_u32 v6, v6, 1, v7
s_mov_b32 s6, {hex(TOTAL)}
s_mov_b32 s7, 0x00020000
s_mov_b32 s55, 0x00020000
s_mov_b32 s90, 256
s_mov_b32 s91, 0x00020000""")
    p(f"""v_and_b32 v8, 7, v0
v_lshrrev_b32 v9, 3, v0
v_mul_u32_u24 v13, 1152, v8
v_lshl_add_u32 v13, v9, 4, v13
v_lshlrev_b32 v218, 8, v9
v_lshl_add_u32 v218, v8, 4, v218
v_mov_b32 v237, v1
v_mov_b32 v238, v1
v_mov_b32 v239, v1
v_mov_b32 v240, v1
s_mov_b32 s59, 0x00020000
s_mov_b32 s58, {D*F*2}
s_mul_i32 s24, s2, 9216
s_mov_b32 s54, {S*D*2}
s_mov_b32 s56, s76
s_mov_b32 s57, s77
s_mov_b32 s52, s64
s_mov_b32 s53, s65
s_mov_b32 s4, s82
s_mov_b32 s5, s83
s_mov_b32 s88, s80
s_mov_b32 s89, s81
s_cmp_lg_u32 s3, 0""")
    p("s_cbranch_scc1 a_stage", take=False)
    for i in range(9): p(f"buffer_load_dwordx4 {v(20+4*i,4)}, v13, s[52:55], s24 offen offset:{128*i} nt")
    p("a_common:")
    p(f"v_min_u32 {v(SG)}, 1, v0")
    p(f"v_lshlrev_b32 {v(SG)}, 30, {v(SG)}")
    p("s_and_b32 s16, s2, 7")
    p("s_lshr_b32 s17, s2, 3")
    p("s_and_b32 s8, s16, 1")
    p("s_lshl_b32 s8, s8, 2")
    p("s_and_b32 s18, s17, 3")
    p("s_add_u32 s8, s8, s18")
    p("s_lshr_b32 s9, s16, 1")
    p("s_lshl_b32 s9, s9, 3")
    p("s_lshr_b32 s17, s17, 2")
    p("s_add_u32 s9, s9, s17")
    p("s_lshl_b32 s10, s8, 2")
    p("s_add_u32 s10, s10, s3")
    p("s_mov_b32 s13, 0")
    p(f"s_mov_b32 s14, {SPIN}")
    p("s_mul_i32 s11, s9, 73728")
    p(f"s_add_u32 s11, s11, {hex(WS['WQKV'])}")
    p(f"s_add_u32 s48, s4, {hex(ACT0)}")
    p("s_addc_u32 s49, s5, 0")
    p(f"s_mov_b32 s50, {hex(2*LSZ)}")
    p("s_mov_b32 s51, 0x00020000")
    p(f"""v_lshlrev_b32 v3, 3, v5
v_mov_b32 v11, 0x3f80
s_cmp_lt_u32 s3, 2
s_cselect_b64 vcc, -1, 0
s_cselect_b32 s16, 4, 16
s_and_b32 s17, s3, 1
s_mul_i32 s16, s16, s17
v_cndmask_b32 v7, v4, v6, vcc
v_add_u32 v7, s16, v7""")
    G.selmat(p, 16, 7)
    p(f"""s_lshl_b32 s16, s3, 10
s_add_u32 s16, s16, {SELB}
v_add_u32 v8, s16, v1
ds_write_b128 v8, v[16:19]
s_lshr_b32 s18, s3, 1
s_mov_b32 s84, 1
s_mov_b32 s12, {FP}
s_mul_i32 s81, s2, {FS}
s_lshl_b32 s15, s3, 2
s_add_u32 s81, s81, s15
s_add_u32 s81, s81, {FP}
s_lshr_b32 s85, s2, 3
s_add_u32 s85, s85, s3
s_and_b32 s85, s85, 3
s_mov_b32 s46, 2
s_cmp_ge_u32 s2, 216
s_cmov_b32 s85, 99
s_mov_b32 s86, 3
s_cmp_eq_u32 s85, 0
s_cselect_b32 s98, 3, 99
s_cmp_eq_u32 s85, 1
s_cselect_b32 s99, 3, 99
s_cmp_eq_u32 s85, 2
s_cselect_b32 s100, 3, 99
s_cmp_eq_u32 s85, 3
s_cselect_b32 s101, 2, 99
s_mul_i32 s92, s2, {FS}
s_add_u32 s92, s92, {FWO}
s_xor_b32 s15, s3, 1
s_lshl_b32 s15, s15, 6
s_add_u32 s15, s15, s2
s_cmp_ge_u32 s15, 36
s_cmov_b32 s92, {OOB}
s_mov_b32 s47, {FWO}
s_cmp_ge_u32 s2, 144""")
    p("s_cbranch_scc1 task_w2", take="both")
    p("""v_lshrrev_b32 v9, 3, v0
v_and_b32 v8, 7, v0
v_bfe_u32 v10, v0, 4, 1
v_xor_b32 v8, v8, v10
v_mul_u32_u24 v9, 9216, v9""")
    for k in range(4):
        p(f"v_xor_b32 v10, {2*k}, v8")
        p(f"v_lshl_add_u32 {v(237+k)}, v10, 4, v9")
        if k: p(f"v_add_u32 {v(237+k)}, {k*(8*9216-1024)}, {v(237+k)}")
    p(f"""s_and_b32 s19, s2, 1
s_cselect_b32 s56, s74, s72
s_cselect_b32 s57, s75, s73
s_and_b32 s20, s2, 0xfe
s_lshl_b32 s43, s20, 6
s_mul_i32 s21, s3, {32*9216}
s_add_u32 s43, s43, s21
s_mov_b32 s39, {128*9216}
s_add_u32 s20, s20, s18
s_mul_i32 s26, s20, 7282
s_lshr_b32 s26, s26, 16
s_mul_i32 s27, s26, 9
s_sub_u32 s27, s20, s27
s_lshl_b32 s26, s26, 1
s_sub_u32 s29, s27, 5
s_add_u32 s30, s26, 1
s_cmp_gt_u32 s27, 4
s_cselect_b32 s29, s29, s27
s_cselect_b32 s28, s30, s26
s_lshl_b32 s22, s29, 1
s_add_u32 s22, s22, s17
s_min_u32 s23, s29, 1
s_add_u32 s22, s22, s23
s_add_u32 s30, s26, s17
s_add_u32 s23, s17, 2
s_cmp_eq_u32 s27, 4
s_cmov_b32 s22, 2
s_cmov_b32 s28, s30
s_cselect_b32 s87, s23, s17
s_lshl_b32 s87, s87, 10
s_add_u32 s87, s87, {SELB}
s_mul_i32 s94, s22, {SL}
s_lshl_b32 s23, s22, 11
s_mov_b32 s95, 2048
s_cmp_lt_u32 s22, 3
s_cmov_b32 s94, s23
s_cmov_b32 s95, 6144
s_lshl_b32 s23, s19, 10
s_add_u32 s94, s94, s23
s_mul_i32 s23, s28, {CH13}
s_add_u32 s94, s94, s23
s_add_u32 s94, s94, {hex(WS['W13'])}
s_lshl_b32 s23, s18, 2
v_add_u32 v8, s23, v5
v_lshrrev_b32 v9, 1, v4
v_xor_b32 v8, v8, v9
v_lshlrev_b32 v8, 4, v8
v_lshl_add_u32 v244, v6, 7, v8""")
    p("s_branch task_set")
    p("task_w2:")
    p(f"""s_sub_u32 s20, s2, 144
s_mul_i32 s43, s20, 73728
s_lshl_b32 s21, s3, 12
s_add_u32 s43, s43, s21
s_mov_b32 s39, 16384
s_lshl_b32 s20, s20, 1
s_add_u32 s20, s20, s18
s_mul_i32 s24, s20, 1821
s_lshr_b32 s24, s24, 16
s_mul_i32 s25, s24, 36
s_sub_u32 s25, s20, s25
s_mul_i32 s26, s25, 7282
s_lshr_b32 s26, s26, 16
s_mul_i32 s27, s26, 9
s_sub_u32 s27, s25, s27
s_lshl_b32 s28, s26, 1
s_sub_u32 s29, s27, 5
s_add_u32 s30, s28, 1
s_cmp_gt_u32 s27, 4
s_cselect_b32 s29, s29, s27
s_cselect_b32 s28, s30, s28
s_min_u32 s30, s29, 1
s_lshl_b32 s30, s30, 2
s_lshl_b32 s29, s29, 3
s_add_u32 s28, s28, s29
s_add_u32 s28, s28, s30
s_add_u32 s26, s26, 8
s_cmp_eq_u32 s27, 4
s_cmov_b32 s28, s26
s_mul_i32 s24, s24, 144
s_add_u32 s28, s28, s24
s_mul_i32 s24, s17, 72
s_add_u32 s28, s28, s24
s_mul_i32 s94, s28, 9216
s_add_u32 s94, s94, {hex(WS['W2'])}
s_mul_i32 s23, s18, {SL}
s_mul_i32 s24, s17, 576
s_add_u32 s23, s23, s24
v_mul_u32_u24 v244, 1152, v6
v_lshl_add_u32 v244, v5, 4, v244
v_add_u32 v244, s23, v244""")
    p("task_set:")
    stamp(p, "a_set")
    p(f"""v_min_u32 v14, 7, v0
v_lshlrev_b32 v14, 5, v14
s_lshl_b32 s17, s10, 3
v_add_u32 v10, s17, v0
s_mul_i32 s17, s9, 18
s_add_u32 s17, s17, {(FW-FR)//FS - 8}
v_min_u32 v12, 25, v0
v_add_u32 v12, s17, v12
v_cmp_gt_u32 vcc, 8, v0
s_mov_b32 s45, {FR}
s_mov_b32 s44, {FW + 576*FS}
s_cmp_lg_u32 s3, 0
v_cndmask_b32 v10, v12, v10, vcc
v_mul_u32_u24 v245, {FS}, v10""")
    p("s_cbranch_scc1 b_wq0", take=False)
    X = 56
    p(f"""s_lshr_b32 s16, s2, 1
s_mul_i32 s16, s16, {XT}
s_and_b32 s17, s2, 1
s_lshl_b32 s17, s17, 7
s_add_u32 s16, s16, s17
s_add_u32 s17, s16, {hex(AC['XN'])}
s_add_u32 s16, s16, {hex(AC['XP'])}""")
    for u in range(36):
        p.add(unpack(X + 2 * u, 20 + u))
        if u == 0:
            p(f"v_pk_mul_f32 v[10:11], {v(X,2)}, {v(X,2)}")
        else:
            p(f"v_pk_add_f32 v[8:9], {'v[8:9]' if u > 1 else v(X,2)}, {v(X+2*u,2)}")
            p(f"v_pk_fma_f32 v[10:11], {v(X+2*u,2)}, {v(X+2*u,2)}, v[10:11]")
    stamp(p, "a_x")
    p("v_add_f32 v8, v8, v9")
    p("v_add_f32 v9, v10, v11")
    xsum(p, [8, 9], 10, [3, 4, 5])
    p(f"""v_mul_f32 v8, {fl(1/D)}, v8
v_mul_f32 v9, {fl(1/D)}, v9
v_fma_f32 v9, -v8, v8, v9
v_max_f32 v9, 0, v9
v_add_f32 v9, {fl(1e-5)}, v9
v_rsq_f32 v9, v9
v_mov_b32 v11, 0x3f80
v_mul_f32 v8, -v8, v9""")
    for i in range(9):
        for u in range(0, 8, 2): p(f"v_pk_fma_f32 {v(X+8*i+u,2)}, {v(X+8*i+u,2)}, v[8:9], v[8:9] op_sel:[0,1,0] op_sel_hi:[1,1,0]")
        for u in range(4): p(f"v_cvt_pk_bf16_f32 {v(X+8*i+u)}, {v(X+8*i+2*u)}, {v(X+8*i+2*u+1)}")
        p(f"buffer_store_dwordx4 {v(X+8*i,4)}, v218, {ACD}, s17 offen offset:{2048*(i%2)} sc1")
        p(f"buffer_store_dwordx4 {v(20+4*i,4)}, v218, {ACD}, s16 offen offset:{2048*(i%2)} sc1")
        if i % 2:
            p("s_add_u32 s16, s16, 4096")
            p("s_add_u32 s17, s17, 4096")
    stamp(p, "a_ln")
    for nm_ in ("a_q0", "a_q1", "a_q2"): stamp_items(nm_)
    p.add(sp.load(14, "0", 9, srd="s[88:91]"))
    p(f"s_mul_i32 s16, s2, {FSR}")
    p(f"s_add_u32 s16, s16, {FR}")
    p("s_waitcnt vmcnt(0)")
    stamp(p, "a_drain")
    p.add(flat(sp.check(14, "0", 1, 9, srd="s[88:91]", back=True)))
    p.add(signal("s16", 1, 8))
    stamp(p, "a_sig")
    p("b_poll:")
    def raw_site():
        L = [f"buffer_load_dwordx4 {v(237+k)}, s[56:59], s43 offen offset:{1024*k} nt lds" for k in range(4)]
        return [L, "s_add_u32 s43, s43, s39", "s_add_u32 m0, m0, 16384"]
    p("s_lshl_b32 m0, s3, 12")
    if OPT["abar"]: p("s_barrier")
    R0 = OPT["r0"]
    for i in range(R0): p.add(flat(raw_site()))
    stamp(p, "a_task")
    p.add(sp.load(245, "s45", 246))
    p.add(flat(sp.check(245, "s45", 1, 246, back=True)))
    stamp(p, "a_poll")
    def wq(g):
        return [f"s_add_u32 m0, s93, {24576*(g//2)+3072*(g%2)}"] + \
               [(f"buffer_load_dwordx4 v1, {WSD}, s20 offen offset:{1024*k} sc1 lds", f"wq{g//2}") for k in range(3)] + \
               [f"s_add_u32 s20, s20, {3072 if g % 2 == 0 else 24576-3072}"]
    p("s_mul_i32 s93, s3, 6144")
    p("s_add_u32 s20, s93, s11")
    p(f"s_add_u32 s93, s93, {QW}")
    for g in range(6): p.add(wq(g))
    p("s_branch qkv_go")

    p("layer:")
    p("v_and_b32 v3, 7, v0")
    p(f"v_mul_u32_u24 v3, {FSR}, v3")
    p(f"s_mul_i32 s16, s10, {8*FSR}")
    p(f"s_add_u32 s16, s16, {FR}")
    p.add(sp.load(3, "s16", 4))
    p("s_mov_b32 s84, 0")
    p(f"s_mov_b32 s12, {OOB}")
    p(f"s_mov_b32 s81, {OOB}")
    p(f"s_mov_b32 s92, {OOB}")
    p("s_mov_b32 s58, 0")
    p(f"s_mov_b32 s44, {OOB}")
    p(f"s_mov_b32 s47, {OOB}")
    for r_ in (86, 46, 98, 99, 100, 101): p(f"s_mov_b32 {s(r_)}, 99")
    p.add(flat(sp.check(3, "s16", 1, 4)))
    p("qkv_go:")
    stamp(p, 1)
    p(f"s_mul_i32 s24, s10, {4*XT}")
    p(f"s_add_u32 s24, s24, {hex(AC['XN'])}")
    for t in range(1, 4): p(f"s_add_u32 {s(24+t)}, {s(23+t)}, {XT}")
    xq = lambda ks, t: 256 + 16 * (ks % 9) + 4 * t
    def xlq(ks):
        L = [(f"buffer_load_dwordx4 {R(xq(ks,t),4)}, v1, {ACD}, {s(24+t)} offen offset:{1024*(ks%4)} sc1", f"x{ks}") for t in range(4)]
        if ks % 4 == 3: L += [f"s_add_u32 {s(24+t)}, {s(24+t)}, 4096" for t in range(4)]
        return L
    LA = OPT["la_q"]
    for ks in range(LA): p.add(xlq(ks))
    p("v_and_b32 v247, 31, v0")
    p(f"v_mul_u32_u24 v247, {FS}, v247")
    p(f"v_add_u32 v14, {QW}, v1")
    p(f"v_add_u32 v15, {QW+0x8000}, v1")
    KK = lambda b: 256 + 152 + 10 * b
    VV = lambda b: 256 + 192 + 16 * b
    setup = f"""v_and_b32 v4, 15, v0
v_lshrrev_b32 v3, 4, v0
s_mul_i32 s22, s3, {REC}
s_add_u32 s22, s22, {RB}
v_lshrrev_b32 v6, 3, v4
v_and_b32 v5, 7, v4
v_lshl_add_u32 v11, v6, 4, v5
v_and_b32 v5, 1, v3
v_lshl_add_u32 v11, v5, 5, v11
v_cmp_gt_u32 vcc, 2, v3
v_mov_b32 v5, {KVB}
s_add_u32 s23, s22, 512
v_cndmask_b32 v6, 0, v5, vcc
v_cndmask_b32 v7, v5, 0, vcc
v_lshl_add_u32 v6, v11, 4, v6
v_lshl_add_u32 v7, v11, 3, v7
v_add_u32 v6, s23, v6
v_add_u32 v7, s22, v7
s_add_u32 s23, s22, 2560
v_mul_u32_u24 v8, 288, v3
v_lshrrev_b32 v9, 1, v3
v_add_u32 v9, v9, v4
v_lshl_add_u32 v8, v9, 4, v8
v_add_u32 v8, s23, v8
v_and_b32 v9, 3, v0
v_mul_u32_u24 v9, {VS}, v9
v_add_u32 v218, s23, v9
v_lshrrev_b32 v9, 2, v4
v_mul_u32_u24 v9, 288, v9
v_lshrrev_b32 v10, 3, v4
v_add_u32 v10, v10, v3
v_lshl_add_u32 v9, v10, 4, v9
v_and_b32 v10, 3, v4
v_lshl_add_u32 v9, v10, 1, v9
s_add_u32 s23, s23, 256
v_add_u32 v9, s23, v9
v_mov_b32 v5, {fl(LOG2E / math.sqrt(DH))}
v_cndmask_b32 v10, 1.0, v5, vcc
v_cndmask_b32 v11, v5, 1.0, vcc
v_cndmask_b32 v12, 0, 1.0, vcc
v_add_u32 v13, s22, v1
v_and_b32 v4, 31, v0
v_lshrrev_b32 v5, 5, v0
v_cmp_eq_u32 vcc, 20, v4
s_lshr_b32 s16, s3, 1
s_lshl_b32 s18, s9, 1
s_add_u32 s16, s16, s18
v_cndmask_b32 v3, v4, 17, vcc
v_lshlrev_b32 v3, 4, v3
v_mul_u32_u24 v208, 288, v5
v_add_u32 v3, v3, v208
v_and_b32 v208, 27, v4
v_cmp_eq_u32 vcc, 17, v208
v_mov_b32 v209, 576
s_lshl_b32 s16, s16, 3
s_add_u32 s16, s16, s8
v_cndmask_b32 v3, v3, v209, vcc
v_add_u32 v3, 2560, v3
v_lshlrev_b32 v208, v4, 1
v_and_b32 v208, 0x0033ffff, v208
v_cmp_eq_u32 vcc, 0, v208
s_mul_i32 s23, s16, {BLK}
s_and_b32 s16, s3, 1
s_mul_i32 s19, s16, {KVB}
s_add_u32 s23, s23, s19
s_add_u32 s23, s23, {hex(AC['KV'])}
s_add_u32 s16, s16, s18
s_mul_i32 s16, s16, {8*BLK}
s_add_u32 s16, s16, {hex(AC['KV'])}
@s_add_u32 s52, s48, s16|s_addc_u32 s53, s49, 0
s_mov_b32 s54, {8*BLK}
s_mov_b32 s55, 0x00020000
s_add_u32 s21, s23, 4096
s_xor_b32 s16, s3, 1
s_mul_i32 s16, s16, {REC}
s_add_u32 s16, s16, {RB}
s_and_b32 s17, s3, 1
s_mul_i32 s19, s17, {2*REC}
s_add_u32 s19, s19, {RB}
v_add_u32 v210, s22, v2
v_add_u32 v211, s16, v1
v_add_u32 v212, s16, v2
v_add_u32 v213, s19, v1
v_add_u32 v214, s19, v2
v_add_u32 v215, s19, v3
v_add_u32 v216, {RB}, v1
v_add_u32 v217, {RB}, v2
v_mov_b32 v209, 0x100000
v_cndmask_b32 v3, v3, v209, vcc
v_add_u32 v172, {KVB}, v1
v_add_u32 v173, {KVB}, v2
v_add_u32 v174, {KVB}, v3
s_mov_b32 s30, 0x0033ffff
s_mov_b32 s31, 0x0033ffff
v_mov_b32 v196, 0x3f803f80
v_mov_b32 v197, 0x3f803f80
v_mov_b32 v198, 0x3f803f80
v_mov_b32 v199, 0x3f803f80""".split("\n")
    setup = [x[1:].split("|") if x[0] == "@" else x for x in setup]
    setup += f"""s_lshl_b32 s16, s9, 5
s_add_u32 s40, s16, s10
s_mul_i32 s40, s40, {FS}
s_add_u32 s40, s40, {FQ}
s_lshl_b32 s19, s17, 1
s_add_u32 s41, s16, s19
s_mul_i32 s41, s41, {FS}
s_add_u32 s41, s41, {FQ}
v_and_b32 v175, 14, v0
v_and_b32 v208, 1, v0
v_lshl_add_u32 v175, v175, 1, v208
v_mul_u32_u24 v175, {FS}, v175
s_lshl_b32 s34, s3, 12
s_and_b32 s36, s9, 7
s_mul_i32 s37, s9, {CH13}
s_add_u32 s37, s37, {hex(WS['W13'])}
s_add_u32 s38, s37, s34
s_mul_i32 s35, s36, 92160
s_add_u32 s35, s35, s34
s_add_u32 s35, s35, {hex(WS['WO'] + 5*16384)}
s_add_u32 s38, s38, 32768
s_add_u32 s32, s34, 32768
s_mov_b32 s82, {OOB}
s_mov_b32 s83, 0
s_mov_b32 s42, {OOB}
v_min_u32 v245, 17, v0
s_bfe_u32 s16, s9, 0x10002
v_lshl_add_u32 v245, v245, 1, s16
v_mul_u32_u24 v245, {FS}, v245
s_lshr_b32 s16, s9, 1
s_mul_i32 s16, s16, 9
s_and_b32 s19, s9, 1
s_lshl_b32 s19, s19, 2
s_add_u32 s16, s16, s19
s_and_b32 s16, s16, 0xfe
v_lshrrev_b32 v241, 2, v0
v_add_u32 v241, s16, v241
v_and_b32 v208, 3, v0
v_lshlrev_b32 v208, 2, v208
v_lshl_add_u32 v241, v241, {FS.bit_length()-1}, v208
s_lshr_b32 s16, s9, 3
s_mul_i32 s16, s16, 18
s_add_u32 s16, s16, 132
s_mul_i32 s16, s16, {FS}
s_and_b32 s19, s9, 4
s_add_u32 s16, s16, s19
v_min_u32 v208, 59, v0
v_lshrrev_b32 v209, 1, v208
v_and_b32 v208, 1, v208
v_lshlrev_b32 v208, 3, v208
v_lshl_add_u32 v208, v209, {FS.bit_length()-1}, v208
v_add_u32 v208, s16, v208
v_cmp_gt_u32 vcc, 24, v0
v_mov_b32 v242, 1
v_cndmask_b32 v241, v208, v241, vcc
s_mov_b32 s33, 3
s_mov_b32 s29, 0x07060100
s_mul_i32 s28, s8, {BLK}
s_add_u32 s16, s3, 1
s_and_b32 s16, s16, 3
s_mul_i32 s16, s16, 5120
s_xor_b32 s19, s3, 1
s_add_u32 s19, s19, 1
s_and_b32 s19, s19, 3
s_mul_i32 s19, s19, 5120
s_add_u32 s16, s16, {SCR}
s_add_u32 s19, s19, {SCR}
v_add_u32 v224, s16, v1
v_add_u32 v225, s16, v2
v_add_u32 v226, s19, v1
v_add_u32 v227, s19, v2
v_and_b32 v208, 7, v4
v_lshrrev_b32 v209, 4, v4
v_lshl_add_u32 v208, v209, 3, v208
v_bfe_u32 v209, v4, 3, 1
v_lshlrev_b32 v228, 4, v208
v_lshl_add_u32 v228, v5, 8, v228
v_lshl_add_u32 v228, v209, 14, v228
v_lshl_add_u32 v229, v209, 4, v208
v_lshl_add_u32 v229, v5, 5, v229
v_lshlrev_b32 v229, 2, v229
s_lshl_b32 s66, s10, 16
s_lshl_b32 s16, s9, 9
s_add_u32 s66, s66, s16
s_add_u32 s66, s66, {hex(AC['OP'])}
s_add_u32 s67, s66, 0x8000
s_lshl_b32 s68, s9, 13
s_lshl_b32 s16, s10, 8
s_add_u32 s68, s68, s16
s_add_u32 s68, s68, {hex(AC['OL'])}
s_lshl_b32 s69, s10, 5
s_add_u32 s69, s69, s9
s_mul_i32 s69, s69, {FSA}
s_add_u32 s69, s69, {FA}
s_lshr_b32 s64, s9, 3
s_lshl_b32 s16, s8, 2
s_add_u32 s64, s64, s16
s_lshl_b32 s65, s64, 2
s_add_u32 s65, s65, s3
s_lshr_b32 s16, s36, 2
s_and_b32 s19, s36, 3
s_mul_i32 s16, s16, 9
s_mul_i32 s72, s19, 5
s_lshr_b32 s72, s72, 1
s_add_u32 s72, s72, s16
s_lshl_b32 s72, s72, 10
s_add_u32 s73, s16, 4
s_lshl_b32 s73, s73, 10
s_and_b32 s16, s19, 2
s_lshl_b32 s16, s16, 8
s_add_u32 s73, s73, s16
s_mul_i32 s16, s65, {XT}
s_add_u32 s72, s72, s16
s_add_u32 s73, s73, s16
s_add_u32 s70, s72, {hex(AC['XP'])}
s_add_u32 s71, s73, {hex(AC['XP'])}
s_add_u32 s72, s72, {hex(AC['X2'])}
s_add_u32 s73, s73, {hex(AC['X2'])}
s_add_u32 s77, s19, 1
s_and_b32 s77, s77, 2
v_and_b32 v208, 15, v0
v_lshlrev_b32 v236, 3, v208
v_lshlrev_b32 v230, 4, v208
v_lshl_add_u32 v230, v5, 8, v230
v_bfe_u32 v209, v0, 4, 1
v_lshl_add_u32 v231, v209, 3, v230
v_mul_u32_u24 v232, {FSA}, v4
v_lshrrev_b32 v209, 4, v0
v_lshlrev_b32 v233, 15, v209
v_lshl_add_u32 v233, v208, 2, v233
v_add_u32 v234, {WOL}, v1
v_add_u32 v235, {WOL+0x8000}, v1
s_mul_i32 s74, s64, {32*FSA}
s_add_u32 s74, s74, {FA}
s_lshl_b32 s75, s65, 14
s_add_u32 s75, s75, {hex(AC['OP'])}
s_lshl_b32 s76, s65, 6
s_add_u32 s76, s76, {hex(AC['OL'])}
s_lshl_b32 s78, s36, 14
s_lshl_b32 s16, s65, 7
s_add_u32 s78, s78, s16
s_add_u32 s78, s78, {hex(AC['ST'])}
s_lshl_b32 s79, s64, 3
s_add_u32 s79, s79, s36
s_mul_i32 s79, s79, {FSO}
s_add_u32 s79, s79, {FO}
s_mul_i32 s80, s10, {8*FSO}
s_add_u32 s80, s80, {FO}""".split("\n")
    setup += [f"v_accvgpr_write_b32 {R(VV(0)+u)}, 0" for u in range(32)]
    p("WAITVM wq2")
    p("s_barrier")
    stamp(p, 2)
    W, ACC = 16, 48
    def wrq(ks):
        b, o = (14, 4096 * ks) if ks < 12 else (15, 4096 * ks - 0x8000)
        return [f"ds_read_b128 {v(W+16*(ks%2)+4*t,4)}, {v(b)} offset:{o+1024*t}" for t in range(4)]
    p.add(wrq(0))
    p("s_waitcnt lgkmcnt(0)")
    main, st = [], []
    for ks in range(KS):
        for t in range(4):
            for tt in range(4):
                d = v(ACC + 16 * tt + 4 * t, 4)
                w, x = v(W + 16 * (ks % 2) + 4 * t, 4), R(xq(ks, tt), 4)
                A, B = (x, w) if t == 2 else (w, x)
                main.append(f"{M16} {d}, {A}, {B}, {'0' if ks == 0 else d}")
        if ks + 1 < KS:
            st.append((["s_waitcnt lgkmcnt(0)"], 16 * ks + 15, 16 * ks + 16))
            st.append(([f"WAITVM x{ks+1}"], 16 * ks + 14, 16 * ks + 15))
            st.append((wrq(ks + 1), 16 * ks + 1, 16 * ks + 9))
        if ks + LA < KS: st.append((xlq(ks + LA), 16 * ks, 16 * ks + 14))
    st.append((["s_barrier"], 16 * 13, 16 * 13 + 4))
    st.append((["ds_write_b128 v218, v[196:199] offset:576"], 16 * 17, 16 * 17 + 4))
    st.append((sp.load(247, "s44", 246), 16 * 12, 16 * 12 + 4))
    st.append((setup, 2, 16 * 17 - 2))
    st.append((sp.check(247, "s44", "s84", 246, back=True) + [f"s_add_u32 m0, s34, {16384*R0}"], 16 * 17, 16 * 17 + 8))
    p.add(pack(main, st, report="qkv"))
    stamp(p, 3)
    p(f"buffer_store_dword v242, {v(SG)}, {ACD}, s92 offen sc1")
    T = 112
    for tt in range(4):
        A0 = ACC + 16 * tt
        kt2, ab = tt >> 1, tt & 1
        for u in range(8): p(f"v_mul_f32 {v(A0+u)}, {v(A0+u)}, v10")
        for u in range(4): p(f"v_cvt_pk_bf16_f32 {v(T+4*tt+u)}, {v(A0+2*u)}, {v(A0+2*u+1)}")
        p(f"ds_write_b128 v6, {v(T+4*tt,4)} offset:{kt2*1024+ab*128}")
        for u in range(2): p(f"v_cvt_pk_bf16_f32 {v(T+16+4*kt2+2*ab+u)}, {v(A0+8+2*u)}, {v(A0+9+2*u)}")
        if ab: p(f"ds_write_b128 v8, {v(T+16+4*kt2,4)} offset:{kt2*2*VS}")
        p(f"v_mul_f32 {v(A0+12)}, {v(A0+12)}, v11")
        p(f"v_cvt_pk_bf16_f32 {v(A0+13)}, {v(A0+13)}, {v(A0+13)}")
        p(f"v_cvt_pk_bf16_f32 {v(A0+12)}, {v(A0+12)}, v12")
        p(f"ds_write_b32 v7, {v(A0+12)} offset:{ab*64+kt2*4}")
    p("s_mov_b64 exec, 0xffffffff")
    for tt in range(4): p(f"ds_write_b16 v9, {v(ACC+16*tt+13)} offset:{(tt>>1)*2*VS+(tt&1)*8}")
    p("s_mov_b64 exec, -1")
    for k in range(5): p(f"ds_read_b128 {v(176+4*k,4)}, v13 offset:{1024*k}")
    p("s_waitcnt lgkmcnt(5)")
    p("s_barrier")

    O, SS, P, Q1, Q2 = 16, 80, 112, 128, 144
    p(f"ds_read_b64 v[160:161], v210 offset:{KVB}")
    p(f"ds_read_b64 v[162:163], v212 offset:{KVB}")
    p("ds_read_b64 v[164:165], v217")
    p("ds_read_b128 v[168:171], v216 offset:512")
    for u in range(2):
        for k in range(2): p(f"ds_read_b128 {v(Q1+8*u+4*k,4)}, {v(211 if u else 13)} offset:{KVB+512+1024*k}")
    for k in range(5):
        if k == 4: p("s_mov_b32 exec_hi, 0xffffff")
        p(f"buffer_store_dwordx4 {v(176+4*k,4)}, v1, {ACD}, {s(23 if k < 4 else 21)} offen offset:{1024*(k%4)} sc1", tag="kv")
    p("s_mov_b64 exec, -1")
    for i in range(4):
        p(f"v_mov_b32 {v(Q2+4*i)}, {v(160+i)}")
        p(f"v_mov_b32 {v(Q2+4*i+1)}, 0")
        p(f"v_mov_b32 {v(Q2+4*i+2)}, 0")
    for b in range(2):
        p(f"ds_read_b64 {R(KK(b)+8,2)}, v214 offset:{REC*b}")
        for j in range(2): p(f"ds_read_b128 {R(KK(b)+4*j,4)}, v213 offset:{REC*b+512+1024*j}")
    for i in range(4):
        p(f"{M32} {v(O+16*i,16)}, v[168:171], {v(Q1+4*i,4)}, 0")
        p(f"{M32K8} {v(O+16*i,16)}, v[164:165], {v(Q2+4*i,2)}, {v(O+16*i,16)}")
    p("s_mov_b64 exec, s[30:31]")
    for b in range(2):
        for j in range(4): p(f"ds_read_b128 {R(VV(b)+4*j,4)}, v215 offset:{REC*b+VS*j}")
    p("s_mov_b64 exec, -1")
    p("v_cmp_gt_u32 vcc, 32, v0")
    for i in range(4):
        t = O + 16 * i
        p(f"v_max3_f32 {v(t)}, {v(t)}, {v(t+1)}, {v(t+2)}")
        for u in range(3, 15, 2): p(f"v_max3_f32 {v(t)}, {v(t)}, {v(t+u)}, {v(t+u+1)}")
        p(f"v_max_f32 {v(t)}, {v(t)}, {v(t+15)}")
        p(f"v_cndmask_b32 {v(t)}, 0, -{v(t)}, vcc")
        p(f"v_perm_b32 {v(Q2+4*i)}, {v(t)}, {v(160+i)}, s29")
        p(f"v_perm_b32 {v(Q2+4*i+3)}, {v(t)}, {v(160+i)}, s29")
        if i == 0:
            p(f"{M32} {v(SS,16)}, {R(KK(0),4)}, {v(Q1,4)}, 0")
        if i == 1:
            p(f"{M32K8} {v(SS,16)}, {R(KK(0)+8,2)}, {v(Q2,2)}, {v(SS,16)}")
    p("s_waitcnt lgkmcnt(0)")
    p("s_barrier")
    stamp(p, 4)
    KVD = s(52, 4)
    def unit_loads(b):
        tg = f"u{b}"
        o16, o8, ov = (172, 173, 174) if b & 1 else (1, 2, 3)
        L = [] if b & 1 else [f"s_add_u32 s28, s28, {BLK}", f"s_and_b32 s28, s28, {8*BLK-1}"]
        L += [(f"buffer_load_dwordx2 {R(KK(b)+8,2)}, {v(o8)}, {KVD}, s28 offen sc1", tg)]
        L += [(f"buffer_load_dwordx4 {R(KK(b)+4*j,4)}, {v(o16)}, {KVD}, s28 offen offset:{512+1024*j} sc1", tg) for j in range(2)]
        L += [(f"buffer_load_dwordx4 {R(VV(b)+4*j,4)}, {v(ov)}, {KVD}, s28 offen offset:{VS*j} sc1", tg) for j in range(4)]
        return L
    def qk(n):
        b, kt2, i = (n >> 3) & 3, (n >> 2) & 1, n & 3
        d = v(SS + 16 * (n & 1), 16)
        return [f"{M32} {d}, {R(KK(b)+4*kt2,4)}, {v(Q1+4*i,4)}, 0",
                f"{M32K8} {d}, {R(KK(b)+8,2)}, {v(Q2+4*i+2*kt2,2)}, {d}"]
    def pv(n, init=False):
        b, kt2, i = (n >> 3) & 3, (n >> 2) & 1, n & 3
        d = v(O + 16 * i, 16)
        return [f"{M32} {d}, {R(VV(b)+8*kt2+4*t,4)}, {v(P+8*(n&1)+4*t,4)}, {'0' if init and t == 0 else d}" for t in range(2)]
    def slot(n, peeled=False, extra=(), pre=()):
        sb, pb = SS + 16 * (n & 1), P + 8 * (n & 1)
        mf = qk(n + 1) + ([] if peeled and n == 0 else pv(n - 1, peeled and n <= 4))
        E = [f"v_exp_f32 {v(sb+u)}, {v(sb+u)}" for u in range(16)]
        C = [f"v_cvt_pk_bf16_f32 {v(pb+u)}, {v(sb+2*u)}, {v(sb+2*u+1)}" for u in range(8)]
        out = []
        extra = list(extra)
        per = -(-len(extra) // 3)
        parts = [extra[:per], [], extra[per:2 * per], extra[2 * per:]]
        for g in range(4):
            if g < len(mf): out.append(mf[g])
            out += flat(parts[g]) + E[4 * g:4 * g + 3]
            if g: out.append(C[2 * g - 1])
            out += [E[4 * g + 3], C[2 * g]]
        out.append(C[7])
        return out
    ex = {n: [] for n in range(16)}
    ex[OPT["sig_slot"]] += ["WAITVM kv"] + signal("s40", 1, 7)
    ex[OPT["poll_slot"]] += sp.load(175, "s41", 8)
    c0 = OPT["chk_slot"]
    ex[c0 - 1] += unit_loads(2)[:2] + sp.check(175, "s41", 1, 8)[:1]
    ex[c0] += [sp.last, unit_loads(2)[2:], unit_loads(3)]
    ex[c0 + 1] += unit_loads(0)[:2] + [unit_loads(0)[2:]]
    ex[14] += [[], [], "WAITVM u2"]
    ex[c0 - 2] += stamp_items("att_a")
    ex[c0 + 2] += stamp_items("att_b")
    for n in range(16): p.add(slot(n, True, ex[n]))
    stamp(p, "att_c")
    def site(tag):
        L = [(f"buffer_load_dwordx4 v1, {WSD}, s35 offen offset:{1024*k} sc1 lds", tag) for k in range(4)]
        return [L, "s_sub_u32 s35, s35, 16384", "s_sub_u32 m0, m0, 16384"]
    def common(n):
        L = unit_loads(((n >> 3) + 3) & 3)
        if n & 7 == 1: return L[:-7] + [L[-7:]]
        if n & 7 == 6: return [[], [], f"WAITVM u{((n+2)>>3)&3}"]
        return []
    for nm_ in ("pk_in", "pk_p1", "pk_out"): stamp_items(nm_)
    hook = lambda k, cmp: [[], cmp, ["s_cbranch_scc1 pack_blk", f"hook{k}:"]]
    rs = {0: (16, 19, 23, 26, 29), 1: (16, 20, 24, 28)}.get(R0, (18, 23, 28)[:5 - R0])
    for n in range(16, 32):
        e = common(n)
        if n == 17: e = [e[0] + sp.load(245, "s47", 246)]
        if n == 27: e = sp.check(245, "s47", "s84", 246, back=True)
        if n in rs: e = raw_site()
        if n == 31: e = [f"s_add_u32 m0, s34, {WOL+5*16384}"]
        p.add(slot(n, False, e))
    chk = sp.check(241, "s42", "s83", 243, back=True)
    p("att_l0:")
    for n in range(32):
        e = common(n)
        if n == 1: e = [e[0] + sp.load(241, "s42", 243)]
        if n == 2: e = hook(3, "s_cmp_eq_u32 s33, s101")
        if n == 7: e = [[], "s_cmp_eq_u32 s33, s86", ["s_cbranch_scc1 pack_bar0", "hook5:"]]
        if n == 10: e = hook(0, "s_cmp_eq_u32 s33, s98")
        if n == 13: e = chk
        if n == 16: e = [[], "s_cmp_eq_u32 s33, s46", ["s_cbranch_scc1 pack_bar", "hook4:"]]
        if n == 17: e = ["s_waitcnt vmcnt(7)", e[0] + [f"buffer_store_dword v242, {v(SG)}, {ACD}, s82 offen sc1"], f"s_mov_b32 s82, {OOB}"]
        if n == 18: e = hook(1, "s_cmp_eq_u32 s33, s99")
        if n in (19, 21, 23): e = site("pf")
        if n == 8: e = ["s_cmp_eq_u32 s33, 1", "s_cmov_b32 s54, 0"]
        if n == 26: e = hook(2, "s_cmp_eq_u32 s33, s100")
        if n == 27: e = ["s_cmp_eq_u32 s33, 3", "s_cmov_b32 s82, s81"]
        if n == 28: e = ["s_cmp_eq_u32 s33, 2", "s_cmov_b32 s35, s38", "s_cmov_b32 m0, s32"]
        if n == 29: e = ["s_cmov_b32 s83, s84", "s_cmov_b32 s42, s12"]
        if n == 31: e = ["s_sub_u32 s33, s33, 1", "s_cmp_lg_u32 s33, 0"]
        p.add(slot(n + 32, False, e))
    p("s_cbranch_scc1 att_l0", take=[True, True, False])
    p.add(pv(127))
    stamp(p, 5)
    RS = 160
    for k in range(2): p(f"buffer_load_dwordx4 {v(RS+4*k,4)}, v1, {ACD}, s70 offen offset:{1024*k} sc1")
    p(f"buffer_load_dwordx2 {v(RS+8,2)}, v231, {ACD}, s71 offen sc1")
    for k in range(2):
        o = O + 32 + 16 * k
        p(f"ds_write_b128 v224, {v(o,4)} offset:{2560*k}")
        p(f"ds_write_b128 v224, {v(o+4,4)} offset:{2560*k+1024}")
        p(f"ds_write_b64 v225, {v(o+8,2)} offset:{2560*k+2048}")
    p("s_waitcnt lgkmcnt(0)")
    p("s_barrier")
    T = 176
    for k in range(2):
        t = T + 16 * k
        p(f"ds_read_b64 {v(t+8,2)}, v227 offset:{2560*k+2048}")
        p(f"ds_read_b128 {v(t,4)}, v226 offset:{2560*k}")
        p(f"ds_read_b128 {v(t+4,4)}, v226 offset:{2560*k+1024}")
    for k in range(2):
        o, t = O + 16 * k, T + 16 * k
        p(f"v_add_f32 {v(o+9)}, {v(o+9)}, {v(t+9)}")
        p(f"v_rcp_f32 {v(o+10)}, {v(o+9)}")
        for u in (8, 0, 1, 2, 3, 4, 5, 6, 7): p(f"v_add_f32 {v(o+u)}, {v(o+u)}, {v(t+u)}")
        for u in range(9): p(f"v_mul_f32 {v(o+u)}, {v(o+u)}, {v(o+10)}")
        for u in range(4): p(f"v_cvt_pk_bf16_f32 {v(t+u)}, {v(o+2*u)}, {v(o+2*u+1)}")
        p(f"buffer_store_dwordx4 {v(t,4)}, v228, {ACD}, {s(66+k)} offen sc1")
    p(f"v_permlane32_swap_b32 {v(O+8)}, {v(O+24)}")
    p(f"v_cvt_pk_bf16_f32 v14, {v(O+8)}, {v(O+24)}")
    p(f"buffer_store_dword v14, v229, {ACD}, s68 offen sc1")
    stamp(p, 6)

    B, W, ACC = 16, 96, 136
    def wro(ks):
        b, o = (234, 5120 * ks) if ks < 10 else (235, 5120 * ks - 0x8000)
        return [f"ds_read_b128 {v(W+20*(ks%2)+4*t,4)}, {v(b)} offset:{o+1024*t}" for t in range(5)]
    p.add(wro(0))
    p("s_waitcnt vmcnt(0)")
    p.add(signal("s69", 1, 8))
    stamp(p, 7)
    for u in range(0, 20, 2): p.add(unpack(T + u, RS + u // 2))
    if OPT["one_a"]:
        p("s_cmp_lg_u32 s3, 0")
        p("s_cbranch_scc1 opoll_skip", take="both")
    p.add(sp.load(232, "s74", 9))
    p.add(flat(sp.check(232, "s74", 1, 9)))
    if OPT["one_a"]:
        p("opoll_skip:")
        p("s_barrier")
    stamp(p, 8)
    for ks in range(16):
        p(f"buffer_load_dwordx4 {v(B+4*ks,4)}, v1, {ACD}, s75 offen offset:{1024*(ks%4)} sc1")
        if ks % 4 == 3: p("s_add_u32 s75, s75, 4096")
    for k in range(8):
        p(f"buffer_load_dword {v(B+64+k)}, v233, {ACD}, s76 offen sc1")
        if k < 7: p(f"s_add_u32 s76, s76, {8192*(13 if k == 3 else 1)}")
    main, st = [], []
    for ks in range(KS):
        main += [f"{M16} {v(ACC+4*t,4)}, {v(W+20*(ks%2)+4*t,4)}, {v(B+4*ks,4)}, {v((T if ks == 0 else ACC)+4*t,4)}" for t in range(5)]
        if ks + 1 < KS: st.append((wro(ks + 1), 5 * ks, 5 * ks + 5))
    p.add(pack(main, st))
    stamp(p, 9)
    p("v_mov_b32 v8, 0")
    p("v_mov_b32 v9, 0")
    def stat(u0, n):
        for u in range(u0, u0 + n):
            p(f"v_add_f32 v8, v8, {v(ACC+u)}")
            p(f"v_fmac_f32 v9, {v(ACC+u)}, {v(ACC+u)}")
    for k in range(2):
        for u in range(4): p(f"v_cvt_pk_bf16_f32 {v(200+4*k+u)}, {v(ACC+8*k+2*u)}, {v(ACC+8*k+2*u+1)}")
        p(f"buffer_store_dwordx4 {v(200+4*k,4)}, v1, {ACD}, s72 offen offset:{1024*k} sc1")
    p("s_cmp_eq_u32 s77, 0")
    p("s_cbranch_scc1 oproj_nohalf", take="both")
    for u in range(4): p(f"v_cvt_pk_bf16_f32 {v(208+u)}, {v(ACC+16+2*(u&1))}, {v(ACC+17+2*(u&1))}")
    stat(16, 1)
    for u in range(2): p(f"v_permlane16_swap_b32 {v(208+u)}, {v(210+u)}")
    p("s_mov_b32 exec_lo, 0xffff")
    p("s_mov_b32 exec_hi, 0xffff")
    p(f"buffer_store_dwordx4 v[208:211], v230, {ACD}, s73 offen sc1")
    p("s_mov_b64 exec, -1")
    stat(17, 3)
    p("oproj_nohalf:")
    stat(0, 16)
    xsum(p, [8, 9], 10, [4, 5])
    p("s_mov_b64 exec, 0xffff")
    p(f"buffer_store_dwordx2 v[8:9], v236, {ACD}, s78 offen sc1")
    p("s_mov_b64 exec, -1")

    W, ACC, C1, IR2, T, HO = 16, 48, 176, 180, 184, 200
    p(f"""s_mul_i32 s18, s3, 9216
s_add_u32 s20, s37, s18
s_add_u32 s20, s20, {SL}
s_mul_i32 s24, s10, {4*XT}
s_add_u32 s24, s24, {hex(AC['X2'])}
s_add_u32 s25, s24, {XT}
s_add_u32 s26, s25, {XT}
s_add_u32 s27, s26, {XT}
s_lshl_b32 s22, s10, 9
s_add_u32 s22, s22, {hex(AC['ST'])}
v_and_b32 v7, 7, v0
v_mul_u32_u24 v6, {FSO}, v7
v_mul_u32_u24 v7, {FS}, v7
v_add_u32 v3, 49152, v1
v_add_u32 v4, 98304, v1
v_and_b32 v5, 15, v0
v_lshlrev_b32 v5, 2, v5""")
    stamp(p, 10)
    p("s_waitcnt vmcnt(0)")
    p("s_barrier")
    p("s_cmp_lg_u32 s3, 0")
    p("s_cbranch_scc1 up_nosig", take="both")
    p.add(signal("s79", 1, 8))
    p("up_nosig:")
    stamp(p, 11)
    def dma(i):
        L = {9: ["s_add_u32 s20, s40, s18"], 18: ["s_add_u32 s20, s11, s18"]}.get(i, [])
        for h in range(3):
            L.append(f"s_add_u32 m0, s18, {SL*(i%4)+3072*h}")
            L += [(f"buffer_load_dwordx4 v1, {WSD}, s20 offen offset:{1024*k} sc1 lds", f"w{i}") for k in range(3)]
            L.append(f"s_add_u32 s20, s20, {3072 if h < 2 else SL-6144}")
        return L
    def xl(kg):
        L = []
        for tt in range(4):
            L += [(f"buffer_load_dwordx4 {R(xreg(4*(3*kg+k)+tt),4)}, v1, {ACD}, {s(24+tt)} offen offset:{1024*k} sc1", f"x{kg}_{tt}") for k in range(3)]
            if kg < 5: L.append(f"s_add_u32 {s(24+tt)}, {s(24+tt)}, 3072")
        return L
    def rd(off, dst):
        b, o = (1, off) if off < 49152 else ((3, off - 49152) if off < 98304 else (4, off - 98304))
        return f"ds_read_b128 {R(dst,4)}, {v(b)} offset:{o}"
    AB = lambda gi: ACC + 32 * (gi % 4)
    ug = [(t >> 1, t & 1, kg, kg // 2, 6144 * 3 * kg + 1024 * t, 6144) for kg in range(6) for t in range(6)]
    ug += [(gi, m, kg, gi, SL * (gi % 4) + 6144 * kg + 1024 * m, 2048) for gi in range(3, 9) for kg in range(6) for m in range(2)]
    urd = lambda g: [rd(ug[g][4] + ug[g][5] * k, W + 12 * (g % 2) + 4 * k) for k in range(3)]
    dg = [(sg, t) for sg in range(7) for t in range(9)] + [(sg, t) for t in range(9) for sg in (7, 8)]
    DW = lambda g, k: 256 + 128 + 16 * (g % 3) + 4 * k
    HB = lambda sg, tt, k: 256 + 32 * (sg % 4) + 16 * tt + 4 * k
    DA = lambda t, tt: ACC + 32 + 32 * tt + 4 * t if t < 8 else ACC + 96 + 4 * tt
    drd = lambda g: [rd(SL * ((9 + dg[g][0]) % 4) + 9216 * k + 1024 * dg[g][1], DW(g, k)) for k in range(4)]
    p.add(dma(1) + dma(2) + urd(0))
    p.add(sp.load(6, "s80", 9))
    p.add(flat(sp.check(6, "s80", 1, 9)))
    stamp(p, 12)
    xall = [x for kg in range(6) for x in xl(kg)]
    xcut = [i for i, x in enumerate(xall) if isinstance(x, tuple)][OPT["x0"]]
    p.add(xall[:xcut])
    p("s_waitcnt lgkmcnt(0)")
    main, st, bar = [], [], {}
    for g, (gi, m, kg, stage, off, stride) in enumerate(ug):
        g0 = 12 * g
        for tt in range(4):
            d = v(AB(gi) + 8 * tt + 4 * m, 4)
            for k in range(3):
                main.append(f"{M16} {d}, {v(W+12*(g%2)+4*k,4)}, {R(xreg(4*(3*kg+k)+tt),4)}, {'0' if kg == 0 and k == 0 else d}")
            if g < 36 and g % 6 == 0 and g0 + tt: st.append(([f"WAITVM x{kg}_{tt}"], g0 + 3 * tt - 2, g0 + 3 * tt - 1))
        last = g + 1 == len(ug)
        o = 0
        if last or ug[g + 1][3] != stage:
            st.append(([[f"WAITVM w{stage+1}", "s_barrier"]], g0, g0 + 1)); o = 1
            bar[stage + 1] = g0
        if last:
            st.append((drd(0) + drd(1), g0 + 1, g0 + 9))
            st.append((["s_waitcnt lgkmcnt(4)"], g0 + 11, g0 + 12))
            st.append((["WAITVM h0"], g0 + 10, g0 + 11))
        else:
            st.append((urd(g + 1), g0 + o, g0 + o + OPT["urd"]))
            st.append((["s_waitcnt lgkmcnt(0)"], g0 + 11, g0 + 12))
    H0 = len(main)
    GS = lambda gi: 144 * gi
    DS = lambda sg: H0 + 72 * sg
    for g, (sg, t) in enumerate(dg):
        g0 = H0 + 8 * g
        for tt in range(2):
            d = v(DA(t, tt), 4)
            for k in range(4):
                main.append(f"{M16} {d}, {R(DW(g,k),4)}, {R(HB(sg,tt,k),4)}, {'0' if sg == 0 and k == 0 else d}")
        o = 0
        if sg < 7 and t == 7:
            st.append(([[f"WAITVM w{10+sg}" + (", w17" if sg == 6 else ""), "s_barrier"]], g0, g0 + 1)); o = 1
            bar[10 + sg] = g0
        if sg < 7 and t == 8: st.append(([f"WAITVM h{sg+1}" + (", h8" if sg == 6 else "")], g0 + 6, g0 + 7))
        drain = sg < 7 and t == 6
        if g + 2 < len(dg): st.append((drd(g + 2), g0 + o, g0 + (4 if drain else 7)))
        if g + 1 < len(dg): st.append(([f"s_waitcnt lgkmcnt({4 if g + 2 < len(dg) and not drain else 0})"], g0 + 7, g0 + 8))
    END = len(main)
    def hl(sg):
        L = []
        for tt in range(2):
            L += [(f"buffer_load_dwordx4 {R(HB(sg,tt,k),4)}, v1, {ACD}, {s(38+tt)} offen offset:{1024*k} sc1", f"h{sg}") for k in range(4)]
            L.append(f"s_add_u32 {s(38+tt)}, {s(38+tt)}, 4096")
        return L
    XE = OPT["xe"]
    lo = [(xall[xcut:], 0, XE)]
    z = AB(3)
    stl = []
    for k in range(8):
        stl += [f"buffer_load_dwordx2 {v(z+2*k,2)}, v2, {ACD}, s22 offen sc1", "s_add_u32 s22, s22, 16384"]
    lo.append((stl, XE, XE + 24))
    lo.append((hl(0) + hl(1) + hl(2), GS(8) + 50, GS(8) + 130))
    for sg in range(6): lo.append((hl(sg + 3), DS(sg) + (OPT["l3"] + 2 if sg == 4 else 2), DS(sg) + 62))
    lo.append((dma(3), XE + 24, XE + 72))
    cur = XE + 72
    for i in range(4, 20):
        cur = max(cur, bar[i - 3] + 1)
        lo.append((dma(i), cur, cur + 66)); cur += 66
    addr = f"""s_lshr_b32 s44, s9, 3
s_and_b32 s45, s9, 7
s_mul_i32 s28, s10, {4*HT}
s_mul_i32 s23, s44, 36864
s_add_u32 s23, s23, {hex(AC['HP'])}
s_add_u32 s32, s28, s23
s_lshl_b32 s28, s45, 10
s_add_u32 s28, s28, s32
s_and_b32 s46, s45, 1
s_lshr_b32 s45, s45, 1
s_lshl_b32 s29, s45, 10
s_add_u32 s32, s32, s29
s_lshl_b32 s29, s46, 9
s_add_u32 s32, s32, s29
s_add_u32 s32, s32, 8192
s_add_u32 s29, s28, {HT}
s_add_u32 s30, s29, {HT}
s_add_u32 s31, s30, {HT}
s_add_u32 s33, s32, {2*HT}
v_lshrrev_b32 v10, 5, v0
v_lshlrev_b32 v10, 8, v10
v_lshl_add_u32 v10, v5, 2, v10
v_bfe_u32 v11, v0, 4, 1
v_mul_u32_u24 v6, {HT}, v11
v_add_u32 v10, v10, v6
s_lshl_b32 s16, s8, 1
s_add_u32 s46, s46, s16
s_lshl_b32 s46, s46, 2
s_add_u32 s46, s46, s3
s_mul_i32 s38, s46, {2*HT}
s_add_u32 s38, s38, s23
s_add_u32 s39, s38, {HT}
s_lshl_b32 s47, s44, 2
s_add_u32 s47, s47, s45
s_mul_i32 s40, s47, {36*9216}
s_add_u32 s40, s40, {hex(WS['W2'])}
s_lshl_b32 s16, s10, 5
s_add_u32 s16, s16, s9
s_mul_i32 s16, s16, {FS}
s_add_u32 s16, s16, {FU}
s_lshr_b32 s17, s46, 1
s_lshl_b32 s17, s17, 2
s_add_u32 s17, s17, s44
s_mul_i32 s17, s17, {8*FS}
s_add_u32 s17, s17, {FU}""".split("\n")
    stats = []
    for k in range(1, 8):
        stats += [f"v_add_f32 {v(z)}, {v(z)}, {v(z+2*k)}", f"v_add_f32 {v(z+1)}, {v(z+1)}, {v(z+2*k+1)}"]
    stats += [f"v_mul_f32 {v(z)}, {fl(1/D)}, {v(z)}", f"v_mul_f32 {v(z+1)}, {fl(1/D)}, {v(z+1)}",
              f"v_fma_f32 {v(z+1)}, -{v(z)}, {v(z)}, {v(z+1)}", f"v_max_f32 {v(z+1)}, 0, {v(z+1)}",
              f"v_add_f32 {v(z+1)}, {fl(1e-5)}, {v(z+1)}", f"v_rsq_f32 {v(z)}, {v(z+1)}",
              f"v_mul_f32 {v(z)}, {fl(-LOG2E)}, {v(z)}"]
    for t in range(4):
        stats += [f"ds_bpermute_b32 {v(C1+t)}, v5, {v(z)} offset:{64*t}", f"ds_bpermute_b32 {v(IR2+t)}, v5, {v(z+1)} offset:{64*t}"]
    S1, S2, S3 = GS(7) + OPT["s1"], GS(8) + OPT["s2"], H0 + OPT["s3"]
    epi = []
    for gi in range(9):
        done = (384, 408, 432)[gi] if gi < 3 else GS(gi + 1)
        dl = [GS(4), GS(5), GS(6), GS(7), S1, H0, S2, H0, S3][gi]
        b = (0, 1, None, 0, 1, 0, 1, 0, 1)[gi]
        for tt in range(4):
            g = AB(gi) + 8 * tt
            u, t = g + 4, T + 4 * tt
            epi.append(("@", done - 3 * (3 - tt) + 3, dl - 1))
            epi += [f"v_mul_f32 {v(t+i)}, {v(g+i)}, {v(C1+tt)}" for i in range(4)]
            epi += [f"v_exp_f32 {v(t+i)}, {v(t+i)}" for i in range(4)]
            epi += [f"v_mul_f32 {v(g+i)}, {v(g+i)}, {v(u+i)}" for i in range(4)]
            epi += [f"v_fma_f32 {v(t+i)}, {v(t+i)}, {v(IR2+tt)}, {v(IR2+tt)}" for i in range(4)]
            epi += [f"v_rcp_f32 {v(t+i)}, {v(t+i)}" for i in range(4)]
            epi += [f"v_mul_f32 {v(g+i)}, {v(g+i)}, {v(t+i)}" for i in range(4)]
            o = HO + 4 * tt + 2 * b if b is not None else 40 + 2 * tt
            epi += [f"v_cvt_pk_bf16_f32 {v(o+i)}, {v(g+2*i)}, {v(g+2*i+1)}" for i in range(2)]
            if b == 1:
                epi.append((f"buffer_store_dwordx4 {v(HO+4*tt,4)}, v1, {ACD}, {s(28+tt)} offen sc1", f"g{gi}"))
                if gi < 8: epi.append(f"s_add_u32 {s(28+tt)}, {s(28+tt)}, {12288 if gi == 1 else 8192}")
            elif b is None and tt & 1:
                epi += [f"v_permlane16_swap_b32 {v(o-2+i)}, {v(o+i)}" for i in range(2)]
                epi.append((f"buffer_store_dwordx4 {v(o-2,4)}, v10, {ACD}, {s(32+tt//2)} offen sc1", "g2"))
    def level(val, load_at, chk_at):
        return [(sp.load(7, "s17", 9), load_at, load_at + 3), (sp.check(7, "s17", val, 9), chk_at - 3, chk_at + 1)]
    def sig(val, tag, at):
        return [([f"WAITVM {tag}"] + signal("s16", val, 8), at, at + 6)]
    DR = OPT["dr"]
    fl_ = sig(1, "g4", S1 + DR) + level(1, GS(8), GS(8) + 48) + sig(2, "g6", S2 + DR) + level(2, DS(1) + 16, DS(2))
    fl_ += sig(3, "g8", S3 + DR) + level(3, DS(4) + OPT["l3"] - 56, DS(4) + OPT["l3"])
    X, TT, L0 = 48, 16, 80
    paddr = f"""s_lshr_b32 s22, s45, 1
s_and_b32 s23, s45, 1
s_mul_i32 s22, s22, 9216
s_mul_i32 s28, s46, {2*XT}
s_add_u32 s22, s22, s28
s_mul_i32 s28, s44, {XSZ}
s_add_u32 s22, s22, s28
s_add_u32 s22, s22, {hex(AC['PART'])}
s_mul_i32 s28, s23, 5120
s_add_u32 s28, s28, s22
s_lshl_b32 s23, s23, 9
s_add_u32 s30, s22, s23
s_add_u32 s30, s30, 4096
s_add_u32 s29, s28, {XT}
v_mul_u32_u24 v5, {HT-XT}, v11
v_sub_u32 v5, v10, v5
s_lshl_b32 s22, s46, 4
s_add_u32 s22, s22, s47
s_mul_i32 s22, s22, {FSD}
s_add_u32 s22, s22, {FD}
s_lshl_b32 s26, s8, 5
s_add_u32 s26, s26, s9
s_lshr_b32 s25, s26, 2
s_mul_i32 s25, s25, {16*FSD}
s_add_u32 s25, s25, {FD}""".split("\n") + ln_addr("s26") + f"""v_and_b32 v14, 15, v0
v_mul_u32_u24 v14, {FSD}, v14
s_add_u32 s27, s31, {hex(AC['X2'])}
s_mov_b32 s34, 0x3f80
s_mov_b32 s35, 0x3f800000""".split("\n")
    paddr += [f"buffer_load_dwordx4 {v(TT+4*i,4)}, v218, {ACD}, s27 offen offset:{256*i} sc1" for i in range(3)]
    unp = [x for u in range(12) for x in unpack(X + 2 * u, TT + u)]
    outs = []
    for k in range(4):
        for tt in range(2):
            o = T + 16 * (k % 2) + 4 * tt
            outs.append(("@", DS(7) + 32 * (k + 1) - 4 * (1 - tt) + 3, END))
            outs += [f"v_cvt_pk_bf16_f32 {v(o+u)}, {v(DA(2*k,tt)+2*u)}, {v(DA(2*k,tt)+2*u+1)}" for u in range(4)]
            outs.append(f"buffer_store_dwordx4 {v(o,4)}, v1, {ACD}, {s(28+tt)} offen offset:{1024*k} sc1")
    streams = st + fl_ + lo + [(addr, 4, 300), (stats, 330, 372), (epi, 370, END, "asap"), (paddr, DS(3), DS(5)),
                               (unp, DS(6), DS(7)), (outs, DS(7), END, "asap")]
    for nm_, at in [("up0", 431), ("upg5", GS(6) - 1), ("up", H0 - 1), ("d3", DS(4) - 1), ("d6", DS(7) - 1)]:
        streams.append((stamp_items(nm_), at, at + 1))
    code = pack(main, streams, report="ffn")
    txt = lambda x: x[0] if isinstance(x, tuple) else x
    lastop = {x[1]: i for i, x in enumerate(code) if isinstance(x, tuple)}
    for i, x in enumerate(code):
        if txt(x).startswith("WAITVM"):
            for tg in txt(x)[7:].split(", "): assert lastop.get(tg, -1) < i, (tg, "issued after its wait")
    if OPT["abl"] & 1: code = [x for x in code if not txt(x).startswith(("v_mul_f32", "v_exp", "v_fma", "v_rcp", "v_cvt"))]
    if OPT["abl"] & 2: code = [x for x in code if not txt(x).endswith(" lds")]
    if OPT["abl"] & 4: code = [x for x in code if txt(x) != "s_barrier"]
    if OPT["abl"] & 8: code = [x for x in code if not txt(x).startswith("buffer_store_dwordx4")]
    if OPT["abl"] & 16: code = [x for x in code if not (isinstance(x, tuple) and x[1][0] == "h")]
    p.add(code)
    stamp(p, 15)
    srd(p, 52, "out", S * D * 2)
    for k in range(4): p(f"s_add_u32 {s(64+k)}, s31, {hex(AC['PART'] + k*XSZ)}")
    for tt in range(2):
        for u in range(2): p(f"v_cvt_pk_bf16_f32 {v(176+2*tt+u)}, {v(DA(8,tt)+2*u)}, {v(DA(8,tt)+2*u+1)}")
    for u in range(2): p(f"v_permlane16_swap_b32 {v(176+u)}, {v(178+u)}")
    p(f"buffer_store_dwordx4 v[176:179], v5, {ACD}, s30 offen sc1")
    stamp(p, 16)
    p("s_waitcnt vmcnt(0)")
    p.add(signal("s22", 1, 8))
    stamp(p, 17)

    p("s_cmp_eq_u32 s3, 3")
    p("s_cbranch_scc1 red_idle")
    p.add(sp.load(14, "s25", 9))
    p.add(flat(sp.check(14, "s25", 1, 9)))
    stamp(p, 18)
    for k in range(4):
        for i in range(3): p(f"buffer_load_dwordx4 {v(L0+12*k+4*i,4)}, v218, {ACD}, {s(64+k)} offen offset:{256*i} sc1")
    for k in range(4):
        for u in range(24): p(f"v_dot2_f32_bf16 {v(X+u)}, {v(L0+12*k+u//2)}, {s(34+u%2)}, {v(X+u)}")
    p("s_cmp_lg_u32 s13, 0")
    p("s_cbranch_scc1 red_out", take=[False, True])
    ln_tail(p, X, TT, L0, LSZ, True)
    stamp(p, 19)
    p("red_join:")
    p(f"s_mul_i32 s16, s26, {FSR}")
    p(f"s_add_u32 s16, s16, {FR}")
    p(f"s_add_u32 s48, s48, {hex(LSZ)}")
    p("s_addc_u32 s49, s49, 0")
    p(f"s_mov_b32 s50, {hex(LSZ)}")
    p("s_mov_b32 s13, 1")
    p("s_waitcnt vmcnt(0)")
    p("s_barrier")
    if DIAG:
        p("v_mov_b32 v222, v223")
        p("v_mov_b32 v220, v221")
    p("s_cmp_lg_u32 s3, 0")
    p("s_cbranch_scc1 layer", take=False)
    p.add(flat(signal("s16", 1, 8)))
    p("s_branch layer")
    p("red_out:")
    for i in range(3):
        for u in range(4): p(f"v_cvt_pk_bf16_f32 {v(TT+4*i+u)}, {v(X+8*i+2*u)}, {v(X+8*i+2*u+1)}")
        p(f"buffer_store_dwordx4 {v(TT+4*i,4)}, v13, s[52:55], s24 offen offset:{16*i}")
    p("fin:")
    if DIAG:
        stamp(p, 19)
        p("s_waitcnt vmcnt(0)")
        stamp(p, 20)
        p("s_memrealtime s[62:63]")
        p("s_waitcnt lgkmcnt(0)")
        p("v_writelane_b32 v223, s96, 62")
        p("v_writelane_b32 v223, s62, 63")
        p("s_lshl_b32 s60, s2, 2")
        p("s_add_u32 s60, s60, s3")
        p("s_lshl_b32 s60, s60, 10")
        p(f"buffer_store_dwordx4 v[220:223], v1, {WSD}, s60 offen")
    p(f"{nm}_end:")
    p("s_endpgm")
    q = Prog("idle")
    q("red_idle:")
    q("s_waitcnt lgkmcnt(0)")
    q("s_cmp_lg_u32 s13, 0")
    q("s_cbranch_scc1 fin")
    q("s_barrier")
    q("s_branch red_join")
    sd = side_paths(sp)
    return [p, q, sp.code, sd, pack_block()]

def side_paths(sp):
    q = Prog("side")
    q(f"""a_stage:
s_sub_u32 s15, s3, 1
s_sub_u32 s21, s2, 40
s_lshl_b32 s22, s15, 8
s_add_u32 s21, s21, s22
s_cmp_ge_u32 s21, 8
s_cbranch_scc1 a_q
v_mov_b32 v20, 0
v_mov_b32 v21, 0
v_mov_b32 v22, 0
v_mov_b32 v23, 0
s_lshl_b32 s22, s21, 12
s_add_u32 s22, s22, {hex(ACT0 + FR)}""")
    for i in range(4): q(f"buffer_store_dwordx4 v[20:23], v1, {WSD}, s22 offen offset:{1024*i} sc1")
    q(f"""s_lshl_b32 s21, s21, 5
v_mov_b32 v24, 1
s_waitcnt vmcnt(0)
s_mov_b64 exec, 1
buffer_store_dword v24, off, s[88:91], s21 sc1
s_mov_b64 exec, -1
a_q:
s_mov_b32 s52, s66
s_mov_b32 s53, s67
s_mov_b32 s54, {D*3*D*2}
s_and_b32 s21, s2, 7
s_mul_i32 s21, s21, 24
s_lshr_b32 s20, s2, 3
s_add_u32 s20, s20, s21
s_sub_u32 s20, s20, 8
s_mul_i32 s20, s20, 3
s_add_u32 s20, s20, s15
s_and_b32 s21, s20, 31
s_lshr_b32 s22, s20, 5
s_cmp_lt_u32 s2, 64
s_cmov_b32 s22, 18
v_min_u32 v7, 2, v5
v_mul_u32_u24 v10, 3456, v6
v_lshl_add_u32 v7, v7, 4, v10
s_mul_i32 s23, s22, {32*3456}
s_mul_i32 s24, s21, 36
s_add_u32 s23, s23, s24
s_add_u32 s24, s23, {4*3456}""")
    for blk in range(2):
        for m in range(3): q(f"buffer_load_dwordx4 {v(96+12*blk+4*m,4)}, v7, s[52:55], {s(23+blk)} offen offset:{1152*m}" + (" nt" if OPT["qnt"] else ""))
    q(f"""s_mul_i32 s31, s21, 18
s_add_u32 s31, s31, s22
s_mul_i32 s33, s31, {FS}
s_add_u32 s33, s33, {FW}
s_lshl_b32 s31, s31, 12
s_add_u32 s31, s31, {hex(WS['WQKV'])}
s_cmp_eq_u32 s22, 18
s_cmov_b32 s31, {OOB}
s_cmov_b32 s33, {OOB}
s_cmp_ge_u32 s2, 36
s_cbranch_scc1 a_common
s_cmp_eq_u32 s3, 1
s_cbranch_scc1 a_wo
s_lshl_b32 s20, s3, 5
s_add_u32 s20, s20, s2
s_cmp_ge_u32 s20, 96
s_cbranch_scc1 a_common
v_mov_b32 v128, 0
v_mov_b32 v129, 0
v_mov_b32 v130, 0
v_mov_b32 v131, 0
s_mul_i32 s22, s2, 5120
s_mul_i32 s23, s2, 6144
s_add_u32 s22, s22, {hex(ACT0 + AC['FLAG'])}
s_add_u32 s23, s23, {hex(ACT0 + LSZ + AC['FLAG'])}""")
    for r_, n_ in ((22, 5), (23, 6)):
        for i in range(n_):
            if i == 4: q(f"s_add_u32 {s(r_)}, {s(r_)}, 4096")
            q(f"buffer_store_dwordx4 v[128:131], v1, {WSD}, {s(r_)} offen offset:{1024*(i%4)} sc1")
    q(f"s_mul_i32 s33, s2, {FS}")
    q(f"s_add_u32 s33, s33, {FW + 576*FS}")
    q("s_branch a_common")
    L = 256
    q(f"""a_wo:
s_mov_b32 s52, s68
s_mov_b32 s53, s69
s_mov_b32 s54, {D*D*2}
s_and_b32 s21, s2, 1
s_lshr_b32 s22, s2, 1
v_lshrrev_b32 v7, 3, v4
v_mul_u32_u24 v7, 18, v7
v_and_b32 v8, 7, v4
v_add_u32 v7, v7, v8
v_lshrrev_b32 v8, 1, v4
v_and_b32 v9, 1, v8
v_lshrrev_b32 v8, 1, v8
v_lshl_add_u32 v8, v8, 2, v9
v_mul_u32_u24 v8, 18, v8
v_and_b32 v9, 1, v4
v_add3_u32 v8, v8, v9, 16
s_mul_i32 s23, s22, {36*1152}
s_sub_u32 s25, s22, 16
s_mul_i32 s25, s25, {288*1152}
s_mov_b32 s24, {36*1152}
s_cmp_lt_u32 s22, 16
s_cselect_b64 vcc, -1, 0
s_cmov_b32 s24, {8*1152}
s_cselect_b32 s23, s23, s25
v_cndmask_b32 v7, v8, v7, vcc
v_mul_u32_u24 v7, 1152, v7
v_lshl_add_u32 v7, v5, 4, v7
v_add_u32 v8, s24, v7
s_mul_i32 s24, s21, 576
s_add_u32 s23, s23, s24""")
    for rem in range(9):
        for blk in range(2): q(f"buffer_load_dwordx4 {R(L+8*rem+4*blk,4)}, {v(7+blk)}, s[52:55], s23 offen offset:{64*rem}")
    q(f"""s_mul_i32 s31, s21, {4*92160}
s_mul_i32 s24, s22, 5120
s_add_u32 s31, s31, s24
s_add_u32 s31, s31, {hex(WS['WO'])}
s_branch a_common
b_wo:
DRAINED
v_add_u32 v7, 4, v6""")
    G.selmat(q, 16, 6)
    G.selmat(q, 20, 7)
    G.selmat(q, 24, 4)
    q("v_add_u32 v7, 16, v4")
    G.selmat(q, 28, 7)
    q("s_waitcnt vmcnt(0)")
    def sto(n, o):
        rem, b = n >> 1, n & 1
        dcs = 1 + b if rem == 4 else (0, 0, 1, 1, None, 2, 2, 3, 3)[rem]
        tl = 4 if rem == 4 else 2 * (rem - (0, 2, 5, 7)[dcs]) + b
        return [f"s_add_u32 s16, s31, {dcs*92160+tl*1024}", f"buffer_store_dwordx4 {v(o,4)}, v1, {WSD}, s16 offen sc1"]
    frags(q, 18, lambda n: L + 8 * (n >> 1), lambda n: 16 + 4 * ((2 if n >> 1 == 4 else 0) + (n & 1)), "0", sto, [])
    q("s_branch b_chk", take=[False])
    q("b_wq0:")
    q("DRAINED")
    q(f"s_cmp_lg_u32 s92, {OOB}")
    q("s_cbranch_scc1 b_wo", take=False)
    SQ, SK, SV, LQ, LK, LV = 16, 24, 32, 36, 40, 44
    q("v_mov_b32 v10, 99")
    q("v_add_u32 v7, v3, v0")
    G.selmat(q, 16, 7)
    q("s_lshl_b32 s17, s3, 10")
    q(f"s_add_u32 s17, s17, {SELB + 4096}")
    q("v_add_u32 v7, s17, v1")
    q("ds_write_b128 v7, v[16:19]")
    def look(dst, src):
        q(f"v_sub_u32 v12, {v(src)}, v3")
        q("v_min_u32 v12, 8, v12")
        q("v_lshl_add_u32 v12, v12, 4, s17")
        q(f"ds_read_b128 {v(dst,4)}, v12")
    q("v_cmp_gt_u32 vcc, 8, v4")
    q("v_subrev_u32 v7, 16, v6")
    look(SV, 4)
    q("v_cndmask_b32 v8, v10, v6, vcc")
    q("v_cndmask_b32 v9, v7, v10, vcc")
    look(SQ, 8)
    look(SK, 9)
    q("v_add_u32 v8, 4, v8")
    q("v_add_u32 v9, 4, v9")
    look(SQ + 4, 8)
    look(SK + 4, 9)
    q("v_bfe_u32 v7, v4, 2, 1")
    q("v_add_u32 v7, 16, v7")
    q("v_and_b32 v8, 11, v4")
    for k, (dst, c0) in enumerate(((LK, 0), (LQ, 8), (LV, 1))):
        q(f"v_cmp_eq_u32 {s(22+2*k,2)}, {c0}, v8")
    for k, (dst, c0) in enumerate(((LK, 0), (LQ, 8), (LV, 1))):
        q(f"v_cndmask_b32 v9, v10, v7, {s(22+2*k,2)}")
        look(dst, 9)
    q("s_waitcnt vmcnt(0)")
    stamp(q, "a_q0")
    terms = [[(0, SQ), (1, SK)], [(0, SQ + 4), (1, SK + 4)], [(2, SV)], [(0, LQ), (1, LK), (2, LV)]]
    main, st = [], []
    for t_, tl in enumerate(terms):
        Dr = 48 + 8 * t_
        for blk in range(2):
            for n, (m, sel) in enumerate(tl):
                main.append(f"{M16} {v(Dr+4*blk,4)}, {v(96+12*blk+4*m,4)}, {v(sel,4)}, {'0' if n == 0 else v(Dr+4*blk,4)}")
        st.append(("@", len(main) + 2, None))
        st += [f"v_cvt_pk_bf16_f32 {v(Dr+u)}, {v(Dr+2*u)}, {v(Dr+2*u+1)}" for u in range(4)]
        st.append(f"buffer_store_dwordx4 {v(Dr,4)}, v1, {WSD}, s31 offen offset:{1024*t_} sc1")
    q.add(pack(main, [(st, 0, len(main), "asap")]))
    q("b_chk:")
    q.add(sp.load(14, "0", 9, srd="s[88:91]"))
    stamp(q, "a_q1")
    q.add(flat(sp.check(14, "0", 1, 9, srd="s[88:91]", back=True)))
    q.add(signal("s33", 1, 8))
    stamp(q, "a_q2")
    q("s_branch b_poll")
    return q

def build():
    head = [l for l in open(f"cdna_kernels/{NAME}.s.ref").read().split("\n") if l.startswith(";") and "@launch" not in l]
    out = "\n".join(head) + "\n; @launch grid=(256,1,1) block=(256,1,1) lds=163840\n"
    out += '.amdgcn_target "amdgcn-amd-amdhsa--gfx950"\n.text\n'
    txt = [q.finalize(verbose=True).text() for q in mega()]
    out += txt[0].replace("\nlayer:\n", "\n" + txt[3] + "layer:\n") + txt[1] + txt[2] + txt[4]
    out += "code_end:\n    s_endpgm\n"
    out += '.section .rodata,"a"\n' + kd(NAME, 512, 256)
    return out

if __name__ == "__main__":
    args = sys.argv[1:]
    if "diag" in args:
        DIAG = True
        args.remove("diag")
    for x in [x for x in args if "=" in x]:
        k, val = x.split("="); OPT[k] = int(val); args.remove(x)
    txt = build()
    if DIAG: txt = "; stamps " + ",".join(NAMES) + "\n" + txt
    open(args[0] if args else f"cdna_kernels/{NAME}.s", "w").write(txt)
```
